```python
import torch

def _softmax(x, axis=-1):
    return torch.softmax(x, dim=axis)
def _gelu(x):
    return torch.nn.functional.gelu(x, approximate="tanh")
def _silu(x):
    return torch.nn.functional.silu(x)
def _sigmoid(x):
    return torch.sigmoid(x)
def _layernorm(x, axis=-1, eps=1e-5):
    m = x.mean(dim=axis, keepdim=True)
    v = x.var(dim=axis, keepdim=True, unbiased=False)
    return (x - m) / torch.sqrt(v + eps)
def _scatter_add(tgt, idx, src, axis=0):
    return tgt.clone().index_add_(axis, idx, src)
def _segment_sum(src, seg, n):
    out = torch.zeros((n,) + src.shape[1:], dtype=src.dtype)
    return out.index_add_(0, seg, src)
def _pad(x, pw):
    flat = tuple(v for pair in reversed(pw) for v in pair)
    return torch.nn.functional.pad(x, flat)

kernel_name = 'interleave_layers__sliding_block_cached__sliding_block_cached__decode'

def setup_inputs():

    _w = (lambda a: (lambda t: t.to(torch.bfloat16) if t.is_floating_point() else t)(torch.as_tensor(a)))
    def _A_setup():
        B, Sq, D = 4, 1, 512
        Hq, Hkv, Sk, Dh = 32, 8, 4096, 128
        assert Hq % Hkv == 0, (Hq, Hkv)
        return {
            "x": _w((lambda *s: torch.randn(*s, dtype=torch.bfloat16) * 0.05)(B, Sq, D)),
            "k_cache": _w((lambda *s: torch.randn(*s, dtype=torch.bfloat16) * 0.8)(B, Hkv, Sk, Dh)),
            "v_cache": _w((lambda *s: torch.randn(*s, dtype=torch.bfloat16) * 3.2)(B, Hkv, Sk, Dh)),
            "wq": _w((lambda *s: torch.randn(*s, dtype=torch.bfloat16) * 0.8)(D, Hq * Dh) * (D ** -0.5)),
            "wo": _w((lambda *s: torch.randn(*s, dtype=torch.bfloat16) * 3.2)(Hq * Dh, D) * ((Hq * Dh) ** -0.5)),
        }
    _A_in = _A_setup()

    def _B_setup():
        B, Sq, D = 4, 1, 512
        Hq, Hkv, Sk, Dh = 32, 8, 4096, 128
        assert Hq % Hkv == 0, (Hq, Hkv)
        return {
            "x": _w((lambda *s: torch.randn(*s, dtype=torch.bfloat16) * 0.05)(B, Sq, D)),
            "k_cache": _w((lambda *s: torch.randn(*s, dtype=torch.bfloat16) * 1.6)(B, Hkv, Sk, Dh)),
            "v_cache": _w((lambda *s: torch.randn(*s, dtype=torch.bfloat16) * 1.6)(B, Hkv, Sk, Dh)),
            "wq": _w((lambda *s: torch.randn(*s, dtype=torch.bfloat16) * 1.6)(D, Hq * Dh) * (D ** -0.5)),
            "wo": _w((lambda *s: torch.randn(*s, dtype=torch.bfloat16) * 1.6)(Hq * Dh, D) * ((Hq * Dh) ** -0.5)),
        }
    _B_in = _B_setup()

    return {
        "A_x": _A_in["x"],
        "A_k_cache": _A_in["k_cache"],
        "A_v_cache": _A_in["v_cache"],
        "A_wq": _A_in["wq"],
        "A_wo": _A_in["wo"],
        "B_x": _B_in["x"],
        "B_k_cache": _B_in["k_cache"],
        "B_v_cache": _B_in["v_cache"],
        "B_wq": _B_in["wq"],
        "B_wo": _B_in["wo"],
    }

def reference(A_x, A_k_cache, A_v_cache, A_wq, A_wo, B_x, B_k_cache, B_v_cache, B_wq, B_wo):
    def _A_ref(x, k_cache, v_cache, wq, wo):
        B, Sq, D = x.shape
        Hq, Dh = 32, 128
        Hkv, Sk = k_cache.shape[1], k_cache.shape[2]
        W = min(4096, max(256, Sk // 4))
        rep = Hq // Hkv
        q = (lambda x, *d: x.permute(*d))((x @ wq).reshape(B, Sq, Hq, Dh), 0, 2, 1, 3)
        k = (lambda x, n, axis: torch.repeat_interleave(x, n, dim=axis))(k_cache[:, :, Sk - W:, :], rep, axis=1)
        v = (lambda x, n, axis: torch.repeat_interleave(x, n, dim=axis))(v_cache[:, :, Sk - W:, :], rep, axis=1)
        scores = torch.einsum("bhqd,bhkd->bhqk", q, k) * (Dh ** -0.5)
        p = _softmax(scores, axis=-1)
        o = torch.einsum("bhqk,bhkd->bhqd", p, v)
        return (lambda x, *d: x.permute(*d))(o, 0, 2, 1, 3).reshape(B, Sq, Hq * Dh) @ wo

    def _B_ref(x, k_cache, v_cache, wq, wo):
        B, Sq, D = x.shape
        Hq, Dh = 32, 128
        Hkv, Sk = k_cache.shape[1], k_cache.shape[2]
        W = min(4096, max(256, Sk // 4))
        rep = Hq // Hkv
        q = (lambda x, *d: x.permute(*d))((x @ wq).reshape(B, Sq, Hq, Dh), 0, 2, 1, 3)
        k = (lambda x, n, axis: torch.repeat_interleave(x, n, dim=axis))(k_cache[:, :, Sk - W:, :], rep, axis=1)
        v = (lambda x, n, axis: torch.repeat_interleave(x, n, dim=axis))(v_cache[:, :, Sk - W:, :], rep, axis=1)
        scores = torch.einsum("bhqd,bhkd->bhqk", q, k) * (Dh ** -0.5)
        p = _softmax(scores, axis=-1)
        o = torch.einsum("bhqk,bhkd->bhqd", p, v)
        return (lambda x, *d: x.permute(*d))(o, 0, 2, 1, 3).reshape(B, Sq, Hq * Dh) @ wo

    x = A_x
    x = x + _A_ref(_layernorm(x, axis=-1), A_k_cache, A_v_cache, A_wq, A_wo)
    x = x + _B_ref(_layernorm(x, axis=-1), B_k_cache, B_v_cache, B_wq, B_wo)
    x = x + _A_ref(_layernorm(x, axis=-1), A_k_cache, A_v_cache, A_wq, A_wo)
    x = x + _B_ref(_layernorm(x, axis=-1), B_k_cache, B_v_cache, B_wq, B_wo)
    return x
```

```python
import re

TRANS = ("v_exp_f32", "v_rcp_f32", "v_rsq_f32", "v_log_f32", "v_sqrt_f32")


def _regs(tok):
    tok = tok.strip()
    tok = tok.lstrip("-")
    m = re.fullmatch(r"abs\((.*)\)", tok)
    if m:
        tok = m.group(1)
    m = re.fullmatch(r"([vsa])(\d+)", tok)
    if m:
        return [(m.group(1), int(m.group(2)))]
    m = re.fullmatch(r"([vsa])\[(\d+):(\d+)\]", tok)
    if m:
        return [(m.group(1), i) for i in range(int(m.group(2)), int(m.group(3)) + 1)]
    if tok == "vcc":
        return [("s", 106), ("s", 107)]
    if tok == "exec":
        return [("s", 126), ("s", 127)]
    return []


class Asm:
    def __init__(self):
        self.lines = []
        self.hist = []
        self.maxv = 0
        self.maxs = 0
        self.nlabel = 0

    def raw(self, text):
        self.lines.append(text)

    def comment(self, text):
        self.lines.append("    ; " + text)

    def label(self, name):
        self.lines.append(name + ":")

    def newlabel(self, base="L"):
        self.nlabel += 1
        return "%s_%d" % (base, self.nlabel)

    def _advance(self, n):
        for h in self.hist:
            h["age"] += n
        self.hist = [h for h in self.hist if h["age"] < 24]

    def nop(self, n):
        while n > 0:
            k = min(n, 16)
            self.lines.append("    s_nop %d" % (k - 1))
            self._advance(k)
            n -= k

    def settle(self):
        need = 0
        for h in self.hist:
            if h["kind"] == "mfma":
                need = max(need, 8 - h["age"])
            elif h["kind"] in ("valu", "trans"):
                need = max(need, (5 if any(k == "s" for k, _ in h["w"]) else 2) - h["age"])
            elif h["kind"] == "store":
                need = max(need, 2 - h["age"])
        if need > 0:
            self.nop(need)

    def I(self, text):
        text = text.strip()
        parts = text.split(None, 1)
        op = parts[0]
        rest = parts[1] if len(parts) > 1 else ""
        ops = []
        cur = ""
        depth = 0
        for ch in rest:
            if ch in "[(":
                depth += 1
            if ch in "])":
                depth -= 1
            if ch == "," and depth == 0:
                ops.append(cur.strip())
                cur = ""
            else:
                cur += ch
        if cur.strip():
            ops.append(cur.strip())
        mods = ""
        if ops:
            sp = ops[-1].split(None, 1)
            ops[-1] = sp[0]
            mods = sp[1] if len(sp) > 1 else ""
        allregs = [r for o in ops for r in _regs(o)]
        for k, i in allregs:
            if k == "v":
                self.maxv = max(self.maxv, i + 1)
            if k == "s" and i < 104:
                self.maxs = max(self.maxs, i + 1)

        kind = "other"
        w, r, c = [], [], []
        dpp_r = []
        perm_r = []
        rl_r = []
        if op.startswith("v_mfma"):
            kind = "mfma"
            w = _regs(ops[0])
            r = _regs(ops[1]) + _regs(ops[2])
            c = _regs(ops[3])
        elif op.startswith("v_permlane") or op == "v_swap_b32":
            kind = "valu"
            w = _regs(ops[0]) + _regs(ops[1])
            r = list(w)
            if op.startswith("v_permlane"):
                perm_r = list(w)
        elif op.startswith("v_readfirstlane") or op.startswith("v_readlane"):
            kind = "valu"
            w = _regs(ops[0])
            r = [x for o in ops[1:] for x in _regs(o)]
            rl_r = _regs(ops[1])
        elif op.startswith("v_"):
            kind = "trans" if op.replace("_e32", "").replace("_e64", "") in TRANS else "valu"
            w = _regs(ops[0])
            r = [x for o in ops[1:] for x in _regs(o)]
            if op.startswith("v_fmac") or "_dpp" in op:
                r += w
            if "_dpp" in op:
                dpp_r = _regs(ops[1])
            if op.startswith("v_cndmask") and len(ops) == 3:
                r += _regs("vcc")
        elif op.startswith("buffer_load") or op.startswith("global_load"):
            kind = "load"
            w = _regs(ops[0])
            r = [x for o in ops[1:] for x in _regs(o)]
        elif op.startswith("buffer_store") or op.startswith("global_store") or op.startswith("buffer_atomic"):
            kind = "store"
            r = [x for o in ops for x in _regs(o)]
            c = _regs(ops[0])
        elif op.startswith("ds_read"):
            kind = "dsr"
            w = _regs(ops[0])
            r = [x for o in ops[1:] for x in _regs(o)]
        elif op.startswith("ds_"):
            kind = "dsw"
            r = [x for o in ops for x in _regs(o)]
        elif op.startswith("s_"):
            kind = "salu"

        isvalu = kind in ("valu", "trans")
        ismem = kind in ("load", "store", "dsr", "dsw")
        need = 0
        W, R, C = set(w), set(r), set(c)
        for h in self.hist:
            hw = h["w"]
            req = 0
            if h["kind"] in ("valu", "trans"):
                vw = {x for x in hw if x[0] == "v"}
                sw = {x for x in hw if x[0] == "s"}
                if kind == "mfma" and vw & (R | C):
                    req = max(req, 2)
                if vw & set(dpp_r):
                    req = max(req, 2)
                if vw & set(perm_r):
                    req = max(req, 2)
                if vw & set(rl_r):
                    req = max(req, 1)
                if h["kind"] == "trans" and kind != "trans" and (isvalu or ismem or kind == "mfma") and vw & (R | C):
                    req = max(req, 1)
                if sw & R:
                    if isvalu or kind == "mfma":
                        req = max(req, 2)
                    if kind in ("load", "store"):
                        req = max(req, 5)
            elif h["kind"] == "mfma":
                if kind == "mfma":
                    if hw & C:
                        req = max(req, 0 if hw == C else 6)
                    if hw & R:
                        req = max(req, 8)
                    if hw & W and hw != W:
                        req = max(req, 8)
                    if hw & W and not (hw == C):
                        req = max(req, 8)
                elif isvalu or ismem:
                    if hw & (R | W):
                        req = max(req, 8)
                    if (isvalu or kind in ("load", "dsr")) and h["c"] & W:
                        req = max(req, 3)
            elif h["kind"] == "store":
                if len(h["c"]) >= 3 and h["c"] & W:
                    req = max(req, 2)
            need = max(need, req - h["age"])
        if need > 0:
            self.nop(need)
        self.lines.append("    " + text)
        self._advance(1)
        if op == "s_nop":
            self._advance(int(ops[0], 0))
        self.hist.append(dict(kind=kind, w=W, r=R, c=C, age=0))

    def text(self):
        return "\n".join(self.lines) + "\n"
```

```python
import sys, os, math, struct
sys.path.insert(0, os.path.dirname(os.path.abspath(__file__)))
from asmlib import Asm

NAME = "interleave_layers__sliding_block_cached__sliding_block_cached__decode"

DEFAULTS = dict(
    ts=0,
    kfix=1,
    fast=1,
)

QBUF = 0x000000
CSBUF = 0x100000
OBUF = 0x180000
XBUF = 0x200000
MLBUF = 0x280000
STBUF = 0x284000
TSBUF = 0x300000
WS_BYTES = 0x400000
OOB = 0x40000000

FQX, FQP, FAQ, FAO, FAP, FOX, FOP, FISSA, FISSB, CLR, GO = (
    0x00, 0x10, 0x20, 0x30, 0x40, 0x50, 0x60, 0x70, 0x80, 0x90, 0x94)
XL = 0x100
MLL = 0x280
QL = 0x300
OL = 0x800
XO = 0x2800
LDS_BYTES = 16384

SRD_WS, SRD_M0, SRD_M1, SRD_X = "s[4:7]", "s[8:11]", "s[12:15]", "s[44:47]"
sW, sRole, sG, sI, sL, sPar, sBud, sSelLo, sSelHi, sMode = (
    "s42", "s43", "s48", "s49", "s50", "s51", "s52", "s53", "s54", "s55")
KA = dict(A_x=16, A_k=18, A_v=20, A_wq=22, A_wo=24, B_x=26, B_k=28, B_v=30, B_wq=32, B_wo=34,
          out=36, dbg=38, ws=40)
TS0 = 76
NTS = 13


def f32bits(x):
    return struct.unpack("<I", struct.pack("<f", x))[0]


def vr(a, n):
    return "v[%d:%d]" % (a, a + n - 1)


class Gen:
    def __init__(self, **opt):
        self.o = dict(DEFAULTS)
        self.o.update(opt)
        self.a = Asm()

    def ts(self, k):
        if self.o["ts"]:
            assert k < 12
            if k == 0:
                self.a.I("s_memrealtime s[%d:%d]" % (TS0, TS0 + 1))
                self.a.I("s_memtime s[%d:%d]" % (TS0 + 24, TS0 + 25))
            else:
                self.a.I("s_memtime s[%d:%d]" % (TS0 + 2 * k, TS0 + 2 * k + 1))

    def ts_indexed(self, base, per_layer_shift=0):
        pass

    def srd(self, srd, ptr, nbytes):
        a = self.a
        b = int(srd[2:srd.index(":")])
        a.I("s_mov_b32 s%d, s%d" % (b, KA[ptr]))
        a.I("s_mov_b32 s%d, s%d" % (b + 1, KA[ptr] + 1))
        a.I("s_mov_b32 s%d, 0x%x" % (b + 2, nbytes))
        a.I("s_mov_b32 s%d, 0x00020000" % (b + 3))

    def lds_wait_ge(self, vaddr, off, sval, vt, sleep=1):
        a = self.a
        l0, l1 = a.newlabel("LW"), a.newlabel("LWD")
        a.label(l0)
        a.I("ds_read_b32 %s, %s offset:%d" % (vt, vaddr, off))
        a.I("s_waitcnt lgkmcnt(0)")
        a.I("v_cmp_gt_u32 vcc, %s, %s" % (sval, vt))
        a.I("s_cbranch_vccz %s" % l1)
        if sleep:
            a.I("s_sleep %d" % sleep)
        a.I("s_sub_u32 %s, %s, 1" % (sBud, sBud))
        a.I("s_cbranch_scc0 %s" % l0)
        a.I("s_branch L_end")
        a.label(l1)

    def tagcheck(self, regs, vt, par):
        a = self.a
        regs = list(regs)
        a.I("v_bitop3_b32 %s, %s, %s, %s bitop3:0x7e" % (vt, regs[0], regs[1], par))
        for x in regs[2:]:
            a.I("v_bitop3_b32 %s, %s, %s, %s bitop3:0xf6" % (vt, vt, x, par))
        a.I("v_and_b32 %s, 1, %s" % (vt, vt))

    def tagcheck2(self, regs, vt, vt2, par):
        a = self.a
        regs = list(regs)
        n = len(regs)
        assert n >= 4
        h = n // 2
        A, B = regs[:h], regs[h:]
        a.I("v_bitop3_b32 %s, %s, %s, %s bitop3:0x7e" % (vt, A[0], A[1], par))
        a.I("v_bitop3_b32 %s, %s, %s, %s bitop3:0x7e" % (vt2, B[0], B[1], par))
        A, B = A[2:], B[2:]
        for i in range(max(len(A), len(B))):
            if i < len(A):
                a.I("v_bitop3_b32 %s, %s, %s, %s bitop3:0xf6" % (vt, vt, A[i], par))
            if i < len(B):
                a.I("v_bitop3_b32 %s, %s, %s, %s bitop3:0xf6" % (vt2, vt2, B[i], par))
        a.I("v_bitop3_b32 %s, %s, %s, 1 bitop3:0xa8" % (vt, vt, vt2))

    def poll(self, loads, tags, vt, vt2, par):
        a = self.a
        l0, l1 = a.newlabel("LP"), a.newlabel("LPD")
        a.label(l0)
        for ld in loads:
            a.I(ld)
        a.I("s_waitcnt vmcnt(0)")
        self.tagcheck2(tags, vt, vt2, par)
        a.I("v_cmp_ne_u32 vcc, 0, %s" % vt)
        a.I("s_and_b64 exec, exec, vcc")
        a.I("s_cbranch_scc0 %s" % l1)
        a.I("s_sub_u32 %s, %s, 1" % (sBud, sBud))
        a.I("s_cbranch_scc0 %s" % l0)
        a.I("s_branch L_end")
        a.label(l1)
        a.I("s_mov_b64 exec, -1")

    def exchange(self, vzero, flagoff, vf, reads, nflags=4):
        a = self.a
        l0, l1 = a.newlabel("LX"), a.newlabel("LXD")
        a.label(l0)
        a.I("ds_read_b128 %s, %s offset:%d" % (vr(vf, 4), vzero, flagoff))
        for r in reads:
            a.I(r)
        a.I("s_waitcnt lgkmcnt(0)")
        if nflags == 4:
            a.I("v_min3_u32 v%d, v%d, v%d, v%d" % (vf, vf, vf + 1, vf + 2))
            a.I("v_min_u32 v%d, v%d, v%d" % (vf, vf, vf + 3))
        else:
            a.I("v_min3_u32 v%d, v%d, v%d, v%d" % (vf, vf + 1, vf + 2, vf + 3))
        a.I("v_cmp_gt_u32 vcc, %s, v%d" % (sL, vf))
        a.I("s_cbranch_vccz %s" % l1)
        a.I("s_sub_u32 %s, %s, 1" % (sBud, sBud))
        a.I("s_cbranch_scc0 %s" % l0)
        a.I("s_branch L_end")
        a.label(l1)

    def flag_set(self, vaddr, off, vval):
        self.a.I("ds_write_b32 %s, %s offset:%d" % (vaddr, vval, off))

    def moded_stores(self, stores):
        a = self.a
        if not self.o["fast"]:
            for s in stores:
                a.I(s + " sc1")
            return
        l0, l1 = a.newlabel("LS"), a.newlabel("LSD")
        a.settle()
        a.I("s_cmp_eq_u32 %s, 0" % sMode)
        a.I("s_cbranch_scc1 %s" % l0)
        for s in stores:
            a.I(s)
        a.I("s_branch %s" % l1)
        a.label(l0)
        for s in stores:
            a.I(s + " sc1")
        a.label(l1)

    def transpose_x2(self, stg, dst):
        a = self.a
        for j in range(4):
            u = j >> 1
            sel = sSelHi if (j & 1) else sSelLo
            for t in range(4):
                a.I("v_perm_b32 v%d, v%d, v%d, %s" % (dst + 4 * j + t, stg + 2 * (2 * t + 1) + u, stg + 2 * (2 * t) + u, sel))

    def transpose_x4(self, stg, dst):
        a = self.a
        for j in range(8):
            u = j >> 1
            sel = sSelHi if (j & 1) else sSelLo
            for t in range(4):
                a.I("v_perm_b32 v%d, v%d, v%d, %s" % (dst + 4 * j + t, stg + 4 * (2 * t + 1) + u, stg + 4 * (2 * t) + u, sel))

    def read_mode(self, vt):
        a = self.a
        a.I("ds_read_b32 %s, v13 offset:%d" % (vt, GO))
        a.I("s_waitcnt lgkmcnt(0)")
        a.I("v_readfirstlane_b32 %s, %s" % (sMode, vt))
        a.I("s_lshr_b32 %s, %s, 1" % (sMode, sMode))

    def prologue(self):
        a = self.a
        a.I("s_cmp_ge_u32 s2, 256")
        a.I("s_cbranch_scc1 L_exit")
        a.I("s_load_dwordx16 s[16:31], s[0:1], 0")
        a.I("s_load_dwordx8 s[32:39], s[0:1], 64")
        a.I("s_load_dwordx2 s[40:41], s[0:1], 96")
        self.ts(0)
        a.I("v_and_b32 v1, 63, v0")
        a.I("v_lshrrev_b32 v2, 6, v0")
        a.I("v_mov_b32 v13, 0")
        a.I("v_readfirstlane_b32 s3, v2")
        a.I("v_lshlrev_b32 v5, 2, v1")
        a.I("v_lshlrev_b32 v4, 4, v1")
        a.I("v_and_b32 v2, 15, v1")
        a.I("v_lshrrev_b32 v3, 4, v1")
        a.I("s_and_b32 %s, s3, 3" % sW)
        a.I("s_lshr_b32 %s, s3, 2" % sRole)
        a.I("s_and_b32 %s, s2, 7" % sG)
        a.I("s_lshr_b32 %s, s2, 3" % sI)
        a.I("s_mov_b32 %s, 0x10000" % sBud)
        a.I("s_mov_b32 %s, 0x05040100" % sSelLo)
        a.I("s_mov_b32 %s, 0x07060302" % sSelHi)
        a.I("s_mov_b32 %s, 0" % sMode)
        a.I("s_lshl_b32 s56, %s, 2" % sW)
        a.I("v_mov_b32 v14, s56")
        a.I("s_cmp_lg_u32 s3, 0")
        a.I("s_cbranch_scc1 L_noinit")
        a.I("ds_write_b32 v5, v13")
        a.I("v_mov_b32 v6, 0x3f803f80")
        a.I("v_lshlrev_b32 v7, 2, v2")
        a.I("ds_write_b32 v7, v6 offset:%d" % (XL + 4 * 64))
        a.label("L_noinit")
        a.I("s_waitcnt lgkmcnt(0)")
        a.I("s_barrier")
        self.srd(SRD_WS, "ws", WS_BYTES)
        a.I("s_cmp_eq_u32 %s, 0" % sRole)
        a.I("s_cbranch_scc1 L_PQ")
        a.I("s_cmp_eq_u32 %s, 2" % sRole)
        a.I("s_cbranch_scc1 L_PO")

    def att(self):
        a, o = self.a, self.o
        vKA, vKB, vV, vQLW, vQLR, vOLR, vOP, vSTG, vMLP, vMLW = "v6", "v7", "v8", "v9", "v10", "v11", "v12", "v15", "v2", "v3"
        CS = 16
        M_, L_ = 18, 19
        K0, V0, G0, P0, S0 = 20, 52, 84, 116, 120
        sKV, sQG, sCSG, sSTG, sOP, sMLP, sB, sS = "s64", "s65", "s66", "s67", "s68", "s69", "s70", "s71"
        sKV2, sQG2 = "s72", "s73"
        a.label("L_ATT")
        a.I("s_lshr_b32 %s, %s, 3" % (sB, sI))
        a.I("s_and_b32 %s, %s, 7" % (sS, sI))
        a.I("s_cmp_eq_u32 %s, 3" % sRole)
        a.I("s_cselect_b32 s8, s%d, s%d" % (KA["B_k"], KA["A_k"]))
        a.I("s_cselect_b32 s9, s%d, s%d" % (KA["B_k"] + 1, KA["A_k"] + 1))
        a.I("s_cselect_b32 s12, s%d, s%d" % (KA["B_v"], KA["A_v"]))
        a.I("s_cselect_b32 s13, s%d, s%d" % (KA["B_v"] + 1, KA["A_v"] + 1))
        a.I("s_cselect_b32 %s, 2, 1" % sL)
        a.I("s_cselect_b32 %s, 1, 0" % sPar)
        a.I("s_cselect_b32 %s, 0x40000, 0" % sCSG)
        a.I("s_add_u32 %s, %s, 0x%x" % (sCSG, sCSG, CSBUF))
        a.I("s_mov_b32 s10, 0x2000000")
        a.I("s_mov_b32 s11, 0x00020000")
        a.I("s_mov_b32 s14, 0x2000000")
        a.I("s_mov_b32 s15, 0x00020000")
        a.I("s_lshl_b32 s56, %s, 3" % sB)
        a.I("s_add_u32 s56, s56, %s" % sG)
        a.I("s_lshl_b32 s56, s56, 20")
        a.I("s_lshl_b32 s57, %s, 15" % sS)
        a.I("s_add_u32 s56, s56, s57")
        a.I("s_lshl_b32 s57, %s, 13" % sW)
        a.I("s_add_u32 s56, s56, s57")
        a.I("s_add_u32 %s, s56, 0x%x" % (sKV, 3072 * 256))
        a.I("s_add_u32 %s, %s, 4096" % (sKV2, sKV))
        if o["kfix"]:
            a.I("v_and_b32 v16, 7, v2")
            a.I("v_lshlrev_b32 v16, 8, v16")
            a.I("v_lshl_add_u32 v16, v3, 4, v16")
            a.I("v_lshrrev_b32 v17, 3, v2")
            a.I("v_lshlrev_b32 v17, 6, v17")
            a.I("v_add_u32 %s, v16, v17" % vKA)
            a.I("v_sub_u32 %s, v16, v17" % vKB)
            a.I("v_add_u32 %s, 0x%x, %s" % (vKB, 2048 + 64, vKB))
        else:
            a.I("v_lshlrev_b32 v16, 8, v2")
            a.I("v_lshl_add_u32 %s, v3, 4, v16" % vKA)
        a.I("v_lshlrev_b32 v16, 4, v2")
        a.I("v_lshl_add_u32 %s, v3, 10, v16" % vV)

        a.I("s_lshl_b32 s56, %s, 16" % sG)
        a.I("s_lshl_b32 s57, %s, 14" % sW)
        a.I("s_add_u32 s56, s56, s57")
        a.I("s_lshl_b32 s57, %s, 9" % sI)
        a.I("s_add_u32 s56, s56, s57")
        a.I("s_add_u32 %s, s56, 0x%x" % (sOP, OBUF))
        a.I("v_lshlrev_b32 v16, 5, v2")
        a.I("v_lshl_add_u32 %s, v3, 3, v16" % vOP)
        a.I("s_lshl_b32 s56, %s, 10" % sG)
        a.I("s_lshl_b32 s57, %s, 8" % sW)
        a.I("s_add_u32 s56, s56, s57")
        a.I("s_lshl_b32 s57, %s, 6" % sB)
        a.I("s_add_u32 s56, s56, s57")
        a.I("s_and_b32 s57, %s, 3" % sS)
        a.I("s_lshl_b32 s57, s57, 4")
        a.I("s_add_u32 s56, s56, s57")
        a.I("s_lshr_b32 s57, %s, 2" % sS)
        a.I("s_lshl_b32 s57, s57, 3")
        a.I("s_add_u32 s56, s56, s57")
        a.I("s_add_u32 %s, s56, 0x%x" % (sMLP, MLBUF))
        a.I("v_and_b32 v16, 31, v1")
        a.I("v_lshlrev_b32 v16, 3, v16")
        a.I("v_lshrrev_b32 v17, 5, v1")
        a.I("v_lshl_add_u32 v16, v17, 2, v16")
        a.I("s_lshl_b32 s56, %s, 8" % sW)
        a.I("v_add_u32 %s, s56, v16" % vQLW)
        a.I("v_lshrrev_b32 v16, 2, v2")
        a.I("v_lshlrev_b32 v17, 4, v3")
        a.I("v_lshl_add_u32 %s, v16, 8, v17" % vQLR)
        a.I("v_lshlrev_b32 v17, 9, v3")
        a.I("v_lshl_add_u32 v17, v2, 2, v17")
        a.I("s_lshl_b32 s56, %s, 6" % sW)
        a.I("v_add_u32 %s, s56, v17" % vOLR)
        a.I("v_add_u32 %s, 0x%x, %s" % (vOLR, OL, vOLR))
        a.I("s_lshl_b32 s56, %s, 11" % sW)
        a.I("s_add_u32 s56, s56, 0x%x" % OL)
        a.I("v_add_u32 v5, s56, v5")
        a.I("v_lshlrev_b32 %s, 3, v2" % vSTG)
        a.I("v_lshlrev_b32 v16, 5, v16")
        a.I("s_lshl_b32 s56, %s, 3" % sW)
        a.I("v_add_u32 %s, s56, v16" % vMLW)
        a.I("v_mov_b32 v16, 0x%x" % OOB)
        a.I("v_cmp_eq_u32 vcc, 0, v1")
        a.I("v_cndmask_b32 %s, v16, v13, vcc" % vMLP)
        a.I("s_lshl_b32 s56, %s, 17" % sG)
        a.I("s_lshl_b32 s57, %s, 15" % sB)
        a.I("s_add_u32 s56, s56, s57")
        a.I("s_lshl_b32 s57, %s, 13" % sW)
        a.I("s_add_u32 %s, s56, s57" % sQG)
        a.I("s_add_u32 %s, %s, 4096" % (sQG2, sQG))
        a.I("s_lshl_b32 s56, %s, 15" % sG)
        a.I("s_add_u32 s56, s56, s57")
        a.I("s_add_u32 %s, %s, s56" % (sCSG, sCSG))
        a.I("s_lshl_b32 s56, %s, 9" % sG)
        a.I("s_lshl_b32 s57, %s, 7" % sB)
        a.I("s_add_u32 s56, s56, s57")
        a.I("s_add_u32 %s, s56, 0x%x" % (sSTG, STBUF))

        a.I("s_cmp_lg_u32 %s, 3" % sRole)
        a.I("s_cbranch_scc1 L_att_issue")
        a.I("v_mov_b32 v16, -1")
        a.I("v_mov_b32 v17, -1")
        a.I("buffer_store_dwordx2 v[16:17], %s, %s, %s offen sc1" % (vOP, SRD_WS, sOP))
        a.I("buffer_store_dwordx2 v[16:17], %s, %s, %s offen sc1" % (vMLP, SRD_WS, sMLP))
        a.I("v_mov_b32 v18, 1")
        a.I("s_waitcnt vmcnt(0)")
        a.I("s_mov_b64 exec, 1")
        a.I("ds_add_u32 v13, v18 offset:%d" % CLR)
        a.I("s_mov_b64 exec, -1")
        self.lds_wait_ge("v14", FISSA, "1", "v16", sleep=2)
        a.label("L_att_issue")
        self.ts(1)
        if o["kfix"]:
            for T in range(2):
                for hr in range(2):
                    so = sKV2 if T else sKV
                    a.I("buffer_load_dwordx4 %s, %s, %s, %s offen offset:%d nt" % (vr(K0 + (T * 4 + 2 * hr) * 4, 4), vKA, SRD_M0, so, hr * 128))
                    a.I("buffer_load_dwordx4 %s, %s, %s, %s offen offset:%d nt" % (vr(K0 + (T * 4 + 2 * hr + 1) * 4, 4), vKB, SRD_M0, so, hr * 128))
        else:
            for T in range(2):
                for s in range(4):
                    so = sKV2 if T else sKV
                    a.I("buffer_load_dwordx4 %s, %s, %s, %s offen offset:%d nt" % (vr(K0 + (T * 4 + s) * 4, 4), vKA, SRD_M0, so, s * 64))
        for i in range(8):
            so = sKV2 if i >= 4 else sKV
            a.I("buffer_load_dwordx4 %s, %s, %s, %s offen offset:%d nt" % (vr(G0 + 4 * i, 4), vV, SRD_M1, so, (i & 3) * 256))
        a.I("s_lshr_b32 s56, %s, 1" % sRole)
        a.I("s_lshl_b32 s56, s56, 4")
        a.I("v_add_u32 v16, s56, v14")
        a.I("v_mov_b32 v17, 1")
        a.I("ds_write_b32 v16, v17 offset:%d" % FISSA)
        self.ts(2)
        if o["kfix"]:
            a.I("s_waitcnt vmcnt(8)")
            for T in range(2):
                for hr in range(2):
                    ra = K0 + (T * 4 + 2 * hr) * 4
                    rb = ra + 4
                    for u in range(4):
                        t = S0 + u
                        a.I("v_mov_b32_dpp v%d, v%d row_ror:8 row_mask:0xf bank_mask:0x3" % (t, ra + u))
                        a.I("v_mov_b32_dpp v%d, v%d row_ror:8 row_mask:0xf bank_mask:0xc" % (t, rb + u))
                    for u in range(4):
                        a.I("v_mov_b32_dpp v%d, v%d quad_perm:[0,1,2,3] row_mask:0xf bank_mask:0xc" % (ra + u, rb + u))
                    for u in range(4):
                        a.I("v_mov_b32 v%d, v%d" % (rb + u, S0 + u))
        a.I("s_waitcnt vmcnt(0)")
        self.ts(3)
        self.transpose_x4(G0, V0)
        self.lds_wait_ge("v13", GO, "1", "v16", sleep=1)
        self.read_mode("v16")

        def gather_loads(s1, s2):
            return ["buffer_load_dwordx4 %s, v4, %s, %s offen offset:%d sc1" % (vr(G0 + 4 * r, 4), SRD_WS, s2 if r >= 4 else s1, (r & 3) * 1024) for r in range(8)]

        def reduce8(extra=None):
            extra = list(extra or [])

            def fill():
                if extra:
                    a.I(extra.pop(0))
            for st in (1, 2, 4):
                for r in range(0, 8, 2 * st):
                    for hlf in range(2):
                        x, y = G0 + 4 * r + 2 * hlf, G0 + 4 * (r + st) + 2 * hlf
                        a.I("v_pk_add_f32 %s, %s, %s" % (vr(x, 2), vr(x, 2), vr(y, 2)))
                    fill()
            while extra:
                fill()
            a.I("v_permlane32_swap_b32 v%d, v%d" % (G0, G0 + 2))
            a.I("v_permlane32_swap_b32 v%d, v%d" % (G0 + 1, G0 + 3))
            a.I("v_pk_add_f32 %s, %s, %s" % (vr(G0, 2), vr(G0, 2), vr(G0 + 2, 2)))

        a.I("s_add_u32 s56, %s, 4096" % sCSG)
        self.poll(gather_loads(sCSG, "s56"), ["v%d" % (G0 + 4 * r) for r in range(8)], "v0", "v1", "0")
        reduce8()
        a.I("v_mov_b32 v%d, v%d" % (CS, G0))
        a.I("v_mov_b32 v%d, v%d" % (CS + 1, G0 + 1))
        self.ts(4)

        a.label("L_att_loop")
        self.lds_wait_ge("v14", FQP, sL, "v0", sleep=1)
        ST = P0
        loads = gather_loads(sQG, sQG2) + ["buffer_load_dwordx2 %s, %s, %s, %s offen sc1" % (vr(ST, 2), vSTG, SRD_WS, sSTG)]
        self.poll(loads, ["v%d" % (G0 + 4 * r) for r in range(8)] + ["v%d" % ST, "v%d" % (ST + 1)], "v0", "v1", sPar)
        if o["ts"]:
            self.ts_layer(5)
        ex = []
        for rot in (8, 4, 2, 1):
            ex.append("v_add_f32_dpp v%d, v%d, v%d row_ror:%d row_mask:0xf bank_mask:0xf" % (ST, ST, ST, rot))
            ex.append("v_add_f32_dpp v%d, v%d, v%d row_ror:%d row_mask:0xf bank_mask:0xf" % (ST + 1, ST + 1, ST + 1, rot))
        ex.append("v_mul_f32 v%d, 0x%x, v%d" % (ST, f32bits(1.0 / 512), ST))
        ex.append("v_mul_f32 v%d, 0x%x, v%d" % (ST + 1, f32bits(1.0 / 512), ST + 1))
        ex.append("v_fma_f32 v%d, -v%d, v%d, v%d" % (ST + 1, ST, ST, ST + 1))
        ex.append("v_max_f32 v%d, 0, v%d" % (ST + 1, ST + 1))
        ex.append("v_add_f32 v%d, 0x%x, v%d" % (ST + 1, f32bits(1e-5), ST + 1))
        ex.append("v_rsq_f32 v%d, v%d" % (ST + 1, ST + 1))
        ex.append("v_mul_f32 v%d, 0x%x, v%d" % (ST + 1, f32bits(128 ** -0.5 * math.log2(math.e)), ST + 1))
        merged = ex
        extra = list(merged)

        def fill2():
            for _ in range(2):
                if extra:
                    a.I(extra.pop(0))
        for st in (1, 2, 4):
            for r in range(0, 8, 2 * st):
                for hlf in range(2):
                    x, y = G0 + 4 * r + 2 * hlf, G0 + 4 * (r + st) + 2 * hlf
                    a.I("v_pk_add_f32 %s, %s, %s" % (vr(x, 2), vr(x, 2), vr(y, 2)))
                fill2()
        while extra:
            fill2()
        a.I("v_permlane32_swap_b32 v%d, v%d" % (G0, G0 + 2))
        a.I("v_permlane32_swap_b32 v%d, v%d" % (G0 + 1, G0 + 3))
        a.I("v_pk_add_f32 %s, %s, %s" % (vr(G0, 2), vr(G0, 2), vr(G0 + 2, 2)))
        a.I("v_fma_f32 v%d, -v%d, v%d, v%d" % (G0, ST, CS, G0))
        a.I("v_fma_f32 v%d, -v%d, v%d, v%d" % (G0 + 1, ST, CS + 1, G0 + 1))
        a.I("v_mul_f32 v%d, v%d, v%d" % (G0, ST + 1, G0))
        a.I("v_mul_f32 v%d, v%d, v%d" % (G0 + 1, ST + 1, G0 + 1))
        a.I("v_cvt_pk_bf16_f32 v%d, v%d, v%d" % (G0, G0, G0 + 1))
        a.I("v_mov_b32 v0, %s" % sL)
        a.I("ds_write_b32 %s, v%d offset:%d" % (vQLW, G0, QL))
        self.flag_set("v14", FAQ, "v0")
        QO = G0
        FL = G0 + 16
        self.exchange("v13", FAQ, FL, ["ds_read_b128 %s, %s offset:%d" % (vr(QO + 4 * s, 4), vQLR, QL + 64 * s) for s in range(4)])
        for T in range(2):
            for s in range(4):
                a.I("v_mfma_f32_16x16x32_bf16 %s, %s, %s, %s" % (vr(S0 + 4 * T, 4), vr(K0 + (T * 4 + s) * 4, 4), vr(QO + 4 * s, 4), "0" if s == 0 else vr(S0 + 4 * T, 4)))
        a.I("v_max3_f32 v%d, v%d, v%d, v%d" % (M_, S0, S0 + 1, S0 + 2))
        a.I("v_max_f32 v%d, v%d, v%d" % (M_, M_, S0 + 3))
        a.I("v_max3_f32 v%d, v%d, v%d, v%d" % (M_, M_, S0 + 4, S0 + 5))
        a.I("v_max3_f32 v%d, v%d, v%d, v%d" % (M_, M_, S0 + 6, S0 + 7))
        a.I("v_mov_b32 v1, v%d" % M_)
        a.I("v_permlane32_swap_b32 v%d, v1" % M_)
        a.I("v_max_f32 v%d, v%d, v1" % (M_, M_))
        a.I("v_mov_b32 v1, v%d" % M_)
        a.I("v_permlane16_swap_b32 v%d, v1" % M_)
        a.I("v_max_f32 v%d, v%d, v1" % (M_, M_))
        for k in range(4):
            a.I("v_pk_add_f32 %s, %s, %s op_sel_hi:[1,0] neg_lo:[0,1] neg_hi:[0,1]" % (vr(S0 + 2 * k, 2), vr(S0 + 2 * k, 2), vr(M_, 2)))
        for k in range(8):
            a.I("v_exp_f32 v%d, v%d" % (S0 + k, S0 + k))
        for k in range(4):
            a.I("v_cvt_pk_bf16_f32 v%d, v%d, v%d" % (P0 + k, S0 + 2 * k, S0 + 2 * k + 1))
        lops = [
            "v_pk_add_f32 %s, %s, %s" % (vr(S0, 2), vr(S0, 2), vr(S0 + 2, 2)),
            "v_pk_add_f32 %s, %s, %s" % (vr(S0 + 4, 2), vr(S0 + 4, 2), vr(S0 + 6, 2)),
            "v_pk_add_f32 %s, %s, %s" % (vr(S0, 2), vr(S0, 2), vr(S0 + 4, 2)),
            "v_add_f32 v%d, v%d, v%d" % (L_, S0, S0 + 1),
            "v_mov_b32 v1, v%d" % L_,
            None,
            "v_permlane32_swap_b32 v%d, v1" % L_,
            "v_add_f32 v%d, v%d, v1" % (L_, L_),
            "v_mov_b32 v1, v%d" % L_,
            None,
            "v_permlane16_swap_b32 v%d, v1" % L_,
            "v_add_f32 v%d, v%d, v1" % (L_, L_),
            "ds_write_b64 %s, %s offset:%d" % (vMLW, vr(M_, 2), MLL),
        ]
        for j in range(8):
            a.I("v_mfma_f32_16x16x32_bf16 %s, %s, %s, 0" % (vr(G0 + 4 * j, 4), vr(P0, 4), vr(V0 + 4 * j, 4)))
            for _ in range(2):
                if lops:
                    x = lops.pop(0)
                    if x:
                        a.I(x)
        while lops:
            x = lops.pop(0)
            if x:
                a.I(x)
        for j in range(0, 8, 2):
            a.I("ds_write2st64_b32 v5, v%d, v%d offset0:%d offset1:%d" % (G0 + 4 * j, G0 + 4 * (j + 1), j, j + 1))
        self.flag_set("v14", FAO, "v0")
        OV = S0
        MLR = G0
        FL2 = G0 + 8
        reads = ["ds_read2st64_b32 %s, %s offset0:%d offset1:%d" % (vr(OV + 2 * k, 2), vOLR, 8 * k, 8 * k + 1) for k in range(4)]
        a.I("v_lshlrev_b32 v1, 3, v14")
        reads = ["ds_read_b128 %s, v1 offset:%d" % (vr(MLR, 4), MLL), "ds_read_b128 %s, v1 offset:%d" % (vr(MLR + 4, 4), MLL + 16)] + reads
        self.exchange("v13", FAO, FL2, reads)
        a.I("v_max3_f32 v%d, v%d, v%d, v%d" % (M_, MLR, MLR + 2, MLR + 4))
        a.I("v_max_f32 v%d, v%d, v%d" % (M_, M_, MLR + 6))
        for k in range(4):
            a.I("v_sub_f32 v%d, v%d, v%d" % (MLR + 2 * k, MLR + 2 * k, M_))
        for k in range(4):
            a.I("v_exp_f32 v%d, v%d" % (MLR + 2 * k, MLR + 2 * k))
        a.I("v_pk_mul_f32 %s, %s, %s op_sel_hi:[1,0]" % (vr(OV, 2), vr(OV, 2), vr(MLR, 2)))
        a.I("v_mul_f32 v%d, v%d, v%d" % (L_, MLR, MLR + 1))
        for k in range(1, 4):
            a.I("v_pk_fma_f32 %s, %s, %s, %s op_sel_hi:[1,0,1]" % (vr(OV, 2), vr(OV + 2 * k, 2), vr(MLR + 2 * k, 2), vr(OV, 2)))
            a.I("v_fmac_f32 v%d, v%d, v%d" % (L_, MLR + 2 * k, MLR + 2 * k + 1))
        a.I("v_bfi_b32 v%d, 1, %s, v%d" % (OV, sPar, OV))
        a.I("v_bfi_b32 v%d, 1, %s, v%d" % (L_, sPar, L_))
        self.moded_stores([
            "buffer_store_dwordx2 %s, %s, %s, %s offen" % (vr(OV, 2), vOP, SRD_WS, sOP),
            "buffer_store_dwordx2 %s, %s, %s, %s offen" % (vr(M_, 2), vMLP, SRD_WS, sMLP),
        ])
        self.flag_set("v14", FAP, "v0")
        if o["ts"]:
            self.ts_layer(6)
        a.I("s_add_u32 %s, %s, 2" % (sL, sL))
        a.I("s_cmp_le_u32 %s, 4" % sL)
        a.settle()
        a.I("s_cbranch_scc1 L_att_loop")
        a.I("s_branch L_end")

    def ts_layer(self, k, n=2, stride=2):
        a = self.a
        l1 = a.newlabel("LT")
        if n == 2:
            l0 = a.newlabel("LT")
            a.I("s_cmp_gt_u32 %s, 2" % sL)
            a.I("s_cbranch_scc1 %s" % l0)
            self.ts(k)
            a.I("s_branch %s" % l1)
            a.label(l0)
            self.ts(k + stride)
            a.label(l1)
        else:
            for v in range(1, n + 1):
                ln = a.newlabel("LT")
                a.I("s_cmp_lg_u32 %s, %d" % (sL, v))
                a.I("s_cbranch_scc1 %s" % ln)
                self.ts(k + stride * (v - 1))
                a.label(ln)

    def pq(self):
        a, o = self.a, self.o
        vWQ, vQP, vST, vXW, vXR, vX, vCSP = "v6", "v7", "v8", "v9", "v10", "v11", "v12"
        WC, WN, G0, XO_, FL, D0, DS, OQ, ON = 16, 32, 48, 64, 68, 72, 88, 92, 96
        sRB, sHP, sWQ, sQP, sCS, sST, sXG, sXpar = "s64", "s65", "s66", "s67", "s68", "s69", "s70", "s71"
        a.label("L_PQ")
        self.srd(SRD_M0, "A_wq", 4 << 20)
        self.srd(SRD_X, "A_x", 4096)
        a.I("s_and_b32 %s, %s, 15" % (sRB, sI))
        a.I("s_lshr_b32 %s, %s, 4" % (sHP, sI))
        a.I("s_lshl_b32 s56, %s, 18" % sRB)
        a.I("s_lshl_b32 s57, %s, 10" % sG)
        a.I("s_add_u32 s56, s56, s57")
        a.I("s_lshl_b32 s57, %s, 9" % sHP)
        a.I("s_add_u32 s56, s56, s57")
        a.I("s_lshl_b32 s57, %s, 7" % sW)
        a.I("s_add_u32 %s, s56, s57" % sWQ)
        a.I("v_lshlrev_b32 v16, 3, v2")
        a.I("v_lshl_add_u32 %s, v3, 16, v16" % vWQ)
        a.I("v_and_b32 v17, 7, v1")
        a.I("v_lshl_add_u32 v17, v17, 2, v3")
        a.I("v_lshlrev_b32 v17, 1, v17")
        a.I("s_lshl_b32 s56, %s, 10" % sW)
        a.I("s_lshl_b32 s57, %s, 6" % sRB)
        a.I("s_add_u32 s58, s56, s57")
        a.I("s_mov_b32 s59, %s" % sWQ)
        for i in range(8):
            a.I("buffer_load_dwordx2 %s, %s, %s, s59 offen nt" % (vr(G0 + 2 * i, 2), vWQ, SRD_M0))
            if i < 7:
                a.I("s_add_u32 s59, s59, 8192")
        a.I("buffer_load_ushort %s, v17, %s, s58 offen" % (vX, SRD_X))
        self.ts(1)
        a.I("s_lshl_b32 s56, %s, 6" % sW)
        a.I("v_add_u32 %s, s56, v17" % vXW)
        a.I("v_mov_b32 v15, v17")
        a.I("s_lshl_b32 s56, %s, 1" % sHP)
        a.I("s_lshr_b32 s57, %s, 1" % sW)
        a.I("s_add_u32 s56, s56, s57")
        a.I("s_lshl_b32 s56, s56, 13")
        a.I("s_lshl_b32 s57, %s, 9" % sRB)
        a.I("s_add_u32 s56, s56, s57")
        a.I("s_and_b32 s57, %s, 1" % sW)
        a.I("s_lshl_b32 s57, s57, 8")
        a.I("s_add_u32 s56, s56, s57")
        a.I("s_lshl_b32 s57, %s, 17" % sG)
        a.I("s_add_u32 %s, s56, s57" % sQP)
        a.I("s_lshl_b32 s57, %s, 15" % sG)
        a.I("s_add_u32 s56, s56, s57")
        a.I("s_add_u32 %s, s56, 0x%x" % (sCS, CSBUF))
        a.I("v_lshlrev_b32 v16, 4, v2")
        a.I("v_lshl_add_u32 %s, v3, 15, v16" % vQP)
        a.I("v_mov_b32 v18, 0x%x" % OOB)
        a.I("v_cmp_gt_u32 vcc, 16, v1")
        a.I("v_cndmask_b32 %s, v18, v16, vcc" % vCSP)
        a.I("v_lshlrev_b32 v16, 7, v3")
        a.I("v_lshlrev_b32 v17, 2, v3")
        a.I("v_add_u32 v19, 4, v16")
        a.I("v_cmp_eq_u32 vcc, v17, v2")
        a.I("v_cndmask_b32 %s, v18, v19, vcc" % vST)
        a.I("v_cmp_eq_u32 vcc, 1, v2")
        a.I("v_cndmask_b32 %s, %s, v16, vcc" % (vST, vST))
        a.I("s_or_b32 s56, %s, %s" % (sW, sHP))
        a.I("s_cmp_eq_u32 s56, 0")
        a.I("s_cselect_b32 s56, 0, 0x%x" % OOB)
        a.I("v_or_b32 %s, s56, %s" % (vST, vST))
        a.I("s_lshl_b32 s56, %s, 9" % sG)
        a.I("s_lshl_b32 s57, %s, 3" % sRB)
        a.I("s_add_u32 s56, s56, s57")
        a.I("s_add_u32 %s, s56, 0x%x" % (sST, STBUF))
        for k in range(4):
            a.I("v_mov_b32 v%d, -1" % (OQ + k))
        a.I("s_add_u32 s56, %s, 262144" % sCS)
        a.I("buffer_store_dwordx4 %s, %s, %s, %s offen sc1" % (vr(OQ, 4), vQP, SRD_WS, sQP))
        a.I("buffer_store_dwordx4 %s, %s, %s, %s offen sc1" % (vr(OQ, 4), vCSP, SRD_WS, sCS))
        a.I("buffer_store_dwordx4 %s, %s, %s, s56 offen sc1" % (vr(OQ, 4), vCSP, SRD_WS))
        a.I("buffer_store_dword v%d, %s, %s, %s offen sc1" % (OQ, vST, SRD_WS, sST))
        a.I("v_lshrrev_b32 v16, 2, v2")
        a.I("v_cmp_eq_u32 vcc, 1, v2")
        a.I("v_cndmask_b32 v16, v16, 4, vcc" if False else "v_mov_b32 v17, 4")
        a.I("v_cndmask_b32 v16, v16, v17, vcc")
        a.I("v_lshlrev_b32 v16, 6, v16")
        a.I("v_lshl_add_u32 %s, v3, 4, v16" % vXR)
        a.I("s_lshl_b32 s56, %s, 14" % sRB)
        a.I("s_lshl_b32 s57, %s, 12" % sW)
        a.I("s_add_u32 s56, s56, s57")
        a.I("s_add_u32 %s, s56, 0x%x" % (sXG, XBUF))
        for k in range(4):
            a.I("v_mov_b32 v%d, 0x3f803f80" % (ON + k))
        a.I("s_mov_b32 %s, 1" % sL)
        a.I("s_mov_b32 %s, 0" % sPar)
        self.srd(SRD_M1, "B_wq", 4 << 20)
        a.I("s_waitcnt vmcnt(4)")
        self.ts(2)
        self.transpose_x2(G0, WC)
        a.I("v_lshlrev_b32 %s, 16, %s" % (vX, vX))
        a.I("v_mov_b32 v0, 1")
        a.I("s_waitcnt vmcnt(0)")
        a.I("s_mov_b64 exec, 1")
        a.I("ds_add_u32 v13, v0 offset:%d" % CLR)
        a.I("s_mov_b64 exec, -1")
        a.I("s_branch L_pq_after")

        a.label("L_pq_loop")
        a.I("s_sub_u32 s56, %s, 1" % sL)
        self.lds_wait_ge("v13", FOP, "s56", "v0", sleep=1)
        a.I("s_and_b32 s57, s56, 1")
        a.I("s_lshl_b32 s57, s57, 18")
        a.I("s_add_u32 s57, s57, %s" % sXG)
        a.I("s_sub_u32 %s, %s, 2" % (sXpar, sL))
        a.I("s_lshr_b32 %s, %s, 1" % (sXpar, sXpar))
        loads = ["buffer_load_dwordx4 %s, v4, %s, s57 offen offset:%d sc1" % (vr(G0 + 4 * r, 4), SRD_WS, r * 1024) for r in range(4)]
        self.poll(loads, ["v%d" % (G0 + 4 * r) for r in range(4)], "v0", "v1", sXpar)
        if o["ts"]:
            self.ts_layer(3, n=5, stride=2)
        for hlf in range(2):
            a.I("v_pk_add_f32 %s, %s, %s" % (vr(G0 + 2 * hlf, 2), vr(G0 + 2 * hlf, 2), vr(G0 + 4 + 2 * hlf, 2)))
        for hlf in range(2):
            a.I("v_pk_add_f32 %s, %s, %s" % (vr(G0 + 8 + 2 * hlf, 2), vr(G0 + 8 + 2 * hlf, 2), vr(G0 + 12 + 2 * hlf, 2)))
        for hlf in range(2):
            a.I("v_pk_add_f32 %s, %s, %s" % (vr(G0 + 2 * hlf, 2), vr(G0 + 2 * hlf, 2), vr(G0 + 8 + 2 * hlf, 2)))
        a.I("v_permlane32_swap_b32 v%d, v%d" % (G0, G0 + 2))
        a.I("v_permlane32_swap_b32 v%d, v%d" % (G0 + 1, G0 + 3))
        a.I("v_pk_add_f32 %s, %s, %s" % (vr(G0, 2), vr(G0, 2), vr(G0 + 2, 2)))
        a.I("v_permlane16_swap_b32 v%d, v%d" % (G0, G0 + 1))
        a.I("v_add_f32 v%d, v%d, v%d" % (G0, G0, G0 + 1))
        a.I("v_add_f32 %s, %s, v%d" % (vX, vX, G0))
        a.I("v_add_f32_dpp %s, v%d, %s row_ror:8 row_mask:0xf bank_mask:0xf" % (vX, G0, vX))
        a.I("v_mov_b32 v0, %s" % sL)
        a.I("s_cmp_eq_u32 %s, 5" % sL)
        a.I("s_cbranch_scc1 L_pq_final")
        a.label("L_pq_after")
        a.I("v_cvt_pk_bf16_f32 v1, %s, %s" % (vX, vX))
        a.I("ds_write_b16 %s, v1 offset:%d" % (vXW, XL))
        self.flag_set("v14", FQX, "v0")
        self.exchange("v13", FQX, FL, ["ds_read_b128 %s, %s offset:%d" % (vr(XO_, 4), vXR, XL)])
        for j in range(4):
            a.I("v_mfma_f32_16x16x32_bf16 %s, %s, %s, 0" % (vr(D0 + 4 * j, 4), vr(XO_, 4), vr(WC + 4 * j, 4)))
        a.I("v_mfma_f32_16x16x32_bf16 %s, %s, %s, 0" % (vr(DS, 4), vr(XO_, 4), vr(XO_, 4)))
        a.I("v_bfi_b32 v%d, 1, %s, v%d" % (OQ, sPar, D0))
        for j in range(1, 4):
            a.I("v_mov_b32 v%d, v%d" % (OQ + j, D0 + 4 * j))
        a.I("v_bfi_b32 v%d, 1, %s, v%d" % (DS, sPar, DS))
        self.moded_stores([
            "buffer_store_dwordx4 %s, %s, %s, %s offen" % (vr(OQ, 4), vQP, SRD_WS, sQP),
            "buffer_store_dword v%d, %s, %s, %s offen" % (DS, vST, SRD_WS, sST),
        ])
        self.flag_set("v14", FQP, "v0")
        if o["ts"]:
            self.ts_layer(4, n=4, stride=2)

        def colsum_pass(soff):
            for j in range(4):
                a.I("v_mfma_f32_16x16x32_bf16 %s, %s, %s, 0" % (vr(D0 + 4 * j, 4), vr(ON, 4), vr(WC + 4 * j, 4)))
            a.I("v_and_b32 v%d, -2, v%d" % (XO_, D0))
            for j in range(1, 4):
                a.I("v_mov_b32 v%d, v%d" % (XO_ + j, D0 + 4 * j))
            a.I("buffer_store_dwordx4 %s, %s, %s, %s offen sc1" % (vr(XO_, 4), vCSP, SRD_WS, soff))

        a.I("s_cmp_lg_u32 %s, 1" % sL)
        a.I("s_cbranch_scc1 L_pq_swap")
        colsum_pass(sCS)
        a.label("L_pq_swap")
        for k in range(16):
            a.I("v_swap_b32 v%d, v%d" % (WC + k, WN + k))
        a.I("s_cmp_lg_u32 %s, 1" % sL)
        a.I("s_cbranch_scc1 L_pq_next")
        self.lds_wait_ge("v14", FISSA, "1", "v0", sleep=2)
        a.I("s_mov_b32 s59, %s" % sWQ)
        for i in range(8):
            a.I("buffer_load_dwordx2 %s, %s, %s, s59 offen nt" % (vr(G0 + 2 * i, 2), vWQ, SRD_M1))
            if i < 7:
                a.I("s_add_u32 s59, s59, 8192")
        a.I("s_waitcnt vmcnt(0)")
        self.transpose_x2(G0, WC)
        a.I("s_add_u32 s56, %s, 262144" % sCS)
        colsum_pass("s56")
        self.lds_wait_ge("v13", GO, "1", "v0", sleep=1)
        self.read_mode("v0")
        a.label("L_pq_next")
        a.I("s_add_u32 %s, %s, 1" % (sL, sL))
        a.I("s_xor_b32 %s, %s, 1" % (sPar, sPar))
        a.I("s_cmp_le_u32 %s, 4" % sL)
        a.settle()
        a.I("s_cbranch_scc1 L_pq_loop")
        a.I("s_or_b32 s56, %s, %s" % (sG, sHP))
        a.I("s_cmp_eq_u32 s56, 0")
        a.I("s_cbranch_scc1 L_pq_loop")
        a.I("s_branch L_end")
        a.label("L_pq_final")
        self.srd(SRD_X, "out", 4096)
        a.I("v_cvt_pk_bf16_f32 v1, %s, %s" % (vX, vX))
        a.I("buffer_store_short v1, v15, %s, s58 offen" % SRD_X)
        a.I("s_branch L_end")

    def po(self):
        a, o = self.a, self.o
        vWO, vOG, vMLG, vXP, vXOW = "v6", "v7", "v8", "v9", "v10"
        WC, WN, G0, ML, AO, D0, OQ, RD, FL, T0 = 16, 32, 48, 64, 68, 72, 88, 92, 104, 108
        sHH, sCB, sWO, sWO2, sOG, sMLG, sXP, sXpar = "s64", "s65", "s66", "s67", "s68", "s69", "s70", "s71"
        a.label("L_PO")
        self.srd(SRD_M0, "A_wo", 4 << 20)
        self.srd(SRD_M1, "B_wo", 4 << 20)
        self.srd(SRD_X, "dbg", 256)
        a.I("s_lshr_b32 %s, %s, 3" % (sHH, sI))
        a.I("s_and_b32 %s, %s, 7" % (sCB, sI))
        a.I("s_lshl_b32 s56, %s, 2" % sG)
        a.I("s_add_u32 s60, s56, %s" % sHH)
        a.I("s_lshl_b32 s56, s60, 17")
        a.I("s_lshl_b32 s57, %s, 15" % sW)
        a.I("s_add_u32 s56, s56, s57")
        a.I("s_lshl_b32 s57, %s, 7" % sCB)
        a.I("s_add_u32 %s, s56, s57" % sWO)
        a.I("s_add_u32 %s, %s, 16384" % (sWO2, sWO))
        a.I("v_lshlrev_b32 v16, 3, v2")
        a.I("v_lshl_add_u32 %s, v3, 12, v16" % vWO)
        a.I("v_lshrrev_b32 v16, 2, v2")
        a.I("v_and_b32 v17, 3, v2")
        a.I("v_lshl_add_u32 v16, v16, 3, v17")
        a.I("v_lshlrev_b32 v16, 9, v16")
        a.I("v_lshl_add_u32 %s, v3, 4, v16" % vOG)
        a.I("s_lshl_b32 s56, s60, 14")
        a.I("s_lshl_b32 s57, %s, 7" % sW)
        a.I("s_add_u32 s56, s56, s57")
        a.I("s_add_u32 %s, s56, 0x%x" % (sOG, OBUF))
        a.I("v_lshlrev_b32 %s, 4, v2" % vMLG)
        a.I("s_lshl_b32 s56, s60, 8")
        a.I("s_add_u32 %s, s56, 0x%x" % (sMLG, MLBUF))
        a.I("v_lshrrev_b32 v16, 3, v2")
        a.I("v_lshlrev_b32 v16, 14, v16")
        a.I("v_lshl_add_u32 v16, v3, 12, v16")
        a.I("v_and_b32 v17, 7, v2")
        a.I("v_lshl_add_u32 %s, v17, 4, v16" % vXP)
        a.I("s_lshl_b32 s56, %s, 15" % sCB)
        a.I("s_lshl_b32 s57, s60, 7")
        a.I("s_add_u32 s56, s56, s57")
        a.I("s_add_u32 %s, s56, 0x%x" % (sXP, XBUF))
        a.I("s_lshl_b32 s56, %s, 10" % sW)
        a.I("v_add_u32 %s, s56, v4" % vXOW)
        a.I("s_mov_b32 %s, 1" % sL)
        a.I("s_mov_b32 %s, 0" % sPar)
        a.I("v_mov_b32 v0, 1")
        a.I("s_cmp_lg_u32 %s, 0" % sW)
        a.I("s_cbranch_scc1 L_po_c1")
        for k in range(4):
            a.I("v_mov_b32 v%d, -1" % (OQ + k))
        a.I("s_add_u32 s56, %s, 262144" % sXP)
        a.I("buffer_store_dwordx4 %s, %s, %s, %s offen sc1" % (vr(OQ, 4), vXP, SRD_WS, sXP))
        a.I("buffer_store_dwordx4 %s, %s, %s, s56 offen sc1" % (vr(OQ, 4), vXP, SRD_WS))
        a.I("s_waitcnt vmcnt(0)")
        a.I("s_mov_b64 exec, 1")
        a.I("ds_add_u32 v13, v0 offset:%d" % CLR)
        a.I("s_mov_b64 exec, -1")
        a.label("L_po_c1")
        a.I("s_cmp_lg_u32 %s, 1" % sW)
        a.I("s_cbranch_scc1 L_po_c2")
        a.I("s_getreg_b32 s56, hwreg(HW_REG_XCC_ID)")
        a.I("s_and_b32 s56, s56, 15")
        a.I("s_or_b32 s56, s56, 0x80")
        a.I("v_mov_b32 v16, s56")
        a.I("s_mul_i32 s61, s56, 0x01010101")
        a.I("s_lshl_b32 s57, %s, 5" % sG)
        a.I("s_add_u32 s57, s57, %s" % sI)
        self.lds_wait_ge("v13", CLR, "9", "v17", sleep=1)
        self.ts(1)
        a.I("s_mov_b64 exec, 1")
        a.I("buffer_store_byte v16, v13, %s, s57 offen sc1" % SRD_X)
        a.I("s_mov_b64 exec, -1")
        a.I("s_mov_b32 s56, 0x80808080")
        a.label("L_po_fp")
        a.I("buffer_load_dword v16, v5, %s, 0 offen sc1" % SRD_X)
        a.I("s_waitcnt vmcnt(0)")
        a.I("v_and_b32 v17, s56, v16")
        a.I("v_cmp_ne_u32 vcc, s56, v17")
        a.I("s_cbranch_vccz L_po_fd")
        a.I("s_sleep 2")
        a.I("s_sub_u32 %s, %s, 1" % (sBud, sBud))
        a.I("s_cbranch_scc0 L_po_fp")
        a.I("s_branch L_end")
        a.label("L_po_fd")
        self.ts(2)
        a.I("v_lshrrev_b32 v17, 3, v1")
        a.I("v_cmp_eq_u32 vcc, %s, v17" % sG)
        a.I("s_mov_b64 s[62:63], vcc")
        a.I("v_cmp_ne_u32 vcc, s61, v16")
        a.I("s_and_b64 s[62:63], s[62:63], vcc")
        a.I("s_cselect_b32 s56, 1, 3")
        a.I("v_mov_b32 v16, s56")
        a.I("ds_write_b32 v13, v16 offset:%d" % GO)
        a.label("L_po_c2")

        def load_wo(srd):
            for e in range(8):
                a.I("buffer_load_dwordx2 %s, %s, %s, %s offen offset:%d nt" % (vr(G0 + 2 * e, 2), vWO, srd, sWO2 if e >= 4 else sWO, (e & 3) * 1024))
            a.I("s_waitcnt vmcnt(0)")
            self.transpose_x2(G0, WC)

        self.lds_wait_ge("v14", FISSA, "1", "v16", sleep=2)
        load_wo(SRD_M0)
        self.ts(3)

        a.label("L_po_loop")
        self.lds_wait_ge("v14", FAP, sL, "v1", sleep=1)
        loads = []
        for shi in range(2):
            for hf in range(2):
                loads.append("buffer_load_dwordx4 %s, %s, %s, %s offen offset:%d sc1" % (vr(G0 + (shi * 2 + hf) * 4, 4), vOG, SRD_WS, sOG, shi * 2048 + hf * 64))
        loads.append("buffer_load_dwordx4 %s, %s, %s, %s offen sc1" % (vr(ML, 4), vMLG, SRD_WS, sMLG))
        tags = []
        for q in range(4):
            tags += ["v%d" % (G0 + 4 * q), "v%d" % (G0 + 4 * q + 2)]
        tags += ["v%d" % (ML + 1), "v%d" % (ML + 3)]
        self.poll(loads, tags, "v1", "v2", sPar)
        if o["ts"]:
            self.ts_layer(4, n=4, stride=2)
        F = T0
        a.I("v_max_f32 v1, v%d, v%d" % (ML, ML + 2))
        a.I("v_max_f32_dpp v1, v1, v1 quad_perm:[1,0,3,2] row_mask:0xf bank_mask:0xf")
        a.I("v_max_f32_dpp v1, v1, v1 quad_perm:[2,3,0,1] row_mask:0xf bank_mask:0xf")
        a.I("v_sub_f32 v%d, v%d, v1" % (F, ML))
        a.I("v_sub_f32 v%d, v%d, v1" % (F + 1, ML + 2))
        a.I("v_exp_f32 v%d, v%d" % (F, F))
        a.I("v_exp_f32 v%d, v%d" % (F + 1, F + 1))
        a.I("v_mul_f32 v1, v%d, v%d" % (F, ML + 1))
        a.I("v_fmac_f32 v1, v%d, v%d" % (F + 1, ML + 3))
        for p in range(2):
            a.I("v_pk_mul_f32 %s, %s, %s op_sel_hi:[1,0]" % (vr(G0 + 2 * p, 2), vr(G0 + 2 * p, 2), vr(F, 2)))
        a.I("v_add_f32_dpp v1, v1, v1 quad_perm:[1,0,3,2] row_mask:0xf bank_mask:0xf")
        for p in range(2, 4):
            a.I("v_pk_mul_f32 %s, %s, %s op_sel_hi:[1,0]" % (vr(G0 + 2 * p, 2), vr(G0 + 2 * p, 2), vr(F, 2)))
        a.I("v_add_f32_dpp v1, v1, v1 quad_perm:[2,3,0,1] row_mask:0xf bank_mask:0xf")
        for p in range(2):
            a.I("v_pk_fma_f32 %s, %s, %s, %s op_sel:[0,1,0] op_sel_hi:[1,1,1]" % (vr(G0 + 2 * p, 2), vr(G0 + 8 + 2 * p, 2), vr(F, 2), vr(G0 + 2 * p, 2)))
        a.I("v_rcp_f32 v2, v1")
        for p in range(2, 4):
            a.I("v_pk_fma_f32 %s, %s, %s, %s op_sel:[0,1,0] op_sel_hi:[1,1,1]" % (vr(G0 + 2 * p, 2), vr(G0 + 8 + 2 * p, 2), vr(F, 2), vr(G0 + 2 * p, 2)))
        for p in range(4):
            a.I("v_pk_mul_f32 %s, %s, v[2:3] op_sel_hi:[1,0]" % (vr(G0 + 2 * p, 2), vr(G0 + 2 * p, 2)))
        for p in range(4):
            a.I("v_cvt_pk_bf16_f32 v%d, v%d, v%d" % (AO + p, G0 + 2 * p, G0 + 2 * p + 1))
        for j in range(4):
            a.I("v_mfma_f32_16x16x32_bf16 %s, %s, %s, 0" % (vr(D0 + 4 * j, 4), vr(AO, 4), vr(WC + 4 * j, 4)))
        a.I("v_mov_b32 v0, %s" % sL)
        a.I("s_and_b32 s57, %s, 1" % sL)
        a.I("s_lshl_b32 s57, s57, 18")
        a.I("s_add_u32 s57, s57, %s" % sXP)
        a.I("s_sub_u32 %s, %s, 1" % (sXpar, sL))
        a.I("s_lshr_b32 %s, %s, 1" % (sXpar, sXpar))
        for j in range(4):
            a.I("v_pk_add_f32 %s, %s, %s" % (vr(D0 + 4 * j, 2), vr(D0 + 4 * j, 2), vr(D0 + 4 * j + 2, 2)))
        for j in range(4):
            a.I("v_add_f32 v%d, v%d, v%d" % (OQ + j, D0 + 4 * j, D0 + 4 * j + 1))
        a.I("s_cmp_eq_u32 %s, 0" % sW)
        a.I("s_cbranch_scc1 L_po_w0")
        a.I("ds_write_b128 %s, %s offset:%d" % (vXOW, vr(OQ, 4), XO))
        self.flag_set("v14", FOX, "v0")
        a.I("s_branch L_po_swap")
        a.label("L_po_w0")
        self.exchange("v13", FOX, FL, ["ds_read_b128 %s, v4 offset:%d" % (vr(RD + 4 * k, 4), XO + 1024 * (k + 1)) for k in range(3)], nflags=3)
        for hlf in range(2):
            a.I("v_pk_add_f32 %s, %s, %s" % (vr(OQ + 2 * hlf, 2), vr(OQ + 2 * hlf, 2), vr(RD + 2 * hlf, 2)))
        for hlf in range(2):
            a.I("v_pk_add_f32 %s, %s, %s" % (vr(RD + 4 + 2 * hlf, 2), vr(RD + 4 + 2 * hlf, 2), vr(RD + 8 + 2 * hlf, 2)))
        for hlf in range(2):
            a.I("v_pk_add_f32 %s, %s, %s" % (vr(OQ + 2 * hlf, 2), vr(OQ + 2 * hlf, 2), vr(RD + 4 + 2 * hlf, 2)))
        a.I("v_bfi_b32 v%d, 1, %s, v%d" % (OQ, sXpar, OQ))
        a.I("buffer_store_dwordx4 %s, %s, %s, s57 offen sc1" % (vr(OQ, 4), vXP, SRD_WS))
        self.flag_set("v13", FOP, "v0")
        a.label("L_po_swap")
        if o["ts"]:
            self.ts_layer(5, n=4, stride=2)
        for k in range(16):
            a.I("v_swap_b32 v%d, v%d" % (WC + k, WN + k))
        a.I("s_cmp_lg_u32 %s, 1" % sL)
        a.I("s_cbranch_scc1 L_po_next")
        self.lds_wait_ge("v14", FISSB, "1", "v1", sleep=2)
        load_wo(SRD_M1)
        a.label("L_po_next")
        a.I("s_add_u32 %s, %s, 1" % (sL, sL))
        a.I("s_xor_b32 %s, %s, 1" % (sPar, sPar))
        a.I("s_cmp_le_u32 %s, 4" % sL)
        a.settle()
        a.I("s_cbranch_scc1 L_po_loop")
        a.I("s_branch L_end")

    def epilogue(self):
        a = self.a
        a.label("L_end")
        if self.o["ts"]:
            a.I("s_memtime s[16:17]")
            a.I("s_memrealtime s[18:19]")
            a.I("s_mov_b64 exec, 1")
            a.I("s_lshl_b32 s56, s2, 4")
            a.I("s_lshl_b32 s57, %s, 2" % sRole)
            a.I("s_add_u32 s56, s56, s57")
            a.I("s_add_u32 s56, s56, %s" % sW)
            a.I("s_lshl_b32 s56, s56, 7")
            a.I("s_add_u32 s56, s56, 0x%x" % TSBUF)
            a.I("s_waitcnt lgkmcnt(0) vmcnt(0)")
            for k in range(NTS + 2):
                sr = TS0 + 2 * k if k < NTS else 16 + 2 * (k - NTS)
                a.I("v_mov_b32 v16, s%d" % sr)
                a.I("v_mov_b32 v17, s%d" % (sr + 1))
                a.I("buffer_store_dwordx2 v[16:17], v13, %s, s56 offen offset:%d" % (SRD_WS, 8 * k))
                a.I("s_nop 1")
        a.label("L_exit")
        a.I("s_endpgm")

    def build(self):
        a = self.a
        if self.o["ts"]:
            for k in range(2 * NTS):
                a.I("s_mov_b32 s%d, 0" % (TS0 + k))
        self.prologue()
        self.att()
        self.pq()
        self.po()
        self.epilogue()
        ref = open("cdna_kernels/%s.s.ref" % NAME).read().splitlines()
        head = [l for l in ref if l.startswith(";") and "@launch" not in l]
        assert a.maxv <= 128, a.maxv
        out = "\n".join(head) + "\n"
        out += "; @launch grid=(256,1,1) block=(1024,1,1) lds=%d\n" % LDS_BYTES
        out += '.amdgcn_target "amdgcn-amd-amdhsa--gfx950"\n.text\n.globl %s_kernel\n.p2align 8\n.type %s_kernel,@function\n%s_kernel:\n' % (NAME, NAME, NAME)
        out += a.text()
        out += '.section .rodata,"a"\n.p2align 6\n.amdhsa_kernel %s_kernel\n' % NAME
        out += "  .amdhsa_next_free_vgpr 128\n  .amdhsa_next_free_sgpr 102\n  .amdhsa_accum_offset 128\n"
        out += "  .amdhsa_group_segment_fixed_size 0\n  .amdhsa_kernarg_size 104\n  .amdhsa_user_sgpr_count 2\n"
        out += "  .amdhsa_user_sgpr_kernarg_segment_ptr 1\n  .amdhsa_system_sgpr_workgroup_id_x 1\n.end_amdhsa_kernel\n"
        return out


if __name__ == "__main__":
    opts = {}
    outp = "cdna_kernels/%s.s" % NAME
    for arg in sys.argv[1:]:
        if arg.startswith("-o"):
            outp = arg[2:]
        else:
            k, v = arg.split("=")
            opts[k] = int(v, 0)
    open(outp, "w").write(Gen(**opts).build())
    print("wrote", outp)
```

```python
import sys, os, math, struct
sys.path.insert(0, os.path.dirname(os.path.abspath(__file__)))
from asmlib import Asm

NAME = "interleave_layers__sliding_block_cached__sliding_block_cached__decode"

DEFAULTS = dict(
    ts=0,
    kfix=1,
    fast=1,
    dq=0, do=0, dx=8,
    depth=4,
    prio=1,
    gsleep=1,
    pq_=0, po_=0, px_=0, pgap=1,
    fdelay=6,
    x_nopq=0, x_nopo=0, x_nob=0, clr=0, clrx=0,
)

QBUF = 0x000000
OBUF = 0x040000
XBUF = 0x080000
SBUF = 0x100000
MLBUF, CSBUF, STBUF = SBUF, SBUF + 0x2000, SBUF + 0x6000
PFLAGS = 0x1C0000
FLAGS2 = 0x1D0000
FLAGS = 0x1E0000
EPOCH = 0x1F0000
TSBUF = 0x300000
WS_BYTES = 0x400000
OOB = 0x40000000

FQX, FQP, FAQ, FAO, FAP, FOX, FOP, FISSA, FISSB, GO, FWX, GOX = (
    0x00, 0x10, 0x20, 0x30, 0x40, 0x50, 0x60, 0x70, 0x80, 0x94, 0xA0, 0x98)
MLL = 0x280
QL = 0x300
OL = 0x800
OL2 = 0x2800
XL = 0x3800
SELL = 0x3C00
WX = 0x4000
LDS_BYTES = 32768

SRD_WS, SRD_M0, SRD_M1, SRD_X = "s[4:7]", "s[8:11]", "s[12:15]", "s[44:47]"
sW, sRole, sG, sI, sL, sPar, sBud, sSelLo, sSelHi, sMode = (
    "s42", "s43", "s48", "s49", "s50", "s51", "s52", "s53", "s54", "s55")
KA = dict(A_x=16, A_k=18, A_v=20, A_wq=22, A_wo=24, B_x=26, B_k=28, B_v=30, B_wq=32, B_wo=34,
          out=36, dbg=38, ws=40)
MASK0 = 20
TS0 = 76
NTS = 13


def f32bits(x):
    return struct.unpack("<I", struct.pack("<f", x))[0]


def vr(a, n):
    return "v[%d:%d]" % (a, a + n - 1)


class Gen:
    def __init__(self, **opt):
        self.o = dict(DEFAULTS)
        self.o.update(opt)
        self.a = Asm()

    def ts(self, k):
        if self.o["ts"]:
            assert k < 12
            if k == 0:
                self.a.I("s_memrealtime s[%d:%d]" % (TS0, TS0 + 1))
                self.a.I("s_memtime s[%d:%d]" % (TS0 + 24, TS0 + 25))
            else:
                self.a.I("s_memtime s[%d:%d]" % (TS0 + 2 * k, TS0 + 2 * k + 1))

    def ts_layer(self, k, n=2, stride=2):
        a = self.a
        if not self.o["ts"]:
            return
        l1 = a.newlabel("LT")
        if n == 2:
            l0 = a.newlabel("LT")
            a.I("s_cmp_gt_u32 %s, 2" % sL)
            a.I("s_cbranch_scc1 %s" % l0)
            self.ts(k)
            a.I("s_branch %s" % l1)
            a.label(l0)
            self.ts(k + stride)
            a.label(l1)
        else:
            for v in range(1, n + 1):
                ln = a.newlabel("LT")
                a.I("s_cmp_lg_u32 %s, %d" % (sL, v))
                a.I("s_cbranch_scc1 %s" % ln)
                self.ts(k + stride * (v - 1))
                a.label(ln)

    def srd(self, srd, ptr, nbytes):
        a = self.a
        b = int(srd[2:srd.index(":")])
        a.I("s_mov_b32 s%d, s%d" % (b, KA[ptr]))
        a.I("s_mov_b32 s%d, s%d" % (b + 1, KA[ptr] + 1))
        a.I("s_mov_b32 s%d, 0x%x" % (b + 2, nbytes))
        a.I("s_mov_b32 s%d, 0x00020000" % (b + 3))

    def sacc(self, dst, terms, const=0):
        a = self.a
        first = True
        for reg, sh in terms:
            tgt = "s56" if first else "s57"
            if sh:
                a.I("s_lshl_b32 %s, %s, %d" % (tgt, reg, sh))
            else:
                a.I("s_mov_b32 %s, %s" % (tgt, reg))
            if not first:
                a.I("s_add_u32 s56, s56, s57")
            first = False
        a.I("s_add_u32 %s, s56, 0x%x" % (dst, const))

    def prio(self, p):
        if self.o["prio"]:
            self.a.I("s_setprio %d" % p)

    def bail(self, back):
        a = self.a
        a.I("s_sub_u32 %s, %s, 1" % (sBud, sBud))
        a.I("s_cbranch_scc0 %s" % back)
        a.I("s_branch L_end")

    def lds_wait_ge(self, vaddr, off, sval, vt, sleep=1):
        a = self.a
        l0, l1 = a.newlabel("LW"), a.newlabel("LWD")
        a.label(l0)
        a.I("ds_read_b32 %s, %s offset:%d" % (vt, vaddr, off))
        a.I("s_waitcnt lgkmcnt(0)")
        a.I("v_cmp_gt_u32 vcc, %s, %s" % (sval, vt))
        a.I("s_cbranch_vccz %s" % l1)
        if sleep:
            a.I("s_sleep %d" % sleep)
        self.bail(l0)
        a.label(l1)

    def tagtree(self, regs, vt, vt2, par):
        a = self.a
        regs = list(regs)
        n = len(regs)
        if n == 1:
            a.I("v_bitop3_b32 %s, %s, %s, 1 bitop3:0x28" % (vt, regs[0], par))
            return
        if n < 4:
            a.I("v_bitop3_b32 %s, %s, %s, %s bitop3:0x7e" % (vt, regs[0], regs[1], par))
            for x in regs[2:]:
                a.I("v_bitop3_b32 %s, %s, %s, %s bitop3:0xf6" % (vt, vt, x, par))
            a.I("v_and_b32 %s, 1, %s" % (vt, vt))
            return
        h = n // 2
        A, B = regs[:h], regs[h:]
        a.I("v_bitop3_b32 %s, %s, %s, %s bitop3:0x7e" % (vt, A[0], A[1], par))
        a.I("v_bitop3_b32 %s, %s, %s, %s bitop3:0x7e" % (vt2, B[0], B[1], par))
        A, B = A[2:], B[2:]
        for i in range(max(len(A), len(B))):
            if i < len(A):
                a.I("v_bitop3_b32 %s, %s, %s, %s bitop3:0xf6" % (vt, vt, A[i], par))
            if i < len(B):
                a.I("v_bitop3_b32 %s, %s, %s, %s bitop3:0xf6" % (vt2, vt2, B[i], par))
        a.I("v_bitop3_b32 %s, %s, %s, 1 bitop3:0xa8" % (vt, vt, vt2))

    def poll(self, loads, vt, vt2, par, dbg=False, pipe=0):
        a = self.a
        l0, ldone = a.newlabel("LP"), a.newlabel("LPD")
        dbg = dbg and self.o["ts"] == 3
        if dbg:
            self.ts(1)
            self.ts(2)
            a.I("s_mov_b32 s%d, 999" % (TS0 + 6))
            a.I("s_mov_b32 s%d, 0" % (TS0 + 7))
        for _ in range(pipe):
            for ld, _t in loads:
                a.I(ld)
            if self.o["pgap"]:
                a.I("s_sleep %d" % self.o["pgap"])
        a.label(l0)
        if dbg:
            a.I("s_add_u32 s%d, s%d, 1" % (TS0 + 6, TS0 + 6))
        for ld, _ in loads:
            a.I(ld)
        a.I("s_waitcnt vmcnt(%d)" % (pipe * len(loads)))
        self.tagtree([t for _, tg in loads for t in tg], vt, vt2, par)
        a.I("v_cmp_ne_u32 vcc, 0, %s" % vt)
        a.I("s_and_b64 exec, exec, vcc")
        a.I("s_cbranch_scc0 %s" % ldone)
        self.bail(l0)
        a.label(ldone)
        a.I("s_mov_b64 exec, -1")

    def exchange(self, flagoff, vf, reads, nflags=4, sval=None):
        a = self.a
        l0, l1 = a.newlabel("LX"), a.newlabel("LXD")
        a.label(l0)
        a.I("ds_read_b128 %s, v13 offset:%d" % (vr(vf, 4), flagoff))
        for r in reads:
            a.I(r)
        if self.o["ts"]:
            a.I("s_waitcnt lgkmcnt(0)")
        else:
            a.I("s_waitcnt lgkmcnt(%d)" % len(reads))
        if nflags == 4:
            a.I("v_min3_u32 v%d, v%d, v%d, v%d" % (vf, vf, vf + 1, vf + 2))
            a.I("v_min_u32 v%d, v%d, v%d" % (vf, vf, vf + 3))
        else:
            a.I("v_min3_u32 v%d, v%d, v%d, v%d" % (vf, vf + 1, vf + 2, vf + 3))
        a.I("v_cmp_gt_u32 vcc, %s, v%d" % (sval or sL, vf))
        a.I("s_cbranch_vccz %s" % l1)
        self.bail(l0)
        a.label(l1)
        a.I("s_waitcnt lgkmcnt(0)")

    def flag_set(self, vaddr, off, vval):
        self.a.I("ds_write_b32 %s, %s offset:%d" % (vaddr, vval, off))

    def moded_stores(self, stores):
        a = self.a
        if not self.o["fast"]:
            for s in stores:
                a.I(s + " sc1")
            return
        l0, l1 = a.newlabel("LS"), a.newlabel("LSD")
        a.I("s_cmp_eq_u32 %s, 0" % sMode)
        a.I("s_cbranch_scc1 %s" % l0)
        h = [dict(x) for x in a.hist]
        for s in stores:
            a.I(s)
        a.I("s_branch %s" % l1)
        a.label(l0)
        a.hist = h
        for s in stores:
            a.I(s + " sc1")
        a.label(l1)

    def transpose(self, stg, dst, ndw):
        a = self.a
        for j in range(2 * ndw):
            u = j >> 1
            sel = sSelHi if (j & 1) else sSelLo
            for t in range(4):
                a.I("v_perm_b32 v%d, v%d, v%d, %s" % (dst + 4 * j + t, stg + ndw * (2 * t + 1) + u, stg + ndw * (2 * t) + u, sel))

    def wait_go(self, vt):
        a = self.a
        self.lds_wait_ge("v13", GO, "1", vt, sleep=1)
        a.I("v_readfirstlane_b32 %s, %s" % (sMode, vt))
        a.I("s_lshr_b32 %s, %s, 1" % (sMode, sMode))

    def prologue(self):
        a = self.a
        a.I("s_cmp_ge_u32 s2, 256")
        a.I("s_cbranch_scc1 L_exit")
        a.I("s_load_dwordx16 s[16:31], s[0:1], 0")
        a.I("s_load_dwordx8 s[32:39], s[0:1], 64")
        a.I("s_load_dwordx2 s[40:41], s[0:1], 96")
        self.ts(0)
        a.I("v_and_b32 v1, 63, v0")
        a.I("v_lshrrev_b32 v2, 6, v0")
        a.I("v_mov_b32 v13, 0")
        a.I("v_readfirstlane_b32 s3, v2")
        a.I("v_lshlrev_b32 v5, 2, v1")
        a.I("v_lshlrev_b32 v4, 4, v1")
        a.I("v_and_b32 v2, 15, v1")
        a.I("v_lshrrev_b32 v3, 4, v1")
        a.I("s_and_b32 %s, s3, 3" % sW)
        a.I("s_lshr_b32 %s, s3, 2" % sRole)
        a.I("s_and_b32 %s, s2, 7" % sG)
        a.I("s_lshr_b32 %s, s2, 3" % sI)
        a.I("s_mov_b32 %s, 0x%x" % (sBud, 0x400 if (self.o["ts"] == 4 or self.o["x_nopq"] or self.o["x_nopo"] or self.o["x_nob"]) else 0x10000))
        a.I("s_mov_b32 %s, 0x05040100" % sSelLo)
        a.I("s_mov_b32 %s, 0x07060302" % sSelHi)
        a.I("s_mov_b32 %s, 0" % sMode)
        a.I("s_lshl_b32 s56, %s, 2" % sW)
        a.I("v_mov_b32 v14, s56")
        a.I("s_cmp_lg_u32 s3, 15")
        a.I("s_cbranch_scc1 L_noinit")
        a.I("ds_write_b32 v5, v13")
        a.I("v_mov_b32 v6, 0x3f803f80")
        a.I("v_and_b32 v7, 0x7c, v5")
        a.I("ds_write_b32 v7, v6 offset:%d" % (XL + 4 * 128))
        a.I("v_and_b32 v6, 1, v1")
        a.I("v_lshlrev_b32 v6, 4, v6")
        a.I("v_mov_b32 v7, 0x3f80")
        a.I("v_lshlrev_b32 v6, v6, v7")
        a.I("v_bfe_u32 v7, v1, 1, 2")
        for t in range(4):
            a.I("v_cmp_eq_u32 vcc, %d, v7" % t)
            a.I("v_cndmask_b32 v%d, v13, v6, vcc" % (8 + t))
        a.I("ds_write_b128 v4, v[8:11] offset:%d" % SELL)
        a.label("L_noinit")
        a.I("s_waitcnt lgkmcnt(0)")
        self.srd(SRD_WS, "ws", WS_BYTES)
        a.I("s_cmp_eq_u32 %s, 0" % sRole)
        a.I("s_cbranch_scc1 L_PQ")
        a.I("s_cmp_eq_u32 %s, 2" % sRole)
        a.I("s_cbranch_scc1 L_PO")

    def att(self):
        a, o = self.a, self.o
        vKA, vKB, vV, vQLW, vQLR, vOLR, vOP, vSTG, vMLP, vMLW = "v6", "v7", "v8", "v9", "v10", "v11", "v5", "v15", "v2", "v3"
        TM = 12
        CSa, CSb = 6, 16
        vMLR = "v8"
        M_, L_ = 18, 19
        K0, V0, G0, P0, S0 = 20, 52, 84, 116, 120
        sKV, sQG, sCSG, sSTG, sOP, sMLP, sB, sS, sKV2 = "s64", "s65", "s66", "s67", "s68", "s69", "s70", "s71", "s72"
        a.label("L_ATT")
        a.I("s_lshr_b32 %s, %s, 3" % (sB, sI))
        a.I("s_and_b32 %s, %s, 7" % (sS, sI))
        a.I("s_cmp_eq_u32 %s, 3" % sRole)
        a.I("s_cselect_b32 s8, s%d, s%d" % (KA["B_k"], KA["A_k"]))
        a.I("s_cselect_b32 s9, s%d, s%d" % (KA["B_k"] + 1, KA["A_k"] + 1))
        a.I("s_cselect_b32 s12, s%d, s%d" % (KA["B_v"], KA["A_v"]))
        a.I("s_cselect_b32 s13, s%d, s%d" % (KA["B_v"] + 1, KA["A_v"] + 1))
        a.I("s_cselect_b32 %s, 2, 1" % sL)
        a.I("s_cselect_b32 %s, 1, 0" % sPar)
        a.I("s_mov_b32 s10, 0x2000000")
        a.I("s_mov_b32 s11, 0x00020000")
        a.I("s_mov_b32 s14, 0x2000000")
        a.I("s_mov_b32 s15, 0x00020000")
        self.sacc(sKV, [(sB, 23), (sG, 20), (sS, 15), (sW, 13)], 3072 * 256)
        a.I("s_add_u32 %s, %s, 4096" % (sKV2, sKV))
        if o["kfix"]:
            a.I("v_and_b32 v16, 7, v2")
            a.I("v_lshlrev_b32 v16, 8, v16")
            a.I("v_lshl_add_u32 v16, v3, 4, v16")
            a.I("v_lshrrev_b32 v17, 3, v2")
            a.I("v_lshlrev_b32 v17, 6, v17")
            a.I("v_add_u32 %s, v16, v17" % vKA)
            a.I("v_sub_u32 %s, v16, v17" % vKB)
            a.I("v_add_u32 %s, 0x%x, %s" % (vKB, 2048 + 64, vKB))
        else:
            a.I("v_lshlrev_b32 v16, 8, v2")
            a.I("v_lshl_add_u32 %s, v3, 4, v16" % vKA)
        a.I("v_lshlrev_b32 v16, 4, v2")
        a.I("v_lshl_add_u32 %s, v3, 10, v16" % vV)
        a.I("s_cmp_lg_u32 %s, 3" % sRole)
        a.I("s_cbranch_scc1 L_att_issue")
        a.I("s_barrier")
        if o["x_nob"]:
            a.I("s_branch L_end")
        self.lds_wait_ge("v14", FISSA, "1", "v16", sleep=2)
        a.label("L_att_issue")
        self.ts(1)
        lds_ = []
        if o["kfix"]:
            for T in range(2):
                for hr in range(2):
                    so = sKV2 if T else sKV
                    lds_.append("buffer_load_dwordx4 %s, %s, %s, %s offen offset:%d nt" % (vr(K0 + (T * 4 + 2 * hr) * 4, 4), vKA, SRD_M0, so, hr * 128))
                    lds_.append("buffer_load_dwordx4 %s, %s, %s, %s offen offset:%d nt" % (vr(K0 + (T * 4 + 2 * hr + 1) * 4, 4), vKB, SRD_M0, so, hr * 128))
        else:
            for T in range(2):
                for s in range(4):
                    so = sKV2 if T else sKV
                    lds_.append("buffer_load_dwordx4 %s, %s, %s, %s offen offset:%d nt" % (vr(K0 + (T * 4 + s) * 4, 4), vKA, SRD_M0, so, s * 64))
        for i in range(8):
            so = sKV2 if i >= 4 else sKV
            lds_.append("buffer_load_dwordx4 %s, %s, %s, %s offen offset:%d nt" % (vr(G0 + 4 * i, 4), vV, SRD_M1, so, (i & 3) * 256))
        for k, ld in enumerate(lds_):
            if k == o["depth"] + 1:
                a.I("s_cmp_eq_u32 %s, 3" % sRole)
                a.I("s_cbranch_scc1 L_att_nobar")
                a.I("s_barrier")
                a.label("L_att_nobar")
            if k > o["depth"]:
                a.I("s_waitcnt vmcnt(%d)" % o["depth"])
            a.I(ld)
        a.I("s_lshl_b32 s56, %s, 4" % sPar)
        a.I("v_add_u32 v16, s56, v14")
        a.I("v_mov_b32 v17, 1")
        a.I("ds_write_b32 v16, v17 offset:%d" % FISSA)
        self.ts(2)
        a.I("s_mul_i32 s58, %s, %d" % (sW, 8192 - 2048))
        self.sacc(sOP, [(sG, 15), ("s58", 0), (sI, 8)], OBUF - OL)
        a.I("v_and_b32 v16, 3, v1")
        a.I("v_cmp_eq_u32 vcc, 0, v16")
        a.I("v_cndmask_b32 v%d, 0, 1, vcc" % TM)
        self.sacc(sMLP, [(sG, 15), (sW, 11), (sI, 6)], MLBUF)
        a.I("v_and_b32 v16, 1, v3")
        a.I("v_lshlrev_b32 v16, 3, v16")
        a.I("v_lshl_add_u32 v16, v2, 4, v16")
        a.I("s_lshl_b32 s56, %s, 8" % sW)
        a.I("v_add_u32 %s, s56, v16" % vQLW)
        a.I("v_lshrrev_b32 v16, 2, v2")
        a.I("v_lshlrev_b32 v17, 4, v3")
        a.I("v_lshl_add_u32 %s, v16, 8, v17" % vQLR)
        a.I("v_lshlrev_b32 v17, 9, v3")
        a.I("v_lshl_add_u32 v17, v2, 2, v17")
        self.sacc("s58", [(sW, 6)], OL)
        a.I("v_add_u32 %s, s58, v17" % vOLR)
        self.sacc("s58", [(sW, 11)], OL)
        a.I("v_add_u32 v5, s58, v5")
        a.I("v_and_b32 v17, 7, v2")
        a.I("v_lshlrev_b32 %s, 7, v17" % vSTG)
        a.I("v_lshlrev_b32 v16, 5, v16")
        a.I("s_lshl_b32 s56, %s, 3" % sW)
        a.I("v_add_u32 %s, s56, v16" % vMLW)
        a.I("v_mov_b32 v16, 0x%x" % OOB)
        a.I("v_lshlrev_b32 v17, 3, v1")
        a.I("v_cmp_gt_u32 vcc, 8, v1")
        a.I("v_cndmask_b32 %s, v16, v17, vcc" % vMLP)
        self.sacc(sQG, [(sG, 15), (sB, 13), (sW, 11)], QBUF)
        self.sacc(sCSG, [(sPar, 13), (sG, 15), (sW, 11)], CSBUF)
        self.sacc(sSTG, [(sG, 15), (sB, 3)], STBUF)
        if o["kfix"]:
            a.I("s_waitcnt vmcnt(8)")
            for T in range(2):
                for hr in range(2):
                    ra = K0 + (T * 4 + 2 * hr) * 4
                    rb = ra + 4
                    for u in range(4):
                        t = S0 + u
                        a.I("v_mov_b32_dpp v%d, v%d row_ror:8 row_mask:0xf bank_mask:0x3" % (t, ra + u))
                        a.I("v_mov_b32_dpp v%d, v%d row_ror:8 row_mask:0xf bank_mask:0xc" % (t, rb + u))
                    for u in range(4):
                        a.I("v_mov_b32_dpp v%d, v%d quad_perm:[0,1,2,3] row_mask:0xf bank_mask:0xc" % (ra + u, rb + u))
                    for u in range(4):
                        a.I("v_mov_b32 v%d, v%d" % (rb + u, S0 + u))
        a.I("s_waitcnt vmcnt(0)")
        self.ts(3)
        self.transpose(G0, V0, 4)
        a.I("v_lshlrev_b32 %s, 3, v14" % vMLR)
        self.wait_go("v16")
        SEL = G0 + 12
        DQ = G0 + 8
        ST = P0

        def gather_loads(sb):
            return [("buffer_load_dwordx4 %s, v4, %s, %s offen offset:%d sc1" % (vr(G0 + 4 * r, 4), SRD_WS, sb, r * 1024), ["v%d" % (G0 + 4 * r)]) for r in range(2)]

        self.ts(4)

        a.label("L_att_loop")
        a.I("ds_read_b128 %s, v4 offset:%d" % (vr(SEL, 4), SELL))
        self.prio(0)
        self.lds_wait_ge("v14", FQP, sL, "v0", sleep=o["gsleep"])
        self.prio(3)
        if o["dq"]:
            a.I("s_sleep %d" % o["dq"])
        cs_loads = [("buffer_load_dwordx4 %s, v4, %s, %s offen offset:%d sc1" % (vr(G0 + 16 + 4 * r, 4), SRD_WS, sCSG, r * 1024), ["v%d" % (G0 + 16 + 4 * r)]) for r in range(2)]
        a.I("s_cmp_gt_u32 %s, 2" % sL)
        a.I("s_cbranch_scc1 L_att_nocs0")
        for ld, _ in cs_loads:
            a.I(ld)
        a.label("L_att_nocs0")
        loads = [("buffer_load_dwordx2 %s, %s, %s, %s offen sc1" % (vr(ST, 2), vSTG, SRD_WS, sSTG), ["v%d" % ST, "v%d" % (ST + 1)])] + gather_loads(sQG)
        self.poll(loads, "v0", "v1", sPar, dbg=True, pipe=o["pq_"])
        self.ts_layer(5)
        a.I("s_cmp_gt_u32 %s, 2" % sL)
        a.I("s_cbranch_scc1 L_att_nocs")
        self.tagtree(["v%d" % (G0 + 16), "v%d" % (G0 + 20)], "v0", "v1", "0")
        a.I("v_cmp_ne_u32 vcc, 0, v0")
        a.I("s_cbranch_vccz L_att_csok")
        self.poll(cs_loads, "v0", "v1", "0")
        a.label("L_att_csok")
        a.I("v_mfma_f32_16x16x32_bf16 %s, %s, %s, 0" % (vr(DQ, 4), vr(SEL, 4), vr(G0 + 16, 4)))
        a.I("v_mfma_f32_16x16x32_bf16 %s, %s, %s, %s" % (vr(DQ, 4), vr(SEL, 4), vr(G0 + 20, 4), vr(DQ, 4)))
        a.I("v_mov_b32 v%d, v%d" % (CSa, DQ))
        a.I("v_mov_b32 v%d, v%d" % (CSa + 1, DQ + 1))
        a.I("v_mov_b32 v%d, v%d" % (CSb, DQ + 2))
        a.I("v_mov_b32 v%d, v%d" % (CSb + 1, DQ + 3))
        a.settle()
        a.label("L_att_nocs")
        a.I("v_mfma_f32_16x16x32_bf16 %s, %s, %s, 0" % (vr(DQ, 4), vr(SEL, 4), vr(G0, 4)))
        a.I("v_mfma_f32_16x16x32_bf16 %s, %s, %s, %s" % (vr(DQ, 4), vr(SEL, 4), vr(G0 + 4, 4), vr(DQ, 4)))
        SL, ST = ST, ST + 2
        for rot in (4, 2, 1):
            src = SL if rot == 4 else ST
            a.I("v_add_f32_dpp v%d, v%d, v%d row_ror:%d row_mask:0xf bank_mask:0xf" % (ST, src, src, rot))
            a.I("v_add_f32_dpp v%d, v%d, v%d row_ror:%d row_mask:0xf bank_mask:0xf" % (ST + 1, src + 1, src + 1, rot))
        a.I("v_mul_f32 v%d, 0x%x, v%d" % (ST, f32bits(1.0 / 512), ST))
        a.I("v_mul_f32 v%d, 0x%x, v%d" % (ST + 1, f32bits(1.0 / 512), ST + 1))
        a.I("v_fma_f32 v%d, -v%d, v%d, v%d" % (ST + 1, ST, ST, ST + 1))
        a.I("v_max_f32 v%d, 0, v%d" % (ST + 1, ST + 1))
        a.I("v_add_f32 v%d, 0x%x, v%d" % (ST + 1, f32bits(1e-5), ST + 1))
        a.I("v_rsq_f32 v%d, v%d" % (ST + 1, ST + 1))
        a.I("v_pk_fma_f32 %s, %s, %s, %s op_sel_hi:[1,0,1] neg_lo:[0,1,0] neg_hi:[0,1,0]" % (vr(DQ, 2), vr(CSa, 2), vr(ST, 2), vr(DQ, 2)))
        a.I("v_pk_fma_f32 %s, %s, %s, %s op_sel_hi:[1,0,1] neg_lo:[0,1,0] neg_hi:[0,1,0]" % (vr(DQ + 2, 2), vr(CSb, 2), vr(ST, 2), vr(DQ + 2, 2)))
        a.I("v_mul_f32 v%d, 0x%x, v%d" % (ST + 1, f32bits(128 ** -0.5 * math.log2(math.e)), ST + 1))
        a.I("v_mov_b32 v0, %s" % sL)
        a.I("v_pk_mul_f32 %s, %s, %s op_sel:[0,1] op_sel_hi:[1,1]" % (vr(DQ, 2), vr(DQ, 2), vr(ST, 2)))
        a.I("v_pk_mul_f32 %s, %s, %s op_sel:[0,1] op_sel_hi:[1,1]" % (vr(DQ + 2, 2), vr(DQ + 2, 2), vr(ST, 2)))
        a.I("v_cvt_pk_bf16_f32 v%d, v%d, v%d" % (DQ, DQ, DQ + 1))
        a.I("v_cvt_pk_bf16_f32 v%d, v%d, v%d" % (DQ + 1, DQ + 2, DQ + 3))
        if o["ts"] == 2:
            self.ts(9)
        a.I("ds_write_b64 %s, %s offset:%d" % (vQLW, vr(DQ, 2), QL))
        self.flag_set("v14", FAQ, "v0")
        QO = G0 + 16
        FL = S0
        self.exchange(FAQ, FL, ["ds_read_b128 %s, %s offset:%d" % (vr(QO + 4 * s, 4), vQLR, QL + 64 * s) for s in range(4)])
        if o["ts"] == 2:
            self.ts(1)
        for T in range(2):
            for s in range(4):
                a.I("v_mfma_f32_16x16x32_bf16 %s, %s, %s, %s" % (vr(S0 + 4 * T, 4), vr(K0 + (T * 4 + s) * 4, 4), vr(QO + 4 * s, 4), "0" if s == 0 else vr(S0 + 4 * T, 4)))
        a.I("v_max3_f32 v%d, v%d, v%d, v%d" % (M_, S0, S0 + 1, S0 + 2))
        a.I("v_max_f32 v%d, v%d, v%d" % (M_, M_, S0 + 3))
        a.I("v_max3_f32 v%d, v%d, v%d, v%d" % (M_, M_, S0 + 4, S0 + 5))
        a.I("v_max3_f32 v%d, v%d, v%d, v%d" % (M_, M_, S0 + 6, S0 + 7))
        a.I("v_mov_b32 v1, v%d" % M_)
        a.I("v_permlane32_swap_b32 v%d, v1" % M_)
        a.I("v_max_f32 v%d, v%d, v1" % (M_, M_))
        a.I("v_mov_b32 v1, v%d" % M_)
        a.I("v_permlane16_swap_b32 v%d, v1" % M_)
        a.I("v_max_f32 v%d, v%d, v1" % (M_, M_))
        for k in range(4):
            a.I("v_pk_add_f32 %s, %s, %s op_sel_hi:[1,0] neg_lo:[0,1] neg_hi:[0,1]" % (vr(S0 + 2 * k, 2), vr(S0 + 2 * k, 2), vr(M_, 2)))
        for k in range(8):
            a.I("v_exp_f32 v%d, v%d" % (S0 + k, S0 + k))
        a.I("s_waitcnt vmcnt(0)")
        for k in range(4):
            a.I("v_cvt_pk_bf16_f32 v%d, v%d, v%d" % (P0 + k, S0 + 2 * k, S0 + 2 * k + 1))
        if o["ts"] == 2:
            self.ts(2)
        lops = [
            "v_pk_add_f32 %s, %s, %s" % (vr(S0, 2), vr(S0, 2), vr(S0 + 2, 2)),
            "v_pk_add_f32 %s, %s, %s" % (vr(S0 + 4, 2), vr(S0 + 4, 2), vr(S0 + 6, 2)),
            "v_pk_add_f32 %s, %s, %s" % (vr(S0, 2), vr(S0, 2), vr(S0 + 4, 2)),
            "v_add_f32 v%d, v%d, v%d" % (L_, S0, S0 + 1),
            "v_mov_b32 v1, v%d" % L_,
            None,
            "v_permlane32_swap_b32 v%d, v1" % L_,
            "v_add_f32 v%d, v%d, v1" % (L_, L_),
            "v_mov_b32 v1, v%d" % L_,
            None,
            "v_permlane16_swap_b32 v%d, v1" % L_,
            "v_add_f32 v%d, v%d, v1" % (L_, L_),
            "ds_write_b64 %s, %s offset:%d" % (vMLW, vr(M_, 2), MLL),
        ]
        for j in range(8):
            a.I("v_mfma_f32_16x16x32_bf16 %s, %s, %s, 0" % (vr(G0 + 4 * j, 4), vr(P0, 4), vr(V0 + 4 * j, 4)))
            for _ in range(2):
                if lops:
                    x = lops.pop(0)
                    if x:
                        a.I(x)
        while lops:
            x = lops.pop(0)
            if x:
                a.I(x)
        for j in range(0, 8, 2):
            a.I("ds_write2st64_b32 v5, v%d, v%d offset0:%d offset1:%d" % (G0 + 4 * j, G0 + 4 * (j + 1), j, j + 1))
        self.flag_set("v14", FAO, "v0")
        if o["ts"] == 2:
            self.ts(3)
        OV = S0
        MLR = G0
        FL2 = G0 + 8
        reads = ["ds_read_b128 %s, %s offset:%d" % (vr(MLR, 4), vMLR, MLL), "ds_read_b128 %s, %s offset:%d" % (vr(MLR + 4, 4), vMLR, MLL + 16)]
        reads += ["ds_read2st64_b32 %s, %s offset0:%d offset1:%d" % (vr(OV + 2 * k, 2), vOLR, 8 * k, 8 * k + 1) for k in range(4)]
        self.exchange(FAO, FL2, reads)
        if o["ts"] == 2:
            self.ts(4)
        a.I("v_max3_f32 v%d, v%d, v%d, v%d" % (M_, MLR, MLR + 2, MLR + 4))
        a.I("v_max_f32 v%d, v%d, v%d" % (M_, M_, MLR + 6))
        for k in range(4):
            a.I("v_sub_f32 v%d, v%d, v%d" % (MLR + 2 * k, MLR + 2 * k, M_))
        for k in range(4):
            a.I("v_exp_f32 v%d, v%d" % (MLR + 2 * k, MLR + 2 * k))
        a.I("v_pk_mul_f32 %s, %s, %s op_sel_hi:[1,0]" % (vr(OV, 2), vr(OV, 2), vr(MLR, 2)))
        a.I("v_mul_f32 v%d, v%d, v%d" % (L_, MLR, MLR + 1))
        for k in range(1, 4):
            a.I("v_pk_fma_f32 %s, %s, %s, %s op_sel_hi:[1,0,1]" % (vr(OV, 2), vr(OV + 2 * k, 2), vr(MLR + 2 * k, 2), vr(OV, 2)))
            a.I("v_fmac_f32 v%d, v%d, v%d" % (L_, MLR + 2 * k, MLR + 2 * k + 1))
        a.I("v_cvt_pk_bf16_f32 v%d, v%d, v%d" % (OV, OV, OV + 1))
        a.I("v_bfi_b32 v%d, 1, %s, v%d" % (L_, sPar, L_))
        a.I("v_bfi_b32 v%d, v%d, %s, v%d" % (OV, TM, sPar, OV))
        self.moded_stores([
            "buffer_store_dword v%d, %s, %s, %s offen" % (OV, vOP, SRD_WS, sOP),
            "buffer_store_dwordx2 %s, %s, %s, %s offen" % (vr(M_, 2), vMLP, SRD_WS, sMLP),
        ])
        self.flag_set("v14", FAP, "v0")
        self.ts_layer(6)
        a.I("s_add_u32 %s, %s, 2" % (sL, sL))
        a.I("s_cmp_le_u32 %s, 4" % sL)
        a.settle()
        a.I("s_cbranch_scc1 L_att_loop")
        a.I("s_branch L_end")

    def pq(self):
        a, o = self.a, self.o
        vWQ, vQP, vST, vXW, vXR, vXI, vCSP, vTM = "v6", "v7", "v8", "v9", "v10", "v11", "v12", "v15"
        WC, WN, G0, XO_, FL, D0, DS, X0, ON, SEL, DX = 16, 32, 48, 64, 72, 76, 84, 88, 92, 96, 100
        sRB, sHH, sWQ, sQP, sCS, sST, sXG, sXI = "s64", "s65", "s66", "s67", "s68", "s69", "s70", "s72"
        a.label("L_PQ")
        if o["x_nopq"]:
            a.I("s_barrier")
            a.I("s_branch L_end")
        self.srd(SRD_M0, "A_wq", 4 << 20)
        self.srd(SRD_X, "A_x", 4096)
        a.I("s_and_b32 %s, %s, 7" % (sRB, sI))
        a.I("s_lshr_b32 %s, %s, 3" % (sHH, sI))
        self.sacc(sWQ, [(sRB, 19), (sG, 10), (sHH, 8), (sW, 6)], 0)
        a.I("v_lshlrev_b32 v16, 2, v2")
        a.I("v_and_b32 v18, 1, v3")
        a.I("v_lshl_add_u32 v17, v18, 18, v16")
        a.I("v_lshrrev_b32 v19, 1, v3")
        a.I("v_lshl_add_u32 %s, v19, 13, v17" % vWQ)

        def load_wq(srd):
            a.I("s_mov_b32 s59, %s" % sWQ)
            for e in range(8):
                for ks in range(2):
                    a.I("buffer_load_dword v%d, %s, %s, s59 offen nt" % (G0 + 8 * ks + e, vWQ, srd))
                    if (e, ks) != (7, 1):
                        a.I("s_add_u32 s59, s59, 16384")

        def transpose_wq():
            for ks in range(2):
                self.transpose(G0 + 8 * ks, WC + 8 * ks, 1)

        load_wq(SRD_M0)
        a.I("v_bfe_u32 v17, v2, 1, 2")
        a.I("v_and_b32 v19, 1, v2")
        a.I("v_lshlrev_b32 v19, 1, v19")
        a.I("v_add_u32 v19, v19, v18")
        a.I("v_lshlrev_b32 v20, 10, v17")
        a.I("v_lshl_add_u32 %s, v19, 5, v20" % vXI)
        self.sacc(sXI, [(sRB, 7), (sW, 1)], 0)
        for rr in range(4):
            a.I("buffer_load_ushort v%d, %s, %s, %s offen offset:%d" % (X0 + rr, vXI, SRD_X, sXI, 8 * rr))
        self.ts(1)
        a.I("s_barrier")
        a.I("v_lshlrev_b32 v20, 7, v17")
        a.I("v_lshl_add_u32 v20, v19, 3, v20")
        a.I("s_lshl_b32 s56, %s, 5" % sW)
        a.I("v_add_u32 %s, s56, v20" % vXW)
        self.sacc(sQP, [(sG, 15), (sHH, 11), (sRB, 8), (sW, 6)], QBUF)
        self.sacc(sCS, [(sG, 15), (sHH, 11), (sRB, 8), (sW, 6)], CSBUF)
        a.I("v_lshl_add_u32 %s, v3, 13, v16" % vQP)
        a.I("v_mov_b32 v18, 0x%x" % OOB)
        a.I("v_cmp_gt_u32 vcc, 16, v1")
        a.I("v_cndmask_b32 %s, v18, v16, vcc" % vCSP)
        a.I("v_and_b32 v17, 3, v2")
        a.I("v_cmp_eq_u32 vcc, 0, v17")
        a.I("v_cndmask_b32 %s, 0, 1, vcc" % vTM)
        a.I("v_lshlrev_b32 v16, 3, v3")
        a.I("v_lshlrev_b32 v17, 2, v3")
        a.I("v_add_u32 v19, 4, v16")
        a.I("v_cmp_eq_u32 vcc, v17, v2")
        a.I("v_cndmask_b32 %s, v18, v19, vcc" % vST)
        a.I("v_cmp_eq_u32 vcc, 1, v2")
        a.I("v_cndmask_b32 %s, %s, v16, vcc" % (vST, vST))
        a.I("s_or_b32 s56, %s, %s" % (sW, sHH))
        a.I("s_cmp_eq_u32 s56, 0")
        a.I("s_cselect_b32 s56, 0, 0x%x" % OOB)
        a.I("v_or_b32 %s, s56, %s" % (vST, vST))
        self.sacc(sST, [(sG, 15), (sRB, 7)], STBUF)
        a.I("v_lshrrev_b32 v16, 2, v2")
        a.I("v_mov_b32 v17, 4")
        a.I("v_cndmask_b32 v16, v16, v17, vcc")
        a.I("v_lshlrev_b32 v16, 7, v16")
        a.I("v_lshl_add_u32 %s, v3, 4, v16" % vXR)
        self.sacc(sXG, [(sRB, 14), (sW, 12)], XBUF)
        for k in range(4):
            a.I("v_mov_b32 v%d, 0x3f803f80" % (ON + k))
        a.I("ds_read_b128 %s, v4 offset:%d" % (vr(SEL, 4), SELL))
        a.I("s_mov_b32 %s, 1" % sL)
        a.I("s_mov_b32 %s, 0" % sPar)
        self.srd(SRD_M1, "B_wq", 4 << 20)
        a.I("s_waitcnt vmcnt(0)")
        self.srd(SRD_X, "out", 4096)
        self.ts(2)
        transpose_wq()
        for rr in range(4):
            a.I("v_lshlrev_b32 v%d, 16, v%d" % (X0 + rr, X0 + rr))

        def colsum_pass(soff, first=False):
            for ks in range(2):
                for j in range(2):
                    a.I("v_mfma_f32_16x16x32_bf16 %s, %s, %s, %s" % (vr(D0 + 4 * j, 4), vr(ON, 4), vr(WC + 8 * ks + 4 * j, 4), "0" if ks == 0 else vr(D0 + 4 * j, 4)))
            a.I("v_cvt_pk_bf16_f32 v2, v%d, v%d" % (D0, D0 + 4))
            a.I("v_bfi_b32 v2, %s, 0, v2" % vTM)
            if first:
                self.wait_go("v0")
            self.moded_stores(["buffer_store_dword v2, %s, %s, %s offen" % (vCSP, SRD_WS, soff)])

        colsum_pass(sCS, True)
        a.I("v_mov_b32 v0, 1")
        a.I("s_branch L_pq_after")

        a.label("L_pq_loop")
        a.I("s_sub_u32 s58, %s, 1" % sL)
        self.prio(0)
        self.lds_wait_ge("v14", FOP, "s58", "v0", sleep=o["gsleep"])
        self.prio(3)
        if o["dx"]:
            a.I("s_sleep %d" % o["dx"])
        loads = [("buffer_load_dwordx4 %s, v4, %s, %s offen offset:%d sc1" % (vr(G0 + 4 * r, 4), SRD_WS, sXG, r * 1024), ["v%d" % (G0 + 4 * r)]) for r in range(4)]
        self.poll(loads, "v0", "v1", "0", dbg=True, pipe=o["px_"])
        self.ts_layer(3, n=5, stride=2)
        for r in range(4):
            a.I("v_mfma_f32_16x16x32_bf16 %s, %s, %s, %s" % (vr(DX, 4), vr(SEL, 4), vr(G0 + 4 * r, 4), "0" if r == 0 else vr(DX, 4)))
        a.I("v_mov_b32 v0, %s" % sL)
        a.I("s_add_u32 %s, %s, 0x20000" % (sXG, sXG))
        a.I("v_pk_add_f32 %s, %s, %s" % (vr(X0, 2), vr(X0, 2), vr(DX, 2)))
        a.I("v_pk_add_f32 %s, %s, %s" % (vr(X0 + 2, 2), vr(X0 + 2, 2), vr(DX + 2, 2)))
        for k in range(4):
            a.I("v_add_f32_dpp v%d, v%d, v%d row_ror:8 row_mask:0xf bank_mask:0xf" % (X0 + k, DX + k, X0 + k))
        a.label("L_pq_after")
        a.I("v_cvt_pk_bf16_f32 v%d, v%d, v%d" % (DX, X0, X0 + 1))
        a.I("v_cvt_pk_bf16_f32 v%d, v%d, v%d" % (DX + 1, X0 + 2, X0 + 3))
        a.I("s_cmp_eq_u32 %s, 5" % sL)
        a.I("s_cbranch_scc1 L_pq_final")
        a.I("ds_write_b64 %s, %s offset:%d" % (vXW, vr(DX, 2), XL))
        self.flag_set("v14", FQX, "v0")
        self.exchange(FQX, FL, ["ds_read_b128 %s, %s offset:%d" % (vr(XO_ + 4 * ks, 4), vXR, XL + 64 * ks) for ks in range(2)])
        for ks in range(2):
            for j in range(2):
                a.I("v_mfma_f32_16x16x32_bf16 %s, %s, %s, %s" % (vr(D0 + 4 * j, 4), vr(XO_ + 4 * ks, 4), vr(WC + 8 * ks + 4 * j, 4), "0" if ks == 0 else vr(D0 + 4 * j, 4)))
        for ks in range(2):
            a.I("v_mfma_f32_16x16x32_bf16 %s, %s, %s, %s" % (vr(DS, 4), vr(XO_ + 4 * ks, 4), vr(XO_ + 4 * ks, 4), "0" if ks == 0 else vr(DS, 4)))
        a.I("v_cvt_pk_bf16_f32 v1, v%d, v%d" % (D0, D0 + 4))
        a.I("v_bfi_b32 v1, %s, %s, v1" % (vTM, sPar))
        a.I("v_bfi_b32 v%d, 1, %s, v%d" % (DS, sPar, DS))
        self.moded_stores([
            "buffer_store_dword v1, %s, %s, %s offen" % (vQP, SRD_WS, sQP),
            "buffer_store_dword v%d, %s, %s, %s offen" % (DS, vST, SRD_WS, sST),
        ])
        self.flag_set("v14", FQP, "v0")
        self.ts_layer(4, n=4, stride=2)
        for k in range(16):
            a.I("v_swap_b32 v%d, v%d" % (WC + k, WN + k))
        a.I("s_cmp_lg_u32 %s, 1" % sL)
        a.I("s_cbranch_scc1 L_pq_next")
        self.lds_wait_ge("v14", FISSA, "1", "v0", sleep=2)
        load_wq(SRD_M1)
        a.I("s_waitcnt vmcnt(0)")
        transpose_wq()
        a.I("s_add_u32 s58, %s, 8192" % sCS)
        colsum_pass("s58")
        self.lds_wait_ge("v13", GOX, "1", "v0", sleep=1)
        a.label("L_pq_next")
        a.I("s_add_u32 %s, %s, 1" % (sL, sL))
        a.I("s_xor_b32 %s, %s, 1" % (sPar, sPar))
        a.I("s_cmp_le_u32 %s, 4" % sL)
        a.settle()
        a.I("s_cbranch_scc1 L_pq_loop")
        a.I("s_or_b32 s56, %s, %s" % (sG, sHH))
        a.I("s_cmp_eq_u32 s56, 0")
        a.I("s_cbranch_scc1 L_pq_loop")
        a.I("s_branch L_end")
        a.label("L_pq_final")
        a.I("buffer_store_short v%d, %s, %s, %s offen" % (DX, vXI, SRD_X, sXI))
        a.I("buffer_store_short_d16_hi v%d, %s, %s, %s offen offset:8" % (DX, vXI, SRD_X, sXI))
        a.I("buffer_store_short v%d, %s, %s, %s offen offset:16" % (DX + 1, vXI, SRD_X, sXI))
        a.I("buffer_store_short_d16_hi v%d, %s, %s, %s offen offset:24" % (DX + 1, vXI, SRD_X, sXI))
        a.I("s_branch L_end")

    def po(self):
        a, o = self.a, self.o
        vWO, vMLG, vXP, vO2W, vO2R, vTM, vWXW, vWXR = "v6", "v7", "v8", "v9", "v10", "v11", "v12", "v15"
        WC, WN, G0, ML, SM, A0, DO, AO, D0, FL, F, EP = 16, 32, 48, 64, 68, 72, 80, 84, 100, 104, 108, 112
        sHH, sCB, sWO, sOG, sMLG, sXP, sDupLo, sDupHi = "s64", "s65", "s66", "s68", "s69", "s70", "s71", "s72"
        a.label("L_PO")
        if o["x_nopo"]:
            a.I("s_barrier")
            a.I("s_branch L_end")
        a.I("s_lshr_b32 %s, %s, 3" % (sHH, sI))
        a.I("s_and_b32 %s, %s, 7" % (sCB, sI))
        a.I("s_lshl_b32 s60, %s, 2" % sG)
        a.I("s_add_u32 s60, s60, %s" % sHH)
        a.I("s_cmp_eq_u32 %s, 1" % sW)
        a.I("s_cbranch_scc1 L_po_c1")
        a.I("s_barrier")
        a.I("s_branch L_po_c2")
        a.label("L_po_c1")
        a.I("s_mov_b32 s73, 0x%x" % EPOCH)
        a.I("s_add_u32 s56, s%d, s73" % KA["ws"])
        a.I("s_addc_u32 s57, s%d, 0" % (KA["ws"] + 1))
        a.I("s_load_dwordx2 s[74:75], s[56:57], 0")
        for k in range(4):
            a.I("v_mov_b32 v%d, -1" % (16 + k))
        a.I("s_lshl_b32 s58, %s, 15" % sG)
        a.I("s_lshl_b32 s59, %s, 10" % sI)
        a.I("s_add_u32 s67, s58, s59")

        def group_clears(fl):
            for base in (QBUF, OBUF, SBUF):
                a.I("s_add_u32 s58, s67, 0x%x" % base)
                a.I("buffer_store_dwordx4 v[16:19], v4, %s, s58 offen%s" % (SRD_WS, fl))

        group_clears("" if o["fast"] else " sc1")
        a.I("v_lshrrev_b32 v20, 5, v1")
        a.I("v_lshlrev_b32 v20, 17, v20")
        a.I("v_bfe_u32 v21, v1, 3, 2")
        a.I("v_lshl_add_u32 v20, v21, 12, v20")
        a.I("v_and_b32 v21, 7, v1")
        a.I("v_lshl_add_u32 v20, v21, 4, v20")
        a.I("s_lshl_b32 s58, %s, 14" % sCB)
        a.I("s_lshl_b32 s59, s60, 7")
        a.I("s_add_u32 s58, s58, s59")
        a.I("s_add_u32 s58, s58, 0x%x" % XBUF)
        a.I("buffer_store_dwordx4 v[16:19], v20, %s, s58 offen sc1" % SRD_WS)
        a.I("s_add_u32 s58, s58, 0x40000")
        a.I("buffer_store_dwordx4 v[16:19], v20, %s, s58 offen sc1" % SRD_WS)
        if o["ts"] == 4:
            self.ts(4)
        a.I("s_barrier")
        if o["ts"] == 4:
            self.ts(5)
        a.I("s_getreg_b32 s61, hwreg(HW_REG_XCC_ID)")
        a.I("s_and_b32 s61, s61, 15")
        a.I("v_mov_b32 v%d, s61" % (EP + 2))
        a.I("v_mov_b32 v%d, 0" % (EP + 3))
        a.I("s_lshr_b32 s63, s67, 3")
        a.I("s_lshl_b32 s58, %s, 5" % sG)
        a.I("v_and_b32 v24, 31, v1")
        a.I("v_add_u32 v26, s58, v24")
        a.I("v_lshlrev_b32 v26, 7, v26")
        a.I("v_lshl_add_u32 v25, v24, 3, %s" % sCB)
        a.I("v_lshlrev_b32 v25, 7, v25")
        a.I("v_add_u32 v25, 0x%x, v25" % FLAGS)
        a.I("v_add_u32 v24, 0x%x, v26" % PFLAGS)
        a.I("v_add_u32 v27, 0x%x, v26" % FLAGS)
        a.I("v_cmp_gt_u32 vcc, 32, v1")
        a.I("v_cndmask_b32 v24, v27, v24, vcc")
        a.I("s_waitcnt lgkmcnt(0)")
        if o["ts"] == 4:
            self.ts(6)
        a.I("s_add_u32 s74, s74, 1")
        a.I("s_addc_u32 s75, s75, 0")
        a.I("v_mov_b32 v%d, s74" % EP)
        a.I("v_mov_b32 v%d, s75" % (EP + 1))
        a.I("s_waitcnt vmcnt(2)")
        self.ts(1)
        a.I("s_mov_b64 exec, 1")
        a.I("s_add_u32 s58, s63, 0x%x" % PFLAGS)
        a.I("buffer_store_dwordx4 %s, v13, %s, s58 offen" % (vr(EP, 4), SRD_WS))
        a.I("s_waitcnt vmcnt(1)")
        if o["ts"] == 4:
            self.ts(7)
        a.I("s_add_u32 s58, s63, 0x%x" % FLAGS)
        a.I("buffer_store_dwordx4 %s, v13, %s, s58 offen sc1" % (vr(EP, 4), SRD_WS))
        a.I("s_mov_b64 exec, -1")

        def flag_round(vaddr):
            a.I("buffer_load_dwordx4 v[28:31], %s, %s, 0 offen sc1" % (vaddr, SRD_WS))
            a.I("s_waitcnt vmcnt(0)")
            a.I("v_xor_b32 v20, v28, v%d" % EP)
            a.I("v_bitop3_b32 v20, v20, v29, v%d bitop3:0xf6" % (EP + 1))
            a.I("v_cmp_eq_u32 vcc, 0, v20")

        a.label("L_po_fp")
        flag_round("v24")
        a.I("v_cmp_eq_u32 s[56:57], s61, v30")
        a.I("s_and_b32 s58, vcc_lo, s56")
        a.I("s_cmp_eq_u32 s58, -1")
        a.I("s_cselect_b32 s58, %d, 0" % (3 if o["fast"] else 0))
        a.I("s_cmp_lg_u32 s58, 0")
        a.I("s_cbranch_scc1 L_po_go")
        if o["fast"]:
            a.I("s_andn2_b32 s58, vcc_hi, s57")
            a.I("s_cbranch_scc1 L_po_safe")
            a.I("s_sleep 1")
            self.bail("L_po_fp")
        a.label("L_po_safe")
        group_clears(" sc1")
        a.I("s_waitcnt vmcnt(0)")
        a.I("s_mov_b64 exec, 1")
        a.I("s_add_u32 s58, s63, 0x%x" % FLAGS2)
        a.I("buffer_store_dwordx4 %s, v13, %s, s58 offen sc1" % (vr(EP, 4), SRD_WS))
        a.I("s_mov_b64 exec, -1")
        a.I("v_add_u32 v24, 0x%x, v26" % FLAGS2)
        a.label("L_po_fp2")
        flag_round("v24")
        a.I("s_mov_b32 s58, 1")
        a.I("s_cmp_eq_u32 vcc_lo, -1")
        a.I("s_cbranch_scc1 L_po_go")
        a.I("s_sleep 1")
        self.bail("L_po_fp2")
        a.label("L_po_go")
        self.ts(2)
        a.I("v_mov_b32 v20, s58")
        a.I("ds_write_b32 v13, v20 offset:%d" % GO)
        a.label("L_po_fp3")
        flag_round("v25")
        a.I("s_cmp_eq_u32 vcc_lo, -1")
        a.I("s_cbranch_scc1 L_po_fd")
        a.I("s_sleep 4")
        self.bail("L_po_fp3")
        a.label("L_po_fd")
        if o["ts"] == 4:
            self.ts(8)
            a.I("s_branch L_end")
        a.I("v_mov_b32 v20, 1")
        a.I("ds_write_b32 v13, v20 offset:%d" % GOX)
        a.label("L_po_c2")
        self.srd(SRD_M0, "A_wo", 4 << 20)
        self.srd(SRD_M1, "B_wo", 4 << 20)
        self.sacc(sWO, [("s60", 17), (sW, 11), (sCB, 7)], 0)
        a.I("v_lshlrev_b32 v16, 3, v2")
        a.I("v_lshl_add_u32 %s, v3, 15, v16" % vWO)
        self.sacc(sOG, [("s60", 13), (sW, 11)], OBUF)
        self.sacc(sMLG, [(sG, 15), (sHH, 11), (sW, 9)], MLBUF)
        a.I("v_and_b32 v17, 3, v2")
        a.I("v_lshlrev_b32 %s, 6, v17" % vMLG)
        self.sacc(sXP, [(sCB, 14), (sW, 12), ("s60", 7)], XBUF)
        a.I("v_lshlrev_b32 v16, 3, v3")
        a.I("v_lshl_add_u32 v16, v2, 3, v16")
        a.I("v_mov_b32 v18, 0x%x" % OOB)
        a.I("v_cmp_eq_u32 vcc, 0, v17")
        a.I("v_cndmask_b32 %s, v18, v16, vcc" % vXP)
        a.I("v_and_b32 v17, 1, v3")
        a.I("v_not_b32 %s, v17" % vTM)
        a.I("v_or_b32 %s, -2, %s" % (vTM, vTM))
        a.I("v_xor_b32 %s, 1, %s" % (vTM, vTM))
        a.I("v_lshlrev_b32 v17, 3, v17")
        a.I("v_lshl_add_u32 v17, v2, 4, v17")
        a.I("s_lshl_b32 s56, %s, 8" % sW)
        a.I("v_add_u32 %s, s56, v17" % vO2W)
        a.I("v_lshrrev_b32 v16, 2, v2")
        a.I("v_lshlrev_b32 v17, 4, v3")
        a.I("v_lshl_add_u32 %s, v16, 8, v17" % vO2R)
        self.sacc("s58", [(sW, 12)], WX)
        a.I("v_add_u32 %s, s58, v4" % vWXW)
        self.sacc("s58", [(sW, 10)], WX)
        a.I("v_add_u32 %s, s58, v4" % vWXR)
        a.I("v_and_b32 v16, 1, v1")
        a.I("v_lshlrev_b32 v16, 4, v16")
        a.I("v_mov_b32 v17, 0xffff")
        a.I("v_lshlrev_b32 v16, v16, v17")
        a.I("v_bfe_u32 v17, v1, 1, 2")
        for t in range(4):
            a.I("v_cmp_eq_u32 vcc, %d, v17" % t)
            a.I("v_cndmask_b32 v%d, v13, v16, vcc" % (SM + t))
        a.I("s_mov_b32 %s, 0x01000100" % sDupLo)
        a.I("s_mov_b32 %s, 0x03020302" % sDupHi)
        a.I("s_mov_b32 %s, 1" % sL)
        a.I("s_mov_b32 %s, 0" % sPar)

        def load_wo(srd, val):
            a.I("s_mov_b32 s59, %s" % sWO)
            for e in range(8):
                a.I("buffer_load_dwordx2 %s, %s, %s, s59 offen offset:%d nt" % (vr(G0 + 2 * e, 2), vWO, srd, (e & 1) * 1024))
                if e & 1 and e < 7:
                    a.I("s_add_u32 s59, s59, 8192")
            a.I("s_waitcnt vmcnt(0)")
            self.transpose(G0, AO, 2)
            for j in range(4):
                a.I("ds_write_b128 %s, %s offset:%d" % (vWXW, vr(AO + 4 * j, 4), 1024 * j))
            a.I("v_mov_b32 v1, %d" % val)
            self.flag_set("v14", FWX, "v1")
            self.exchange(FWX, FL, ["ds_read_b128 %s, %s offset:%d" % (vr(WC + 4 * ks, 4), vWXR, 4096 * ks) for ks in range(4)], sval=str(val))

        self.lds_wait_ge("v14", FISSA, "1", "v16", sleep=2)
        load_wo(SRD_M0, 1)
        self.ts(3)

        a.label("L_po_loop")
        a.I("v_mov_b32 v0, %s" % sL)
        self.prio(0)
        self.lds_wait_ge("v14", FAP, sL, "v1", sleep=o["gsleep"])
        self.prio(3)
        if o["do"]:
            a.I("s_sleep %d" % o["do"])
        loads = [("buffer_load_dwordx2 %s, %s, %s, %s offen offset:%d sc1" % (vr(ML + 2 * k, 2), vMLG, SRD_WS, sMLG, 256 * k), ["v%d" % (ML + 2 * k + 1)]) for k in range(2)]
        for r in range(2):
            loads.append(("buffer_load_dwordx4 %s, v4, %s, %s offen offset:%d sc1" % (vr(G0 + 4 * r, 4), SRD_WS, sOG, r * 1024), ["v%d" % (G0 + 4 * r)]))
        self.poll(loads, "v1", "v2", sPar, dbg=True, pipe=o["po_"])
        self.ts_layer(4, n=4, stride=2)
        a.I("v_max_f32 v1, v%d, v%d" % (ML, ML + 2))
        a.I("v_max_f32_dpp v1, v1, v1 quad_perm:[1,0,3,2] row_mask:0xf bank_mask:0xf")
        a.I("v_max_f32_dpp v1, v1, v1 quad_perm:[2,3,0,1] row_mask:0xf bank_mask:0xf")
        a.I("v_sub_f32 v%d, v%d, v1" % (F, ML))
        a.I("v_sub_f32 v%d, v%d, v1" % (F + 1, ML + 2))
        a.I("v_exp_f32 v%d, v%d" % (F, F))
        a.I("v_exp_f32 v%d, v%d" % (F + 1, F + 1))
        a.I("v_mul_f32 v1, v%d, v%d" % (F, ML + 1))
        a.I("v_fmac_f32 v1, v%d, v%d" % (F + 1, ML + 3))
        a.I("v_add_f32_dpp v1, v1, v1 quad_perm:[1,0,3,2] row_mask:0xf bank_mask:0xf")
        a.I("v_add_f32_dpp v1, v1, v1 quad_perm:[2,3,0,1] row_mask:0xf bank_mask:0xf")
        a.I("v_rcp_f32 v2, v1")
        a.I("v_pk_mul_f32 %s, %s, v[2:3] op_sel_hi:[1,0]" % (vr(F, 2), vr(F, 2)))
        a.I("v_cvt_pk_bf16_f32 v1, v%d, v%d" % (F, F + 1))
        for q in range(4):
            a.I("v_mov_b32_dpp v2, v1 quad_perm:[%d,%d,%d,%d] row_mask:0x%x bank_mask:0xf" % (q, q, q, q, 1 << q))
        a.I("v_perm_b32 v%d, v2, v2, %s" % (F, sDupLo))
        a.I("v_perm_b32 v%d, v2, v2, %s" % (F + 1, sDupHi))
        for r in range(2):
            for t in range(4):
                a.I("v_and_b32 v%d, v%d, v%d" % (A0 + 4 * r + t, F + r, SM + t))
        for r in range(2):
            a.I("v_mfma_f32_16x16x32_bf16 %s, %s, %s, %s" % (vr(DO, 4), vr(A0 + 4 * r, 4), vr(G0 + 4 * r, 4), "0" if r == 0 else vr(DO, 4)))
        a.I("v_cvt_pk_bf16_f32 v%d, v%d, v%d" % (DO, DO, DO + 1))
        a.I("v_cvt_pk_bf16_f32 v%d, v%d, v%d" % (DO + 1, DO + 2, DO + 3))
        a.I("ds_write_b64 %s, %s offset:%d" % (vO2W, vr(DO, 2), OL2))
        self.flag_set("v14", FOX, "v0")
        self.exchange(FOX, FL, ["ds_read_b128 %s, %s offset:%d" % (vr(AO + 4 * ks, 4), vO2R, OL2 + 64 * ks) for ks in range(4)])
        for ks in range(4):
            a.I("v_mfma_f32_16x16x32_bf16 %s, %s, %s, %s" % (vr(D0, 4), vr(WC + 4 * ks, 4), vr(AO + 4 * ks, 4), "0" if ks == 0 else vr(D0, 4)))
        a.I("v_cvt_pk_bf16_f32 v%d, v%d, v%d" % (D0, D0, D0 + 1))
        a.I("v_cvt_pk_bf16_f32 v%d, v%d, v%d" % (D0 + 1, D0 + 2, D0 + 3))
        a.I("v_and_b32 v%d, %s, v%d" % (D0, vTM, D0))
        a.I("buffer_store_dwordx2 %s, %s, %s, %s offen sc1" % (vr(D0, 2), vXP, SRD_WS, sXP))
        self.flag_set("v14", FOP, "v0")
        self.ts_layer(5, n=4, stride=2)
        a.I("s_add_u32 %s, %s, 0x20000" % (sXP, sXP))
        for k in range(16):
            a.I("v_swap_b32 v%d, v%d" % (WC + k, WN + k))
        a.I("s_cmp_lg_u32 %s, 1" % sL)
        a.I("s_cbranch_scc1 L_po_next")
        self.lds_wait_ge("v14", FISSB, "1", "v1", sleep=2)
        load_wo(SRD_M1, 2)
        a.label("L_po_next")
        a.I("s_add_u32 %s, %s, 1" % (sL, sL))
        a.I("s_xor_b32 %s, %s, 1" % (sPar, sPar))
        a.I("s_cmp_le_u32 %s, 4" % sL)
        a.settle()
        a.I("s_cbranch_scc1 L_po_loop")
        a.I("s_cmp_lg_u32 s2, 0")
        a.I("s_cbranch_scc1 L_end")
        a.I("s_cmp_lg_u32 %s, 1" % sW)
        a.I("s_cbranch_scc1 L_end")
        a.I("s_mov_b64 exec, 1")
        a.I("buffer_store_dwordx2 %s, v13, %s, s73 offen sc1" % (vr(EP, 2), SRD_WS))
        a.I("s_branch L_end")

    def epilogue(self):
        a = self.a
        a.label("L_end")
        if self.o["ts"]:
            a.I("s_memtime s[16:17]")
            a.I("s_memrealtime s[18:19]")
            for _ in range(4):
                a.I("s_sleep 127")
            a.I("s_mov_b64 exec, 1")
            a.I("s_lshl_b32 s56, s2, 4")
            a.I("s_lshl_b32 s57, %s, 2" % sRole)
            a.I("s_add_u32 s56, s56, s57")
            a.I("s_add_u32 s56, s56, %s" % sW)
            a.I("s_lshl_b32 s56, s56, 7")
            a.I("s_add_u32 s56, s56, 0x%x" % TSBUF)
            a.I("s_waitcnt lgkmcnt(0) vmcnt(0)")
            for k in range(NTS + 2):
                sr = TS0 + 2 * k if k < NTS else 16 + 2 * (k - NTS)
                a.I("v_mov_b32 v16, s%d" % sr)
                a.I("v_mov_b32 v17, s%d" % (sr + 1))
                a.I("buffer_store_dwordx2 v[16:17], v13, %s, s56 offen offset:%d" % (SRD_WS, 8 * k))
                a.I("s_nop 1")
        a.label("L_exit")
        a.I("s_endpgm")

    def build(self):
        a = self.a
        if self.o["ts"]:
            for k in range(2 * NTS):
                a.I("s_mov_b32 s%d, 0" % (TS0 + k))
        self.prologue()
        self.att()
        self.pq()
        self.po()
        self.epilogue()
        ref = open("cdna_kernels/%s.s.ref" % NAME).read().splitlines()
        head = [l for l in ref if l.startswith(";") and "@launch" not in l]
        assert a.maxv <= 128, a.maxv
        out = "\n".join(head) + "\n"
        out += "; @launch grid=(256,1,1) block=(1024,1,1) lds=%d\n" % LDS_BYTES
        out += '.amdgcn_target "amdgcn-amd-amdhsa--gfx950"\n.text\n.globl %s_kernel\n.p2align 8\n.type %s_kernel,@function\n%s_kernel:\n' % (NAME, NAME, NAME)
        out += a.text()
        out += '.section .rodata,"a"\n.p2align 6\n.amdhsa_kernel %s_kernel\n' % NAME
        out += "  .amdhsa_next_free_vgpr 128\n  .amdhsa_next_free_sgpr 102\n  .amdhsa_accum_offset 128\n"
        out += "  .amdhsa_group_segment_fixed_size 0\n  .amdhsa_kernarg_size 104\n  .amdhsa_user_sgpr_count 2\n"
        out += "  .amdhsa_user_sgpr_kernarg_segment_ptr 1\n  .amdhsa_system_sgpr_workgroup_id_x 1\n.end_amdhsa_kernel\n"
        return out


if __name__ == "__main__":
    opts = {}
    outp = "cdna_kernels/%s.s" % NAME
    for arg in sys.argv[1:]:
        if arg.startswith("-o"):
            outp = arg[2:]
        else:
            k, v = arg.split("=")
            opts[k] = int(v, 0)
    open(outp, "w").write(Gen(**opts).build())
    print("wrote", outp)
```

```python
import re

TRANS = ("v_exp_f32", "v_rcp_f32", "v_rsq_f32", "v_log_f32", "v_sqrt_f32")


def _regs(tok):
    tok = tok.strip()
    tok = tok.lstrip("-")
    m = re.fullmatch(r"abs\((.*)\)", tok)
    if m:
        tok = m.group(1)
    m = re.fullmatch(r"([vsa])(\d+)", tok)
    if m:
        return [(m.group(1), int(m.group(2)))]
    m = re.fullmatch(r"([vsa])\[(\d+):(\d+)\]", tok)
    if m:
        return [(m.group(1), i) for i in range(int(m.group(2)), int(m.group(3)) + 1)]
    if tok == "vcc":
        return [("s", 106), ("s", 107)]
    if tok == "exec":
        return [("s", 126), ("s", 127)]
    return []


class Asm:
    def __init__(self):
        self.lines = []
        self.hist = []
        self.maxv = 0
        self.maxs = 0
        self.nlabel = 0
        self.allow_mfma_waw = False

    def raw(self, text):
        self.lines.append(text)

    def comment(self, text):
        self.lines.append("    ; " + text)

    def label(self, name):
        self.lines.append(name + ":")

    def newlabel(self, base="L"):
        self.nlabel += 1
        return "%s_%d" % (base, self.nlabel)

    def _advance(self, n):
        for h in self.hist:
            h["age"] += n
        self.hist = [h for h in self.hist if h["age"] < 24]

    def nop(self, n):
        while n > 0:
            k = min(n, 16)
            self.lines.append("    s_nop %d" % (k - 1))
            self._advance(k)
            n -= k

    def settle(self):
        need = 0
        for h in self.hist:
            if h["kind"] == "mfma":
                need = max(need, 8 - h["age"])
            elif h["kind"] in ("valu", "trans"):
                need = max(need, (5 if any(k == "s" for k, _ in h["w"]) else 2) - h["age"])
            elif h["kind"] == "store":
                need = max(need, 2 - h["age"])
        if need > 0:
            self.nop(need)

    def I(self, text):
        text = text.strip()
        parts = text.split(None, 1)
        op = parts[0]
        rest = parts[1] if len(parts) > 1 else ""
        ops = []
        cur = ""
        depth = 0
        for ch in rest:
            if ch in "[(":
                depth += 1
            if ch in "])":
                depth -= 1
            if ch == "," and depth == 0:
                ops.append(cur.strip())
                cur = ""
            else:
                cur += ch
        if cur.strip():
            ops.append(cur.strip())
        mods = ""
        if ops:
            sp = ops[-1].split(None, 1)
            ops[-1] = sp[0]
            mods = sp[1] if len(sp) > 1 else ""
        allregs = [r for o in ops for r in _regs(o)]
        for k, i in allregs:
            if k == "v":
                self.maxv = max(self.maxv, i + 1)
            if k == "s" and i < 104:
                self.maxs = max(self.maxs, i + 1)

        kind = "other"
        w, r, c = [], [], []
        dpp_r = []
        perm_r = []
        rl_r = []
        if op.startswith("v_mfma"):
            kind = "mfma"
            w = _regs(ops[0])
            r = _regs(ops[1]) + _regs(ops[2])
            c = _regs(ops[3])
        elif op.startswith("v_permlane") or op == "v_swap_b32":
            kind = "valu"
            w = _regs(ops[0]) + _regs(ops[1])
            r = list(w)
            if op.startswith("v_permlane"):
                perm_r = list(w)
        elif op.startswith("v_readfirstlane") or op.startswith("v_readlane"):
            kind = "valu"
            w = _regs(ops[0])
            r = [x for o in ops[1:] for x in _regs(o)]
            rl_r = _regs(ops[1])
        elif op.startswith("v_"):
            kind = "trans" if op.replace("_e32", "").replace("_e64", "") in TRANS else "valu"
            w = _regs(ops[0])
            r = [x for o in ops[1:] for x in _regs(o)]
            if op.startswith("v_fmac") or "_dpp" in op:
                r += w
            if "_dpp" in op:
                dpp_r = _regs(ops[1])
            if op.startswith("v_cndmask") and len(ops) == 3:
                r += _regs("vcc")
        elif op.startswith("buffer_load") or op.startswith("global_load"):
            kind = "load"
            w = _regs(ops[0])
            r = [x for o in ops[1:] for x in _regs(o)]
        elif op.startswith("buffer_store") or op.startswith("global_store") or op.startswith("buffer_atomic"):
            kind = "store"
            r = [x for o in ops for x in _regs(o)]
            c = _regs(ops[0])
        elif op.startswith("ds_read"):
            kind = "dsr"
            w = _regs(ops[0])
            r = [x for o in ops[1:] for x in _regs(o)]
        elif op.startswith("ds_"):
            kind = "dsw"
            r = [x for o in ops for x in _regs(o)]
        elif op.startswith("s_"):
            kind = "salu"

        isvalu = kind in ("valu", "trans")
        ismem = kind in ("load", "store", "dsr", "dsw")
        need = 0
        W, R, C = set(w), set(r), set(c)
        for h in self.hist:
            hw = h["w"]
            req = 0
            if h["kind"] in ("valu", "trans"):
                vw = {x for x in hw if x[0] == "v"}
                sw = {x for x in hw if x[0] == "s"}
                if kind == "mfma" and vw & (R | C):
                    req = max(req, 2)
                if vw & set(dpp_r):
                    req = max(req, 2)
                if vw & set(perm_r):
                    req = max(req, 2)
                if vw & set(rl_r):
                    req = max(req, 1)
                if h["kind"] == "trans" and kind != "trans" and (isvalu or ismem or kind == "mfma") and vw & (R | C):
                    req = max(req, 1)
                if sw & R:
                    if isvalu or kind == "mfma":
                        req = max(req, 2)
                    if kind in ("load", "store"):
                        req = max(req, 5)
            elif h["kind"] == "mfma":
                if kind == "mfma":
                    if hw & C:
                        req = max(req, 0 if hw == C else 6)
                    if hw & R:
                        req = max(req, 8)
                    if not self.allow_mfma_waw:
                        if hw & W and hw != W:
                            req = max(req, 8)
                        if hw & W and not (hw == C):
                            req = max(req, 8)
                elif isvalu or ismem:
                    if hw & (R | W):
                        req = max(req, 8)
                    if (isvalu or kind in ("load", "dsr")) and h["c"] & W:
                        req = max(req, 3)
            elif h["kind"] == "store":
                if len(h["c"]) >= 3 and h["c"] & W:
                    req = max(req, 2)
            need = max(need, req - h["age"])
        if need > 0:
            self.nop(need)
        self.lines.append("    " + text)
        self._advance(1)
        if op == "s_nop":
            self._advance(int(ops[0], 0))
        self.hist.append(dict(kind=kind, w=W, r=R, c=C, age=0))

    def text(self):
        return "\n".join(self.lines) + "\n"
```

```python
import sys, os, math, struct
sys.path.insert(0, os.path.dirname(os.path.abspath(__file__)))
from asmlib import Asm

NAME = "interleave_layers__sliding_block_cached__sliding_block_cached__decode"

DEFAULTS = dict(
    ts=0,
    fast=1,
    dx=8,
    da=3, db=3,
    kq=14,
    bstart=1,
    prio=1,
    gsleep=1,
    pgap=1, dwq=4, psleep=2, khint=11, hintmax=40, kdelay=0, nb0=4, pf=0, pfd=3, pfdelay=0, cpf=1, db1=1, nb1=0,
)

QBUF = 0x000000
OBUF = 0x080000
SBUF = 0x0C0000
MLBUF, CSBUF, STBUF = SBUF, SBUF + 0x2000, SBUF + 0x6000
XBUF = 0x140000
Q1BUF = 0x200000
GFLAGS = 0x2B0000
PFLAGS = 0x2C0000
FLAGS2 = 0x2D0000
FLAGS = 0x2E0000
EPOCH = 0x2F0000
TSBUF = 0x300000
WS_BYTES = 0x400000
OOB = 0x40000000

FQX, FAQ, FOX, FOP, FISS, FWX, FST, FAP, FAO, GO, GOX, ARM, WGO = (
    0x00, 0x10, 0x20, 0x30, 0x40, 0x60, 0x80, 0x90, 0xB0, 0xF0, 0xF4, 0xF8, 0xFC)
FVX = 0x100
FHINT = 0x140
ST1 = 0x180
MLL = 0x200
LLL = 0x240
QL = 0x400
OL2 = 0x800
XL = 0xC00
PL = 0x1000
XS = 0x1000
VX = 0x4000
WX = 0x4000
LDS_BYTES = 0x14000

SRD_WS, SRD_M0, SRD_M1, SRD_X = "s[4:7]", "s[8:11]", "s[12:15]", "s[44:47]"
sW, sRole, sG, sI, sL, sPar, sBud, sSelLo, sSelHi, sMode = (
    "s42", "s43", "s48", "s49", "s50", "s51", "s52", "s53", "s54", "s55")
sCls, sU = "s3", "s73"
KA = dict(A_x=16, A_k=18, A_v=20, A_wq=22, A_wo=24, B_x=26, B_k=28, B_v=30, B_wq=32, B_wo=34,
          out=36, dbg=38, ws=40)
MASK0 = 20
TS0 = 76
NTS = 13


def f32bits(x):
    return struct.unpack("<I", struct.pack("<f", x))[0]


def vr(a, n):
    return "v[%d:%d]" % (a, a + n - 1)


class Gen:
    def __init__(self, **opt):
        self.o = dict(DEFAULTS)
        self.o.update(opt)
        self.a = Asm()
        self.stubs = []

    def ts(self, k):
        if self.o["ts"] == 9 and k != 0:
            return
        if self.o["ts"]:
            assert k < 12
            if k == 0:
                self.a.I("s_memrealtime s[%d:%d]" % (TS0, TS0 + 1))
                self.a.I("s_memtime s[%d:%d]" % (TS0 + 24, TS0 + 25))
            else:
                self.a.I("s_memtime s[%d:%d]" % (TS0 + 2 * k, TS0 + 2 * k + 1))

    def ts_layer(self, k):
        self.ts(k)

    def ts_save(self):
        a = self.a
        if self.o["ts"] in (0, 9):
            return
        ln = a.newlabel("LT")
        a.I("s_waitcnt lgkmcnt(0)")
        a.I("s_cmp_lg_u32 s%d, 0" % (TS0 + 2 * 5))
        a.I("s_cbranch_scc1 %s" % ln)
        for k in range(8, 12):
            a.I("s_mov_b64 s[%d:%d], s[%d:%d]" % (TS0 + 2 * (k - 4), TS0 + 2 * (k - 4) + 1, TS0 + 2 * k, TS0 + 2 * k + 1))
        a.label(ln)

    def srd_sel(self, srd, pa, pb, nbytes):
        a = self.a
        b = int(srd[2:srd.index(":")])
        a.I("s_cselect_b32 s%d, s%d, s%d" % (b, KA[pb], KA[pa]))
        a.I("s_cselect_b32 s%d, s%d, s%d" % (b + 1, KA[pb] + 1, KA[pa] + 1))
        a.I("s_mov_b32 s%d, 0x%x" % (b + 2, nbytes))
        a.I("s_mov_b32 s%d, 0x00020000" % (b + 3))

    def srd(self, srd, ptr, nbytes):
        a = self.a
        b = int(srd[2:srd.index(":")])
        a.I("s_mov_b32 s%d, s%d" % (b, KA[ptr]))
        a.I("s_mov_b32 s%d, s%d" % (b + 1, KA[ptr] + 1))
        a.I("s_mov_b32 s%d, 0x%x" % (b + 2, nbytes))
        a.I("s_mov_b32 s%d, 0x00020000" % (b + 3))

    def sacc(self, dst, terms, const=0):
        a = self.a
        first = True
        for reg, sh in terms:
            tgt = "s56" if first else "s57"
            if sh:
                a.I("s_lshl_b32 %s, %s, %d" % (tgt, reg, sh))
            else:
                a.I("s_mov_b32 %s, %s" % (tgt, reg))
            if not first:
                a.I("s_add_u32 s56, s56, s57")
            first = False
        a.I("s_add_u32 %s, s56, 0x%x" % (dst, const))

    def prio(self, p):
        if self.o["prio"]:
            self.a.I("s_setprio %d" % p)

    def stub(self, lines):
        l = self.a.newlabel("ST")
        self.stubs.append((l, lines))
        return l

    def retry_stub(self, back, sleep=0, pre=()):
        lines = list(pre)
        if sleep:
            lines.append("s_sleep %d" % sleep)
        lines += ["s_sub_u32 %s, %s, 1" % (sBud, sBud), "s_cbranch_scc0 %s" % back, "s_branch L_end"]
        return self.stub(lines)

    def bail(self, back):
        a = self.a
        a.I("s_sub_u32 %s, %s, 1" % (sBud, sBud))
        a.I("s_cbranch_scc0 %s" % back)
        a.I("s_branch L_end")

    def lds_wait_ge(self, vaddr, off, sval, vt, sleep=1):
        a = self.a
        l0 = a.newlabel("LW")
        a.label(l0)
        a.I("ds_read_b32 %s, %s offset:%d" % (vt, vaddr, off))
        a.I("s_waitcnt lgkmcnt(0)")
        a.I("v_cmp_gt_u32 vcc, %s, %s" % (sval, vt))
        a.I("s_cbranch_vccnz %s" % self.retry_stub(l0, sleep))

    def tagtree(self, regs, vt, vt2, par):
        a = self.a
        regs = list(regs)
        n = len(regs)
        if n == 1:
            a.I("v_bitop3_b32 %s, %s, %s, 1 bitop3:0x28" % (vt, regs[0], par))
            return
        if n < 4:
            a.I("v_bitop3_b32 %s, %s, %s, %s bitop3:0x7e" % (vt, regs[0], regs[1], par))
            for x in regs[2:]:
                a.I("v_bitop3_b32 %s, %s, %s, %s bitop3:0xf6" % (vt, vt, x, par))
            a.I("v_and_b32 %s, 1, %s" % (vt, vt))
            return
        h = n // 2
        A, B = regs[:h], regs[h:]
        a.I("v_bitop3_b32 %s, %s, %s, %s bitop3:0x7e" % (vt, A[0], A[1], par))
        a.I("v_bitop3_b32 %s, %s, %s, %s bitop3:0x7e" % (vt2, B[0], B[1], par))
        A, B = A[2:], B[2:]
        for i in range(max(len(A), len(B))):
            if i < len(A):
                a.I("v_bitop3_b32 %s, %s, %s, %s bitop3:0xf6" % (vt, vt, A[i], par))
            if i < len(B):
                a.I("v_bitop3_b32 %s, %s, %s, %s bitop3:0xf6" % (vt2, vt2, B[i], par))
        a.I("v_bitop3_b32 %s, %s, %s, 1 bitop3:0xa8" % (vt, vt, vt2))

    def poll(self, loads, vt, vt2, par, sleep=0):
        a = self.a
        l0 = a.newlabel("LP")
        a.label(l0)
        for ld, _ in loads:
            a.I(ld)
        a.I("s_waitcnt vmcnt(0)")
        self.tagtree([t for _, tg in loads for t in tg], vt, vt2, par)
        a.I("v_cmp_ne_u32 vcc, 0, %s" % vt)
        a.I("s_cbranch_vccnz %s" % self.retry_stub(l0, sleep, pre=["s_mov_b64 exec, vcc"]))
        a.I("s_mov_b64 exec, -1")

    def exchange(self, flagoff, vf, reads, sval=None, shadow=None, nshadow_ds=0, vbase="v13", sleep=0, optimistic=True, wait=True):
        a = self.a
        chk = ["v_min3_u32 v%d, v%d, v%d, v%d" % (vf, vf, vf + 1, vf + 2),
               "v_min_u32 v%d, v%d, v%d" % (vf, vf, vf + 3),
               "v_cmp_gt_u32 vcc, %s, v%d" % (sval or sL, vf)]
        rdf = "ds_read_b128 %s, %s offset:%d" % (vr(vf, 4), vbase, flagoff)
        if reads and optimistic:
            l1, ls = a.newlabel("LXD"), a.newlabel("LXS")
            a.I(rdf)
            for r in reads:
                a.I(r)
            for x in (shadow or []):
                a.I(x)
            a.I("s_waitcnt lgkmcnt(%d)" % (0 if self.o["ts"] not in (0, 9) else len(reads) + nshadow_ds))
            for x in chk:
                a.I(x)
            lines = ["s_sub_u32 %s, %s, 1" % (sBud, sBud), "s_cbranch_scc1 L_end", rdf, "s_waitcnt lgkmcnt(0)"] + chk
            lines += ["s_cbranch_vccnz %s" % ls] + list(reads) + ["s_branch %s" % l1]
            self.stubs.append((ls, lines))
            a.I("s_cbranch_vccnz %s" % ls)
            a.label(l1)
        else:
            l0 = a.newlabel("LX")
            a.label(l0)
            a.I(rdf)
            a.I("s_waitcnt lgkmcnt(0)")
            for x in chk:
                a.I(x)
            a.I("s_cbranch_vccnz %s" % self.retry_stub(l0, sleep))
            for r in reads:
                a.I(r)
        if reads and wait:
            a.I("s_waitcnt lgkmcnt(0)")

    def flag_set(self, vaddr, off, vval):
        self.a.I("ds_write_b32 %s, %s offset:%d" % (vaddr, vval, off))

    def mode_test(self):
        if self.o["fast"]:
            self.a.I("s_cmp_eq_u32 %s, 0" % sMode)

    def moded_stores(self, stores, tested=False):
        a = self.a
        if not self.o["fast"]:
            for s in stores:
                a.I(s + " sc1")
            return
        l1 = a.newlabel("LSD")
        if not tested:
            self.mode_test()
        a.I("s_cbranch_scc1 %s" % self.stub(["s_nop 7"] + [x + " sc1" for x in stores] + ["s_branch %s" % l1]))
        for s in stores:
            a.I(s)
        a.label(l1)

    def transpose(self, stg, dst, ndw):
        a = self.a
        for j in range(2 * ndw):
            u = j >> 1
            sel = sSelHi if (j & 1) else sSelLo
            for t in range(4):
                a.I("v_perm_b32 v%d, v%d, v%d, %s" % (dst + 4 * j + t, stg + ndw * (2 * t + 1) + u, stg + ndw * (2 * t) + u, sel))

    def wait_go(self, vt):
        a = self.a
        self.lds_wait_ge("v13", GO, "1", vt, sleep=1)
        a.I("v_readfirstlane_b32 %s, %s" % (sMode, vt))
        a.I("s_lshr_b32 %s, %s, 1" % (sMode, sMode))

    def epoch_tags(self):
        a = self.a
        a.I("s_add_u32 s74, s74, 1")
        a.I("s_addc_u32 s75, s75, 0")
        for k in range(4):
            a.I("s_lshr_b64 s[56:57], s[74:75], %d" % (15 * k))
            a.I("s_and_b32 s57, s56, 0x4000")
            a.I("s_and_b32 s56, s56, 0x3fff")
            a.I("s_lshl_b32 s57, s57, 1")
            a.I("s_or_b32 s%d, s56, s57" % (60 + k))

    def load_epoch(self):
        a = self.a
        a.I("s_add_u32 s56, s%d, 0x%x" % (KA["ws"], EPOCH))
        a.I("s_addc_u32 s57, s%d, 0" % (KA["ws"] + 1))
        a.I("s_load_dwordx2 s[74:75], s[56:57], 0")

    def selector(self, dst, val, t0, t1):
        a = self.a
        a.I("v_and_b32 %s, 1, v1" % t0)
        a.I("v_lshlrev_b32 %s, 4, %s" % (t0, t0))
        a.I("v_mov_b32 %s, 0x%x" % (t1, val))
        a.I("v_lshlrev_b32 %s, %s, %s" % (t0, t0, t1))
        a.I("v_bfe_u32 %s, v1, 1, 2" % t1)
        for t in range(4):
            a.I("v_cmp_eq_u32 vcc, %d, %s" % (t, t1))
            a.I("v_cndmask_b32 v%d, v13, %s, vcc" % (dst + t, t0))

    def poll2(self, loads, vt, vt2, par, on_first=()):
        a = self.a
        l0 = a.newlabel("LP")
        tags = [t for _, tg in loads for t in tg]
        a.label(l0)
        for ld, _ in loads:
            a.I(ld)
        a.I("s_waitcnt vmcnt(0)")
        self.tagtree(tags, vt, vt2, par)
        a.I("v_cmp_ne_u32 vcc, 0, %s" % vt)
        lt = a.newlabel("LPT")
        lines = ["s_sub_u32 %s, %s, 1" % (sBud, sBud), "s_cbranch_scc1 L_end",
                 "s_cmp_eq_u64 vcc, -1", "s_cbranch_scc0 %s" % lt,
                 "s_sleep %d" % self.o["psleep"], "s_branch %s" % l0,
                 lt + ":", "s_setprio 3"] + list(on_first) + ["s_mov_b64 exec, vcc", "s_branch %s" % l0]
        a.I("s_cbranch_vccnz %s" % self.stub(lines))
        a.I("s_mov_b64 exec, -1")
        self.prio(3)
        for x in on_first:
            a.I(x)

    def prologue(self):
        a = self.a
        a.I("s_cmp_ge_u32 s2, 256")
        a.I("s_cbranch_scc1 L_exit")
        a.I("s_load_dwordx16 s[16:31], s[0:1], 0")
        a.I("s_load_dwordx8 s[32:39], s[0:1], 64")
        a.I("s_load_dwordx2 s[40:41], s[0:1], 96")
        self.ts(0)
        a.I("v_and_b32 v1, 63, v0")
        a.I("v_lshrrev_b32 v2, 6, v0")
        a.I("v_mov_b32 v13, 0")
        a.I("v_readfirstlane_b32 s58, v2")
        a.I("v_lshlrev_b32 v5, 2, v1")
        a.I("v_lshlrev_b32 v4, 4, v1")
        a.I("v_and_b32 v2, 15, v1")
        a.I("v_lshrrev_b32 v3, 4, v1")
        a.I("s_and_b32 %s, s58, 3" % sW)
        a.I("s_lshr_b32 %s, s58, 2" % sRole)
        a.I("s_and_b32 %s, s2, 7" % sG)
        a.I("s_lshr_b32 %s, s2, 3" % sI)
        a.I("s_and_b32 %s, %s, 1" % (sCls, sI))
        a.I("s_lshr_b32 %s, %s, 1" % (sU, sI))
        a.I("s_mov_b32 %s, 0x10000" % sBud)
        a.I("s_mov_b32 %s, 0x05040100" % sSelLo)
        a.I("s_mov_b32 %s, 0x07060302" % sSelHi)
        a.I("s_mov_b32 %s, 0" % sMode)
        a.I("s_mov_b32 %s, 1" % sL)
        a.I("s_lshl_b32 s56, %s, 2" % sW)
        a.I("v_mov_b32 v14, s56")
        if self.o["cpf"]:
            a.I("s_cmp_lg_u32 %s, 3" % sRole)
            a.I("s_cbranch_scc1 L_nocpf")
            a.I("s_getpc_b64 s[44:45]")
            a.label("L_pc0")
            a.I("s_mov_b32 s46, L_codeend-L_pc0")
            a.I("s_mov_b32 s47, 0x00020000")
            a.I("s_lshl_b32 s56, %s, 12" % sW)
            for k in range(4):
                a.I("buffer_load_dwordx4 v[40:43], v4, s[44:47], s56 offen offset:%d" % (1024 * k))
            if self.o["cpf"] > 1:
                a.I("s_add_u32 s56, s56, 16384")
                for k in range(4):
                    a.I("buffer_load_dwordx4 v[40:43], v4, s[44:47], s56 offen offset:%d" % (1024 * k))
            a.label("L_nocpf")
        a.I("s_cmp_lg_u32 s58, 0")
        a.I("s_cbranch_scc1 L_noinit")
        a.I("ds_write_b32 v5, v13")
        a.I("ds_write_b32 v5, v13 offset:256")
        a.I("v_mov_b32 v6, 0x3f803f80")
        a.I("v_and_b32 v7, 0x7c, v5")
        a.I("ds_write_b32 v7, v6 offset:%d" % (XL + 4 * 128))
        a.I("v_mov_b32 v6, -1")
        a.I("ds_write_b32 v5, v6 offset:%d" % MLL)
        a.I("ds_write_b32 v5, v6 offset:%d" % (MLL + 256))
        a.label("L_noinit")
        a.I("s_waitcnt lgkmcnt(0)")
        a.I("s_barrier")
        self.srd(SRD_WS, "ws", WS_BYTES)
        a.I("s_cmp_eq_u32 s58, 13")
        a.I("s_cbranch_scc1 L_HS")
        a.label("L_roles")
        a.I("s_lshl_b32 s56, %s, 2" % sCls)
        a.I("s_add_u32 s56, s56, %s" % sRole)
        a.I("s_cmp_lt_u32 s56, 2")
        a.I("s_cbranch_scc1 L_PQ")
        a.I("s_cmp_lt_u32 s56, 4")
        a.I("s_cbranch_scc1 L_PO")

    def att(self):
        a, o = self.a, self.o
        vKA, vKB, vV, vQLR, vOP, vMLP, vMLW, vPW, vPR, vMLR, vF, vFW = (
            "v6", "v7", "v8", "v9", "v10", "v11", "v15", "v5", "v16", "v17", "v2", "v3")
        TM = 12
        M_, L_ = 18, 19
        K0, V0, G0, P0, S0 = 20, 52, 84, 116, 120
        sKV, sOP, sMLP, sRow, sKV2, sSgn, sQuad = "s64", "s65", "s66", "s67", "s69", "s70", "s71"
        a.label("L_ATT")
        a.I("s_and_b32 %s, %s, 1" % (sQuad, sRole))
        a.I("s_lshr_b32 %s, %s, 1" % (sPar, sRole))
        a.I("s_lshl_b32 %s, %s, 1" % (sRow, sU))
        a.I("s_add_u32 %s, %s, %s" % (sRow, sRow, sQuad))
        a.I("s_add_u32 %s, %s, 1" % (sL, sPar))
        a.I("s_cmp_lg_u32 %s, 0" % sPar)
        self.srd_sel(SRD_M0, "A_k", "B_k", 32 << 20)
        self.srd_sel(SRD_M1, "A_v", "B_v", 32 << 20)
        a.I("s_lshr_b32 s58, %s, 3" % sRow)
        a.I("s_and_b32 s59, %s, 7" % sRow)
        self.sacc(sKV, [("s58", 23), (sG, 20), ("s59", 15), (sW, 13)], 3072 * 256)
        a.I("s_add_u32 %s, %s, 4096" % (sKV2, sKV))
        a.I("v_lshlrev_b32 v16, 4, v2")
        a.I("v_lshl_add_u32 %s, v3, 10, v16" % vV)
        a.I("v_mov_b32 v18, 1")
        a.I("s_lshl_b32 s56, %s, 4" % sQuad)
        a.I("v_add_u32 v19, s56, v14")
        lds_ = []
        for q in range(8):
            lds_.append("buffer_load_dwordx4 %s, v4, %s, %s offen offset:%d nt" % (vr(K0 + 4 * q, 4), SRD_M0, sKV2 if q >= 4 else sKV, (q & 3) * 1024))
        for i in range(8):
            so = sKV2 if i >= 4 else sKV
            lds_.append("buffer_load_dwordx4 %s, %s, %s, %s offen offset:%d nt" % (vr(V0 + 4 * i, 4), vV, SRD_M1, so, (i & 3) * 256))
        a.I("s_cmp_lg_u32 %s, 0" % sPar)
        a.I("s_cbranch_scc1 L_att_sb")
        if o["kdelay"]:
            a.I("s_sleep %d" % o["kdelay"])
        self.ts(1)
        for k, ld in enumerate(lds_):
            if k > o["da"]:
                a.I("s_waitcnt vmcnt(%d)" % o["da"])
            if k == o["kq"]:
                a.I("ds_write_b32 v19, v18 offset:%d" % FISS)
            if k == o["khint"]:
                a.I("ds_write_b32 v19, v18 offset:%d" % FHINT)
            a.I(ld)
        a.I("s_branch L_att_se")
        a.label("L_att_sb")
        self.load_epoch()
        a.I("s_cmp_lg_u32 %s, 0" % sQuad)
        a.I("s_cbranch_scc1 L_att_b1")
        self.collect_first(G0, S0)
        a.I("s_branch L_att_b2")
        a.label("L_att_b1")
        a.I("s_cmp_lg_u32 %s, 0" % sW)
        a.I("s_cbranch_scc1 L_att_b2")
        self.lds_wait_ge("v13", FHINT, "1", "v16", sleep=1)
        a.I("s_add_u32 s74, s74, 1")
        a.I("s_addc_u32 s75, s75, 0")
        a.I("v_mov_b32 v16, s74")
        a.I("v_mov_b32 v17, s75")
        self.sacc("s58", [(sG, 12), (sI, 7)], GFLAGS)
        a.I("s_mov_b64 exec, 1")
        a.I("buffer_store_dwordx2 v[16:17], v13, %s, s58 offen" % SRD_WS)
        a.I("s_mov_b64 exec, -1")
        a.label("L_att_b2")
        if o["bstart"] == 2:
            self.exchange(FAP, S0, [], sval="1", sleep=2)
            self.exchange(FAP + 16, S0, [], sval="1", sleep=1)
        elif o["bstart"] in (1, 3):
            self.exchange(FAQ, S0, [], sval="1", sleep=2)
        else:
            self.lds_wait_ge("v19", FISS, "1", "v16", sleep=2)
        self.ts(1)
        for k, ld in enumerate(lds_):
            d = o["db1"] if k < o["nb1"] else o["db"]
            if o["bstart"] == 3 and k == o["nb0"]:
                self.exchange(FAP, S0, [], sval="1", sleep=1)
                self.exchange(FAP + 16, S0, [], sval="1", sleep=1)
            if k > d:
                a.I("s_waitcnt vmcnt(%d)" % d)
            a.I(ld)
        if o["bstart"] < 2:
            self.exchange(FAP, S0, [], sval="1", sleep=2)
            self.exchange(FAP + 16, S0, [], sval="1", sleep=1)
        a.label("L_att_se")
        self.ts(2)
        a.I("s_lshl_b32 s58, %s, 4" % sRole)
        a.I("v_add_u32 v0, s58, v14")
        a.I("s_mov_b32 %s, 0" % sSgn)
        self.sacc(sOP, [(sG, 15), (sRow, 8), (sW, 6)], OBUF)
        self.sacc(sMLP, [(sG, 15), (sRow, 6)], MLBUF)
        a.I("v_lshlrev_b32 v16, 2, v2")
        a.I("v_lshl_add_u32 %s, v3, 13, v16" % vOP)
        a.I("v_and_b32 v16, 3, v1")
        a.I("v_cmp_eq_u32 vcc, 0, v16")
        a.I("v_cndmask_b32 v%d, 0, 1, vcc" % TM)
        a.I("v_lshrrev_b32 v18, 2, v2")
        a.I("v_lshlrev_b32 v19, 4, v3")
        a.I("v_lshl_add_u32 %s, v18, 8, v19" % vQLR)
        a.I("s_lshl_b32 s56, %s, 7" % sRole)
        a.I("v_add_u32 %s, s56, v19" % vMLR)
        a.I("v_lshl_add_u32 %s, v18, 4, v14" % vMLW)
        a.I("v_add_u32 %s, s56, %s" % (vMLW, vMLW))
        a.I("s_lshl_b32 s56, %s, 12" % sQuad)
        a.I("v_add_u32 %s, s56, v4" % vPR)
        a.I("s_lshl_b32 s56, %s, 10" % sW)
        a.I("v_add_u32 %s, s56, %s" % (vPW, vPR))
        a.I("v_lshlrev_b32 v19, 3, v2")
        a.I("v_lshl_add_u32 v19, v3, 11, v19")
        a.I("s_cmp_eq_u32 %s, 0" % sW)
        a.I("s_cselect_b32 s56, 8, 0")
        a.I("v_cmp_gt_u32 vcc, s56, v2")
        a.I("v_mov_b32 v1, 0x%x" % OOB)
        a.I("v_cndmask_b32 %s, v1, v19, vcc" % vMLP)
        self.sacc("s60", [(sQuad, 15), (sW, 13)], VX)
        self.sacc("s61", [(sQuad, 15), (sW, 11)], VX)
        a.I("v_xor_b32 v19, v2, v3")
        a.I("v_lshlrev_b32 v19, 4, v19")
        a.I("v_add_u32 v19, s60, v19")
        a.I("v_lshl_add_u32 %s, v3, 8, v19" % vKA)
        a.I("v_lshl_add_u32 %s, v2, 8, v19" % vKB)
        a.I("v_mov_b32 %s, s58" % vF)
        a.I("v_mov_b32 %s, v0" % vFW)
        a.I("s_waitcnt vmcnt(8)")
        for q in range(4):
            a.I("v_xor_b32 v1, %d, %s" % (64 * q, vKA))
            a.I("ds_write_b128 v1, %s offset:%d" % (vr(K0 + 4 * q, 4), 1024 * q))
            a.I("ds_write_b128 v1, %s offset:%d" % (vr(K0 + 4 * (q + 4), 4), 1024 * (q + 4)))
        for st in range(4):
            a.I("v_xor_b32 v1, %d, %s" % (64 * st, vKB))
            a.I("ds_read_b128 %s, v1" % vr(K0 + 4 * st, 4))
            a.I("ds_read_b128 %s, v1 offset:4096" % vr(K0 + 4 * (4 + st), 4))
        a.I("s_waitcnt vmcnt(0) lgkmcnt(0)")
        self.ts(3)
        self.transpose(V0, G0, 4)
        a.I("v_add_u32 v1, s60, v4")
        for j in range(8):
            a.I("ds_write_b128 v1, %s offset:%d" % (vr(G0 + 4 * j, 4), 1024 * j))
        a.I("v_mov_b32 v0, 1")
        self.flag_set(vFW, FVX, "v0")
        a.I("v_add_u32 v1, s61, v4")
        self.exchange(FVX, S0, ["ds_read_b128 %s, v1 offset:%d" % (vr(V0 + 4 * (2 * kb + jj), 4), 8192 * kb + 1024 * jj) for kb in range(4) for jj in range(2)],
                      sval="1", vbase=vF, optimistic=False)
        self.wait_go("v1")

        a.label("L_att_loop")
        self.prio(0)
        a.I("v_mov_b32 v0, %s" % sL)
        self.lds_wait_ge("v13", ARM, sL, "v1", sleep=o["gsleep"])
        self.prio(3)
        QO = G0 + 16
        self.exchange(FAQ, S0, ["ds_read_b128 %s, %s offset:%d" % (vr(QO + 4 * s, 4), vQLR, QL + 64 * s) for s in range(4)], optimistic=False, wait=False)
        self.ts_layer(8)
        for T in range(2):
            for s in range(4):
                if T == 0:
                    a.I("s_waitcnt lgkmcnt(%d)" % (0 if o["ts"] not in (0, 9) else 3 - s))
                a.I("v_mfma_f32_16x16x32_bf16 %s, %s, %s, %s" % (vr(S0 + 4 * T, 4), vr(K0 + (4 * T + s) * 4, 4), vr(QO + 4 * s, 4), "0" if s == 0 else vr(S0 + 4 * T, 4)))
        a.I("v_max3_f32 v%d, v%d, v%d, v%d" % (M_, S0, S0 + 1, S0 + 2))
        a.I("v_max_f32 v%d, v%d, v%d" % (M_, M_, S0 + 3))
        a.I("v_max3_f32 v%d, v%d, v%d, v%d" % (M_, M_, S0 + 4, S0 + 5))
        a.I("v_max3_f32 v%d, v%d, v%d, v%d" % (M_, M_, S0 + 6, S0 + 7))
        a.I("v_mov_b32 v1, v%d" % M_)
        a.I("v_permlane32_swap_b32 v%d, v1" % M_)
        a.I("v_max_f32 v%d, v%d, v1" % (M_, M_))
        a.I("v_mov_b32 v1, v%d" % M_)
        a.I("v_permlane16_swap_b32 v%d, v1" % M_)
        a.I("v_max_f32 v%d, v%d, v1" % (M_, M_))
        for k in range(4):
            a.I("v_pk_add_f32 %s, %s, %s op_sel_hi:[1,0] neg_lo:[0,1] neg_hi:[0,1]" % (vr(S0 + 2 * k, 2), vr(S0 + 2 * k, 2), vr(M_, 2)))
        a.I("ds_write_b32 %s, v%d offset:%d" % (vMLW, M_, MLL))
        for k in range(8):
            a.I("v_exp_f32 v%d, v%d" % (S0 + k, S0 + k))
        for k in range(4):
            a.I("v_cvt_pk_bf16_f32 v%d, v%d, v%d" % (P0 + k, S0 + 2 * k, S0 + 2 * k + 1))
        a.I("ds_write_b128 %s, %s offset:%d" % (vPW, vr(P0, 4), PL))
        self.flag_set(vFW, FAO, "v0")
        a.I("v_pk_add_f32 %s, %s, %s" % (vr(S0, 2), vr(S0, 2), vr(S0 + 2, 2)))
        a.I("v_pk_add_f32 %s, %s, %s" % (vr(S0 + 4, 2), vr(S0 + 4, 2), vr(S0 + 6, 2)))
        a.I("v_pk_add_f32 %s, %s, %s" % (vr(S0, 2), vr(S0, 2), vr(S0 + 4, 2)))
        a.I("v_add_f32 v%d, v%d, v%d" % (L_, S0, S0 + 1))
        PR = [P0, G0 + 20, G0 + 24, G0 + 28]
        MF, LLr = S0, S0 + 4
        reads = ["ds_read_b128 %s, %s offset:%d" % (vr(MF, 4), vMLR, MLL)]
        reads += ["ds_read_b128 %s, %s offset:%d" % (vr(PR[kb], 4), vPR, PL + 1024 * kb) for kb in range(4)]
        shadow = [
            "v_mov_b32 v1, v%d" % L_,
            "v_permlane32_swap_b32 v%d, v1" % L_,
            "v_add_f32 v%d, v%d, v1" % (L_, L_),
            "v_mov_b32 v1, v%d" % L_,
            "v_permlane16_swap_b32 v%d, v1" % L_,
            "v_add_f32 v%d, v%d, v1" % (L_, L_),
            "v_and_b32 v%d, 0x7fffffff, v%d" % (L_, L_),
            "v_or_b32 v%d, %s, v%d" % (L_, sSgn, L_),
            "ds_write_b32 %s, v%d offset:%d" % (vMLW, L_, LLL),
        ]
        self.exchange(FAO, LLr, reads, shadow=shadow, nshadow_ds=1, vbase=vF)
        a.I("ds_read_b128 %s, %s offset:%d" % (vr(LLr, 4), vMLR, LLL))
        DD = [G0 + 2 * x for x in range(8)]
        fops = [
            "v_max3_f32 v%d, v%d, v%d, v%d" % (M_, MF, MF + 1, MF + 2),
            "v_max_f32 v%d, v%d, v%d" % (M_, M_, MF + 3),
            "v_pk_add_f32 %s, %s, %s op_sel_hi:[1,0] neg_lo:[0,1] neg_hi:[0,1]" % (vr(MF, 2), vr(MF, 2), vr(M_, 2)),
            "v_pk_add_f32 %s, %s, %s op_sel_hi:[1,0] neg_lo:[0,1] neg_hi:[0,1]" % (vr(MF + 2, 2), vr(MF + 2, 2), vr(M_, 2)),
            "v_exp_f32 v%d, v%d" % (MF, MF),
            "v_exp_f32 v%d, v%d" % (MF + 1, MF + 1),
            "v_exp_f32 v%d, v%d" % (MF + 2, MF + 2),
            "v_exp_f32 v%d, v%d" % (MF + 3, MF + 3),
        ]
        a.allow_mfma_waw = True
        for x in range(8):
            kb = x >> 1
            a.I("v_mfma_f32_16x16x32_bf16 %s, %s, %s, 0" % (vr(DD[x], 4), vr(PR[kb], 4), vr(V0 + 4 * x, 4)))
            for _ in range(2):
                if fops:
                    a.I(fops.pop(0))
        a.allow_mfma_waw = False
        ll = a.newlabel("LL")
        a.label(ll)
        a.I("s_waitcnt lgkmcnt(0)")
        a.I("v_bitop3_b32 v1, v%d, v%d, %s bitop3:0x7e" % (LLr, LLr + 1, sSgn))
        a.I("v_bitop3_b32 v1, v1, v%d, %s bitop3:0xf6" % (LLr + 2, sSgn))
        a.I("v_bitop3_b32 v1, v1, v%d, %s bitop3:0xf6" % (LLr + 3, sSgn))
        a.I("v_cmp_gt_i32 vcc, 0, v1")
        a.I("s_cbranch_vccnz %s" % self.retry_stub(ll, pre=["ds_read_b128 %s, %s offset:%d" % (vr(LLr, 4), vMLR, LLL)]))
        self.mode_test()
        a.I("v_mul_f32 v%d, v%d, v%d" % (L_, MF, LLr))
        OA, OB = P0, P0 + 1
        a.I("v_mul_f32 v%d, v%d, v%d" % (OA, MF, DD[0]))
        a.I("v_mul_f32 v%d, v%d, v%d" % (OB, MF, DD[1]))
        for kb in range(1, 4):
            a.I("v_fmac_f32 v%d, v%d, v%d" % (L_, MF + kb, LLr + kb))
            a.I("v_fmac_f32 v%d, v%d, v%d" % (OA, MF + kb, DD[2 * kb]))
            a.I("v_fmac_f32 v%d, v%d, v%d" % (OB, MF + kb, DD[2 * kb + 1]))
        a.I("v_and_b32 v%d, 0x7ffffffe, v%d" % (L_, L_))
        a.I("v_cvt_pk_bf16_f32 v%d, v%d, v%d" % (OA, OA, OB))
        a.I("v_or_b32 v%d, %s, v%d" % (L_, sPar, L_))
        a.I("v_bfi_b32 v%d, v%d, %s, v%d" % (OA, TM, sPar, OA))
        self.moded_stores([
            "buffer_store_dword v%d, %s, %s, %s offen" % (OA, vOP, SRD_WS, sOP),
            "buffer_store_dwordx2 %s, %s, %s, %s offen" % (vr(M_, 2), vMLP, SRD_WS, sMLP),
        ], tested=True)
        a.I("v_and_b32 v1, 31, %s" % vFW)
        self.flag_set("v1", FAP, "v0")
        self.ts_layer(9)
        a.I("s_brev_b32 %s, 1" % sSgn)
        a.I("s_cmp_eq_u32 %s, 4" % sL)
        a.I("s_cbranch_scc1 L_att_fin")
        a.I("s_add_u32 %s, %s, 1" % (sL, sL))
        a.I("s_cmp_lg_u32 %s, 0" % sQuad)
        a.I("s_cbranch_scc1 L_att_nc")
        self.collect(G0, S0, P0)
        a.label("L_att_nc")
        self.ts_save()
        a.I("s_add_u32 %s, %s, 1" % (sL, sL))
        a.I("s_cmp_le_u32 %s, 4" % sL)
        a.settle()
        a.I("s_cbranch_scc1 L_att_loop")
        a.I("s_branch L_end")
        a.label("L_att_fin")
        a.I("s_cmp_lg_u32 s2, 8")
        a.I("s_cbranch_scc1 L_end")
        a.I("s_or_b32 s56, %s, %s" % (sW, sQuad))
        a.I("s_cmp_lg_u32 s56, 0")
        a.I("s_cbranch_scc1 L_end")
        a.I("v_mov_b32 v18, s74")
        a.I("v_mov_b32 v19, s75")
        a.I("s_mov_b64 exec, 1")
        a.I("s_mov_b32 s58, 0x%x" % EPOCH)
        a.I("buffer_store_dwordx2 v[18:19], v13, %s, s58 offen sc1" % SRD_WS)
        a.I("s_branch L_end")

    QSC = f32bits(128 ** -0.5 * math.log2(math.e))

    def lane_ids(self, t):
        a = self.a
        a.I("v_lshrrev_b32 v%d, 4, v4" % t)
        a.I("v_and_b32 v%d, 15, v%d" % (t + 1, t))
        a.I("v_bfe_u32 v%d, v%d, 4, 1" % (t + 2, t))
        a.I("v_lshlrev_b32 v%d, 3, v%d" % (t + 2, t + 2))
        a.I("v_lshl_add_u32 v%d, v%d, 4, v%d" % (t + 2, t + 1, t + 2))
        a.I("s_lshl_b32 s56, %s, 8" % sW)
        a.I("v_add_u32 v%d, s56, v%d" % (t + 2, t + 2))

    def collect_first(self, G0, T8):
        a, o = self.a, self.o
        SE2, DQ, ID = G0 + 16, G0 + 24, G0 + 28
        self.lane_ids(ID)
        a.I("v_and_b32 v16, 7, v%d" % ID)
        a.I("v_mov_b32 v17, 1.0")
        for t in range(8):
            a.I("v_cmp_eq_u32 vcc, %d, v16" % t)
            a.I("v_cndmask_b32 v%d, v13, v17, vcc" % (SE2 + t))
        a.I("s_waitcnt lgkmcnt(0)")
        self.epoch_tags()
        a.I("s_lshr_b32 s58, %s, 2" % sU)
        self.sacc("s58", [(sG, 16), ("s58", 14), (sW, 12)], Q1BUF)
        a.I("v_mov_b32 v0, 1")
        a.I("ds_write_b32 v13, v0 offset:%d" % ARM)
        self.lds_wait_ge("v14", FISS, "1", "v16", sleep=2)
        self.prio(3)
        l0, l1 = a.newlabel("LQ"), a.newlabel("LQD")
        a.label(l0)
        for r in range(4):
            a.I("buffer_load_dwordx4 %s, v4, %s, s58 offen offset:%d sc1" % (vr(G0 + 4 * r, 4), SRD_WS, r * 1024))
        a.I("s_waitcnt vmcnt(0)")
        for k in range(4):
            a.I("v_bitop3_b32 v%d, v%d, v%d, s%d bitop3:0x7e" % (T8 + k, G0 + k, G0 + 4 + k, 60 + k))
            a.I("v_bitop3_b32 v%d, v%d, v%d, s%d bitop3:0x7e" % (T8 + 4 + k, G0 + 8 + k, G0 + 12 + k, 60 + k))
        a.I("v_or3_b32 v16, v%d, v%d, v%d" % (T8, T8 + 1, T8 + 2))
        a.I("v_or3_b32 v17, v%d, v%d, v%d" % (T8 + 3, T8 + 4, T8 + 5))
        a.I("v_or3_b32 v16, v16, v%d, v%d" % (T8 + 6, T8 + 7))
        a.I("v_or_b32 v16, v16, v17")
        a.I("v_and_b32 v16, 0xffff, v16")
        a.I("v_cmp_ne_u32 vcc, 0, v16")
        a.I("s_and_b64 exec, exec, vcc")
        a.I("s_cbranch_scc0 %s" % l1)
        a.I("s_sleep 1")
        self.bail(l0)
        a.label(l1)
        a.I("s_mov_b64 exec, -1")
        self.ts(11)
        for r in range(4):
            a.I("v_mfma_f32_16x16x32_bf16 %s, %s, %s, %s" % (vr(DQ, 4), vr(SE2 + 4 * (r >> 1), 4), vr(G0 + 4 * r, 4), "0" if r == 0 else vr(DQ, 4)))
        for k in range(4):
            a.I("v_mul_f32 v%d, 0x%x, v%d" % (DQ + k, self.QSC, DQ + k))
        a.I("v_cvt_pk_bf16_f32 v%d, v%d, v%d" % (DQ, DQ, DQ + 1))
        a.I("v_cvt_pk_bf16_f32 v%d, v%d, v%d" % (DQ + 1, DQ + 2, DQ + 3))
        a.I("ds_write_b64 v%d, %s offset:%d" % (ID + 2, vr(DQ, 2), QL))
        self.flag_set("v14", FAQ, "v0")
        self.prio(0)

    def collect(self, G0, S0, P0):
        a, o = self.a, self.o
        SEL, DQ, CS, ID, ST = G0 + 8, G0 + 12, G0 + 16, G0 + 20, G0 + 24
        vSTG = "v%d" % (G0 + 26)
        sParQ = "s59"
        self.prio(0)
        a.I("v_mov_b32 v0, %s" % sL)
        self.lane_ids(ID)
        a.I("v_mov_b32 v1, v%d" % ID)
        self.selector(SEL, 0x3f80, "v%d" % S0, "v%d" % (S0 + 1))
        a.I("v_and_b32 %s, 7, v1" % vSTG)
        a.I("v_lshlrev_b32 %s, 7, %s" % (vSTG, vSTG))
        a.I("s_xor_b32 s63, %s, 1" % sPar)
        a.I("s_lshr_b32 s58, %s, 2" % sU)
        self.sacc("s60", [("s63", 18), (sG, 15), ("s58", 13), (sW, 11)], QBUF)
        self.sacc("s61", [(sG, 15), ("s63", 10), ("s58", 3)], STBUF)
        self.sacc("s58", [(sG, 15), ("s63", 13), (sW, 11)], CSBUF)
        a.I("s_mov_b32 s63, 0")
        a.I("s_lshr_b32 %s, %s, 2" % (sParQ, sL))

        def gather_loads(sb):
            return [("buffer_load_dwordx4 %s, v4, %s, %s offen offset:%d sc1" % (vr(G0 + 4 * r, 4), SRD_WS, sb, r * 1024), ["v%d" % (G0 + 4 * r)]) for r in range(2)]

        t1, t2 = "v1", "v%d" % S0
        self.poll(gather_loads("s58"), t1, t2, "0", sleep=4)
        a.I("v_mfma_f32_16x16x32_bf16 %s, %s, %s, 0" % (vr(CS, 4), vr(SEL, 4), vr(G0, 4)))
        a.I("v_mfma_f32_16x16x32_bf16 %s, %s, %s, %s" % (vr(CS, 4), vr(SEL, 4), vr(G0 + 4, 4), vr(CS, 4)))
        st_load = "buffer_load_dwordx2 %s, %s, %s, s61 offen sc1" % (vr(ST, 2), vSTG, SRD_WS)
        loads = [(st_load, ["v%d" % ST, "v%d" % (ST + 1)])] + gather_loads("s60")
        self.poll2(loads, t1, t2, sParQ, on_first=["ds_write_b32 v13, v0 offset:%d" % ARM])
        self.ts_layer(10)
        a.I("v_mfma_f32_16x16x32_bf16 %s, %s, %s, 0" % (vr(DQ, 4), vr(SEL, 4), vr(G0, 4)))
        a.I("v_mfma_f32_16x16x32_bf16 %s, %s, %s, %s" % (vr(DQ, 4), vr(SEL, 4), vr(G0 + 4, 4), vr(DQ, 4)))
        for rot in (4, 2, 1):
            a.I("v_add_f32_dpp v%d, v%d, v%d row_ror:%d row_mask:0xf bank_mask:0xf" % (ST, ST, ST, rot))
            a.I("v_add_f32_dpp v%d, v%d, v%d row_ror:%d row_mask:0xf bank_mask:0xf" % (ST + 1, ST + 1, ST + 1, rot))
        a.I("v_mul_f32 v%d, 0x%x, v%d" % (ST, f32bits(1.0 / 512), ST))
        a.I("v_mul_f32 v%d, 0x%x, v%d" % (ST + 1, f32bits(1.0 / 512), ST + 1))
        a.I("v_fma_f32 v%d, -v%d, v%d, v%d" % (ST + 1, ST, ST, ST + 1))
        a.I("v_max_f32 v%d, 0, v%d" % (ST + 1, ST + 1))
        a.I("v_add_f32 v%d, 0x%x, v%d" % (ST + 1, f32bits(1e-5), ST + 1))
        a.I("v_rsq_f32 v%d, v%d" % (ST + 1, ST + 1))
        a.I("v_pk_fma_f32 %s, %s, %s, %s op_sel_hi:[1,0,1] neg_lo:[0,1,0] neg_hi:[0,1,0]" % (vr(DQ, 2), vr(CS, 2), vr(ST, 2), vr(DQ, 2)))
        a.I("v_pk_fma_f32 %s, %s, %s, %s op_sel_hi:[1,0,1] neg_lo:[0,1,0] neg_hi:[0,1,0]" % (vr(DQ + 2, 2), vr(CS + 2, 2), vr(ST, 2), vr(DQ + 2, 2)))
        a.I("v_mul_f32 v%d, 0x%x, v%d" % (ST + 1, self.QSC, ST + 1))
        a.I("v_pk_mul_f32 %s, %s, %s op_sel:[0,1] op_sel_hi:[1,1]" % (vr(DQ, 2), vr(DQ, 2), vr(ST, 2)))
        a.I("v_pk_mul_f32 %s, %s, %s op_sel:[0,1] op_sel_hi:[1,1]" % (vr(DQ + 2, 2), vr(DQ + 2, 2), vr(ST, 2)))
        a.I("v_cvt_pk_bf16_f32 v%d, v%d, v%d" % (DQ, DQ, DQ + 1))
        a.I("v_cvt_pk_bf16_f32 v%d, v%d, v%d" % (DQ + 1, DQ + 2, DQ + 3))
        a.I("ds_write_b64 v%d, %s offset:%d" % (ID + 2, vr(DQ, 2), QL))
        self.flag_set("v14", FAQ, "v0")

    def handshake(self):
        a, o = self.a, self.o
        EP = 68
        a.label("L_HS")
        self.load_epoch()
        for k in range(4):
            a.I("v_mov_b32 v%d, -1" % (16 + k))
        a.I("s_lshl_b32 s58, %s, 15" % sG)
        a.I("s_lshl_b32 s59, %s, 10" % sI)
        a.I("s_add_u32 s67, s58, s59")

        def group_clears(fl):
            for base in (OBUF, SBUF, QBUF, QBUF + 0x40000):
                a.I("s_add_u32 s58, s67, 0x%x" % base)
                a.I("buffer_store_dwordx4 v[16:19], v4, %s, s58 offen%s" % (SRD_WS, fl))

        group_clears("" if o["fast"] else " sc1")
        a.I("v_lshrrev_b32 v20, 3, v1")
        a.I("v_lshlrev_b32 v20, 12, v20")
        a.I("v_and_b32 v21, 7, v1")
        a.I("v_lshl_add_u32 v20, v21, 4, v20")
        a.I("s_and_b32 s58, %s, 3" % sU)
        a.I("s_lshr_b32 s59, %s, 2" % sU)
        self.sacc("s58", [("s58", 15), (sG, 9), ("s59", 7), (sCls, 18)], XBUF)
        a.I("buffer_store_dwordx4 v[16:19], v20, %s, s58 offen sc1" % SRD_WS)
        a.I("s_add_u32 s58, s58, 0x20000")
        a.I("buffer_store_dwordx4 v[16:19], v20, %s, s58 offen sc1" % SRD_WS)
        a.I("s_getreg_b32 s72, hwreg(HW_REG_XCC_ID)")
        a.I("s_and_b32 s72, s72, 15")
        a.I("v_mov_b32 v%d, s72" % (EP + 2))
        a.I("v_mov_b32 v%d, 0" % (EP + 3))
        a.I("s_lshr_b32 s71, s67, 3")
        a.I("s_lshl_b32 s58, %s, 5" % sG)
        a.I("v_and_b32 v24, 31, v1")
        a.I("v_add_u32 v26, s58, v24")
        a.I("v_lshlrev_b32 v26, 7, v26")
        a.I("v_add_u32 v24, 0x%x, v26" % PFLAGS)
        a.I("v_add_u32 v27, 0x%x, v26" % FLAGS)
        a.I("v_cmp_gt_u32 vcc, 32, v1")
        a.I("v_cndmask_b32 v24, v27, v24, vcc")
        a.I("s_waitcnt lgkmcnt(0)")
        a.I("s_add_u32 s56, s74, 1")
        a.I("s_addc_u32 s57, s75, 0")
        a.I("v_mov_b32 v%d, s56" % EP)
        a.I("v_mov_b32 v%d, s57" % (EP + 1))
        a.I("s_waitcnt vmcnt(2)")
        pass
        a.I("s_mov_b64 exec, 1")
        a.I("s_add_u32 s58, s71, 0x%x" % PFLAGS)
        a.I("buffer_store_dwordx4 %s, v13, %s, s58 offen" % (vr(EP, 4), SRD_WS))
        a.I("s_waitcnt vmcnt(1)")
        a.I("s_add_u32 s58, s71, 0x%x" % FLAGS)
        a.I("buffer_store_dwordx4 %s, v13, %s, s58 offen sc1" % (vr(EP, 4), SRD_WS))
        a.I("s_mov_b64 exec, -1")
        a.I("v_mov_b32 v29, 0")
        a.I("v_xor_b32 v28, -1, v%d" % EP)
        a.label("L_pc_fp")
        a.I("s_and_b32 s56, %s, 7" % sBud)
        a.I("s_cmp_eq_u32 s56, 1")
        a.I("s_cselect_b32 exec_hi, -1, 0")
        a.I("buffer_load_dwordx4 v[28:31], v24, %s, 0 offen sc1" % SRD_WS)
        a.I("s_mov_b64 exec, -1")
        a.I("s_waitcnt vmcnt(0)")
        a.I("v_xor_b32 v20, v28, v%d" % EP)
        a.I("v_bitop3_b32 v20, v20, v29, v%d bitop3:0xf6" % (EP + 1))
        a.I("v_cmp_eq_u32 vcc, 0, v20")
        a.I("v_cmp_eq_u32 s[56:57], s72, v30")
        a.I("s_and_b32 s58, vcc_lo, s56")
        a.I("s_cmp_eq_u32 s58, -1")
        a.I("s_cselect_b32 s58, %d, 0" % (3 if o["fast"] else 0))
        a.I("s_cmp_lg_u32 s58, 0")
        a.I("s_cbranch_scc1 L_pc_go")
        if o["fast"]:
            a.I("s_andn2_b32 s58, vcc_hi, s57")
            a.I("s_cbranch_scc1 L_pc_safe")
            a.I("s_sleep 1")
            self.bail("L_pc_fp")
        a.label("L_pc_safe")
        group_clears(" sc1")
        a.I("s_waitcnt vmcnt(0)")
        a.I("s_mov_b64 exec, 1")
        a.I("s_add_u32 s58, s71, 0x%x" % FLAGS2)
        a.I("buffer_store_dwordx4 %s, v13, %s, s58 offen sc1" % (vr(EP, 4), SRD_WS))
        a.I("s_mov_b64 exec, -1")
        a.I("v_add_u32 v24, 0x%x, v26" % FLAGS2)
        a.label("L_pc_fp2")
        a.I("buffer_load_dwordx4 v[28:31], v24, %s, 0 offen sc1" % SRD_WS)
        a.I("s_waitcnt vmcnt(0)")
        a.I("v_xor_b32 v20, v28, v%d" % EP)
        a.I("v_bitop3_b32 v20, v20, v29, v%d bitop3:0xf6" % (EP + 1))
        a.I("v_cmp_eq_u32 vcc, 0, v20")
        a.I("s_mov_b32 s58, 1")
        a.I("s_cmp_eq_u32 vcc_lo, -1")
        a.I("s_cbranch_scc1 L_pc_go")
        a.I("s_sleep 1")
        self.bail("L_pc_fp2")
        a.label("L_pc_go")
        a.I("v_mov_b32 v20, s58")
        a.I("ds_write_b32 v13, v20 offset:%d" % GO)
        a.I("s_cmp_lg_u32 %s, 0" % sCls)
        a.I("s_cbranch_scc1 L_roles")
        a.I("s_and_b32 s58, %s, 6" % sU)
        a.I("v_and_b32 v24, 31, v1")
        a.I("v_lshl_add_u32 v25, v24, 3, s58")
        a.I("v_lshrrev_b32 v27, 5, v1")
        a.I("v_add_u32 v25, v25, v27")
        a.I("v_lshlrev_b32 v25, 7, v25")
        a.I("v_add_u32 v25, 0x%x, v25" % FLAGS)
        a.I("s_add_u32 s58, s71, 0x%x" % (FLAGS + 128))
        a.label("L_hs_fp3")
        a.I("buffer_load_dwordx2 v[28:29], v25, %s, 0 offen sc1" % SRD_WS)
        a.I("buffer_load_dwordx2 v[30:31], v13, %s, s58 offen sc1" % SRD_WS)
        a.I("s_waitcnt vmcnt(0)")
        a.I("v_bitop3_b32 v20, v28, v30, v%d bitop3:0x7e" % EP)
        a.I("v_bitop3_b32 v21, v29, v31, v%d bitop3:0x7e" % (EP + 1))
        a.I("v_or_b32 v20, v20, v21")
        a.I("v_cmp_ne_u32 vcc, 0, v20")
        a.I("s_cbranch_vccz L_hs_fd")
        a.I("s_sleep 4")
        self.bail("L_hs_fp3")
        a.label("L_hs_fd")
        a.I("v_mov_b32 v20, 1")
        a.I("ds_write_b32 v13, v20 offset:%d" % GOX)
        a.I("s_branch L_roles")

    def pq(self):
        a, o = self.a, self.o
        vWQ, vQP, vST, vXW, vXR, vXI, vCSP, vTM, vS1, vQ1, vXS = (
            "v6", "v7", "v8", "v9", "v10", "v11", "v12", "v15", "v5", "v16", "v17")
        WC, G0, XO_, FL, D0, DS, X0, SEL, DX, TG = 20, 52, 84, 92, 96, 112, 116, 120, 84, 124
        XR, XU = D0, D0 + 4
        sRB, sHP, sWQ, sQP, sCS, sST, sXG, sXI = "s64", "s65", "s66", "s67", "s68", "s69", "s70", "s72"
        a.label("L_PQ")
        a.I("s_cmp_lg_u32 %s, 0" % sRole)
        self.srd_sel(SRD_M0, "A_wq", "B_wq", 4 << 20)
        self.srd(SRD_X, "A_x", 4096)
        a.I("s_cbranch_scc0 L_pq_n0")
        a.I("s_setprio 3")
        a.I("s_lshl_b32 s58, %s, 10" % sW)
        a.I("buffer_load_dwordx4 %s, v4, %s, s58 offen" % (vr(XR, 4), SRD_X))
        a.label("L_pq_n0")
        a.I("s_and_b32 %s, %s, 7" % (sRB, sU))
        a.I("s_lshr_b32 %s, %s, 3" % (sHP, sU))
        a.I("s_lshr_b32 s58, %s, 1" % sRB)
        a.I("s_and_b32 s59, %s, 1" % sRB)
        self.sacc(sWQ, [("s58", 20), ("s59", 15), (sG, 10), (sHP, 9), (sW, 7)], 0)
        self.sacc(sXI, [("s58", 8), ("s59", 3), (sW, 1)], 0)
        a.I("v_lshlrev_b32 v20, 3, v2")
        a.I("v_and_b32 v22, 1, v3")
        a.I("v_lshl_add_u32 v21, v22, 19, v20")
        a.I("v_lshrrev_b32 v23, 1, v3")
        a.I("v_lshl_add_u32 %s, v23, 13, v21" % vWQ)

        def load_wq():
            a.I("s_mov_b32 s59, %s" % sWQ)
            for e in range(8):
                for ks in range(2):
                    a.I("buffer_load_dwordx2 %s, %s, %s, s59 offen nt" % (vr(G0 + 16 * ks + 2 * e, 2), vWQ, SRD_M0))
                    if (e, ks) != (7, 1):
                        a.I("s_add_u32 s59, s59, %d" % (16384 if ks == 0 else 65536 - 16384))

        def transpose_wq():
            for ks in range(2):
                self.transpose(G0 + 16 * ks, WC + 16 * ks, 2)

        a.I("s_cmp_lg_u32 %s, 0" % sRole)
        a.I("s_cbranch_scc1 L_pq_nw")
        load_wq()
        a.label("L_pq_nw")
        self.load_epoch()
        a.I("v_bfe_u32 v21, v2, 1, 2")
        a.I("v_and_b32 v23, 1, v2")
        a.I("v_lshlrev_b32 v23, 1, v23")
        a.I("v_add_u32 v23, v23, v22")
        a.I("v_lshlrev_b32 v24, 10, v21")
        a.I("v_lshl_add_u32 %s, v23, 6, v24" % vXI)
        a.I("s_cmp_eq_u32 %s, 0" % sRole)
        a.I("s_cbranch_scc1 L_pq_nx")
        for rr in range(4):
            a.I("buffer_load_ushort v%d, %s, %s, %s offen offset:%d" % (X0 + rr, vXI, SRD_X, sXI, 16 * rr))
        a.label("L_pq_nx")
        self.ts(1)
        a.I("v_lshlrev_b32 %s, 3, v21" % vS1)
        a.I("v_lshlrev_b32 v24, 7, v21")
        a.I("v_lshl_add_u32 v24, v23, 3, v24")
        a.I("s_lshl_b32 s58, %s, 5" % sW)
        a.I("v_add_u32 %s, s58, v24" % vXW)
        a.I("s_lshl_b32 s58, %s, 10" % sW)
        a.I("v_add_u32 %s, s58, v4" % vXS)
        a.I("v_mov_b32 v25, 0x%x" % OOB)
        a.I("v_lshl_add_u32 %s, v3, 13, v20" % vQP)
        a.I("v_cmp_gt_u32 vcc, 16, v1")
        a.I("v_cndmask_b32 %s, v25, v20, vcc" % vCSP)
        a.I("v_and_b32 v24, 1, v2")
        a.I("v_xor_b32 %s, 1, v24" % vTM)
        a.I("v_lshlrev_b32 v24, 11, v24")
        a.I("v_lshl_add_u32 v24, v3, 14, v24")
        a.I("v_lshrrev_b32 v26, 1, v2")
        a.I("v_lshl_add_u32 %s, v26, 4, v24" % vQ1)
        a.I("v_lshlrev_b32 v24, 3, v3")
        a.I("v_lshlrev_b32 v26, 2, v3")
        a.I("v_add_u32 v27, 4, v24")
        a.I("v_cmp_eq_u32 vcc, v26, v2")
        a.I("v_cndmask_b32 %s, v25, v27, vcc" % vST)
        a.I("v_cmp_eq_u32 vcc, 1, v2")
        a.I("v_cndmask_b32 %s, %s, v24, vcc" % (vST, vST))
        a.I("s_or_b32 s63, %s, %s" % (sW, sHP))
        a.I("s_cmp_eq_u32 s63, 0")
        a.I("s_cselect_b32 s63, 0, 0x%x" % OOB)
        a.I("v_or_b32 %s, s63, %s" % (vST, vST))
        a.I("v_lshrrev_b32 v24, 2, v2")
        a.I("v_mov_b32 v26, 4")
        a.I("v_cndmask_b32 v24, v24, v26, vcc")
        a.I("v_lshlrev_b32 v24, 7, v24")
        a.I("v_lshl_add_u32 %s, v3, 4, v24" % vXR)
        self.selector(SEL, 0x3f80, "v24", "v26")
        a.I("v_mov_b32 v0, 1")
        a.I("s_lshr_b32 s58, %s, 1" % sW)
        a.I("s_and_b32 s59, %s, 1" % sW)
        self.sacc("s71", [(sG, 15), (sHP, 12), ("s58", 11), (sRB, 8), ("s59", 7)], 0)
        self.sacc(sQP, [("s71", 0), (sRole, 18)], QBUF)
        self.sacc(sCS, [("s71", 0), (sRole, 13)], CSBUF)
        self.sacc(sST, [(sG, 15), (sRole, 10), (sRB, 7)], STBUF)
        self.sacc("s71", [(sG, 16), (sHP, 13), ("s58", 12), (sRB, 8), ("s59", 7)], Q1BUF)
        a.I("s_xor_b32 s58, %s, 1" % sRole)
        self.sacc(sXG, [("s58", 17), (sRB, 14), (sW, 12)], XBUF)
        a.I("s_mov_b32 %s, 0" % sPar)
        a.I("s_waitcnt lgkmcnt(0)")
        self.epoch_tags()
        a.I("s_cmp_lg_u32 %s, 0" % sRole)
        a.I("s_cbranch_scc1 L_pq_b0")
        self.srd(SRD_X, "out", 4096)
        a.I("s_waitcnt vmcnt(0)")
        self.ts(2)
        transpose_wq()
        a.I("s_branch L_pq_mm")

        def cs_compute():
            for k in range(4):
                a.I("v_mov_b32 v%d, 0x3f803f80" % (DS + k))
            for ks in range(2):
                for j in range(4):
                    a.I("v_mfma_f32_16x16x32_bf16 %s, %s, %s, %s" % (vr(D0 + 4 * j, 4), vr(DS, 4), vr(WC + 16 * ks + 4 * j, 4), "0" if ks == 0 else vr(D0 + 4 * j, 4)))
            a.I("v_cvt_pk_bf16_f32 v2, v%d, v%d" % (D0, D0 + 4))
            a.I("v_cvt_pk_bf16_f32 v3, v%d, v%d" % (D0 + 8, D0 + 12))
            a.I("v_bfi_b32 v2, %s, 0, v2" % vTM)

        a.label("L_pq_b0")
        a.I("s_waitcnt vmcnt(0)")
        for k in range(4):
            a.I("v_lshlrev_b32 v%d, 16, v%d" % (XU + 2 * k, XR + k))
            a.I("v_and_b32 v%d, 0xffff0000, v%d" % (XU + 2 * k + 1, XR + k))
        a.I("v_pk_add_f32 %s, %s, %s" % (vr(XR, 2), vr(XU, 2), vr(XU + 2, 2)))
        a.I("v_pk_add_f32 %s, %s, %s" % (vr(XR + 2, 2), vr(XU + 4, 2), vr(XU + 6, 2)))
        a.I("v_pk_add_f32 %s, %s, %s" % (vr(XR, 2), vr(XR, 2), vr(XR + 2, 2)))
        a.I("v_add_f32 v%d, v%d, v%d" % (XR, XR, XR + 1))

        def wave_sum(r):
            for rot in (8, 4, 2, 1):
                a.I("v_add_f32_dpp v%d, v%d, v%d row_ror:%d row_mask:0xf bank_mask:0xf" % (r, r, r, rot))
            a.I("v_mov_b32 v1, v%d" % r)
            a.I("v_permlane32_swap_b32 v%d, v1" % r)
            a.I("v_add_f32 v%d, v%d, v1" % (r, r))
            a.I("v_mov_b32 v1, v%d" % r)
            a.I("v_permlane16_swap_b32 v%d, v1" % r)
            a.I("v_add_f32 v%d, v%d, v1" % (r, r))

        wave_sum(XR)
        a.I("v_mul_f32 v%d, 0x%x, v%d" % (XR, f32bits(1.0 / 512), XR))
        for k in range(4):
            a.I("v_pk_add_f32 %s, %s, %s op_sel_hi:[1,0] neg_lo:[0,1] neg_hi:[0,1]" % (vr(XU + 2 * k, 2), vr(XU + 2 * k, 2), vr(XR, 2)))
        a.I("v_pk_mul_f32 %s, %s, %s" % (vr(XR + 2, 2), vr(XU, 2), vr(XU, 2)))
        for k in range(1, 4):
            a.I("v_pk_fma_f32 %s, %s, %s, %s" % (vr(XR + 2, 2), vr(XU + 2 * k, 2), vr(XU + 2 * k, 2), vr(XR + 2, 2)))
        a.I("v_add_f32 v%d, v%d, v%d" % (XR + 1, XR + 2, XR + 3))
        wave_sum(XR + 1)
        a.I("v_mul_f32 v%d, 0x%x, v%d" % (XR + 1, f32bits(1.0 / 512), XR + 1))
        a.I("v_add_f32 v%d, 0x%x, v%d" % (XR + 1, f32bits(1e-5), XR + 1))
        a.I("v_rsq_f32 v%d, v%d" % (XR + 1, XR + 1))
        a.I("v_lshlrev_b32 v1, 1, v14")
        a.I("ds_write_b64 v1, %s offset:%d" % (vr(XR, 2), ST1))
        self.flag_set("v14", FST, "v0")
        for rr in range(4):
            a.I("v_lshlrev_b32 v%d, 16, v%d" % (X0 + rr, X0 + rr))
        self.exchange(FST, FL, ["ds_read_b64 %s, %s offset:%d" % (vr(XR, 2), vS1, ST1)])
        for k in range(2):
            a.I("v_pk_add_f32 %s, %s, %s op_sel_hi:[1,0] neg_lo:[0,1] neg_hi:[0,1]" % (vr(XU + 2 * k, 2), vr(X0 + 2 * k, 2), vr(XR, 2)))
            a.I("v_pk_mul_f32 %s, %s, %s op_sel:[0,1] op_sel_hi:[1,1]" % (vr(XU + 2 * k, 2), vr(XU + 2 * k, 2), vr(XR, 2)))
        a.I("v_cvt_pk_bf16_f32 v%d, v%d, v%d" % (DS, XU, XU + 1))
        a.I("v_cvt_pk_bf16_f32 v%d, v%d, v%d" % (DS + 1, XU + 2, XU + 3))
        a.I("ds_write_b64 %s, %s offset:%d" % (vXW, vr(DS, 2), XL))
        a.I("ds_write_b128 %s, %s offset:%d" % (vXS, vr(X0, 4), XS))
        self.flag_set("v14", FQX, "v0")
        a.I("s_setprio 0")
        self.lds_wait_ge("v13", WGO, "1", "v1", sleep=2)
        a.I("s_sleep %d" % o["dwq"])
        load_wq()
        a.I("s_waitcnt vmcnt(0)")
        self.ts(2)
        transpose_wq()
        a.I("s_mov_b32 %s, 0" % sL)
        a.I("s_branch L_pq_cs")

        a.label("L_pq_loop")
        self.prio(0)
        a.I("v_mov_b32 v0, %s" % sL)
        a.I("s_sub_u32 s58, %s, 1" % sL)
        a.I("s_lshr_b32 %s, %s, 2" % (sPar, sL))
        self.lds_wait_ge("v14", FOP, "s58", "v1", sleep=o["gsleep"])
        self.prio(3)
        a.I("ds_read_b128 %s, %s offset:%d" % (vr(X0, 4), vXS, XS))
        if o["dx"]:
            a.I("s_sleep %d" % o["dx"])
        loads = [("buffer_load_dwordx4 %s, v4, %s, %s offen offset:%d sc1" % (vr(G0 + 4 * r, 4), SRD_WS, sXG, r * 1024), ["v%d" % (G0 + 4 * r)]) for r in range(4)]
        self.poll(loads, "v1", "v2", "0")
        self.ts_layer(8)
        for r in range(4):
            a.I("v_mfma_f32_16x16x32_bf16 %s, %s, %s, %s" % (vr(DX, 4), vr(SEL, 4), vr(G0 + 4 * r, 4), "0" if r == 0 else vr(DX, 4)))
        a.I("s_add_u32 %s, %s, 0x40000" % (sXG, sXG))
        a.I("s_waitcnt lgkmcnt(0)")
        for k in range(4):
            a.I("v_add_f32_dpp v%d, v%d, v%d row_ror:8 row_mask:0xf bank_mask:0xf" % (DX + 4 + k, DX + k, DX + k))
        a.I("v_pk_add_f32 %s, %s, %s" % (vr(X0, 2), vr(X0, 2), vr(DX + 4, 2)))
        a.I("v_pk_add_f32 %s, %s, %s" % (vr(X0 + 2, 2), vr(X0 + 2, 2), vr(DX + 6, 2)))
        a.I("v_cvt_pk_bf16_f32 v%d, v%d, v%d" % (DS, X0, X0 + 1))
        a.I("v_cvt_pk_bf16_f32 v%d, v%d, v%d" % (DS + 1, X0 + 2, X0 + 3))
        a.I("s_cmp_eq_u32 %s, 5" % sL)
        a.I("s_cbranch_scc1 L_pq_final")
        a.I("ds_write_b64 %s, %s offset:%d" % (vXW, vr(DS, 2), XL))
        self.flag_set("v14", FQX, "v0")
        a.label("L_pq_mm")
        self.exchange(FQX, FL, ["ds_read_b128 %s, %s offset:%d" % (vr(XO_ + 4 * ks, 4), vXR, XL + 64 * ks) for ks in range(2)])
        for ks in range(2):
            a.I("v_mfma_f32_16x16x32_bf16 %s, %s, %s, %s" % (vr(DS, 4), vr(XO_ + 4 * ks, 4), vr(XO_ + 4 * ks, 4), "0" if ks == 0 else vr(DS, 4)))
        for jp in range(2):
            for ks in range(2):
                for j in (2 * jp, 2 * jp + 1):
                    a.I("v_mfma_f32_16x16x32_bf16 %s, %s, %s, %s" % (vr(D0 + 4 * j, 4), vr(XO_ + 4 * ks, 4), vr(WC + 16 * ks + 4 * j, 4), "0" if ks == 0 else vr(D0 + 4 * j, 4)))
        a.I("s_cmp_eq_u32 %s, 1" % sL)
        a.I("s_cbranch_scc1 L_pq_pub1")
        hsave = [dict(x) for x in a.hist]
        self.mode_test()
        a.I("v_bfi_b32 v%d, 1, %s, v%d" % (DS, sPar, DS))
        a.I("v_cvt_pk_bf16_f32 v2, v%d, v%d" % (D0, D0 + 4))
        a.I("v_bfi_b32 v2, %s, %s, v2" % (vTM, sPar))
        a.I("v_cvt_pk_bf16_f32 v3, v%d, v%d" % (D0 + 8, D0 + 12))
        self.moded_stores([
            "buffer_store_dwordx2 v[2:3], %s, %s, %s offen" % (vQP, SRD_WS, sQP),
            "buffer_store_dword v%d, %s, %s, %s offen" % (DS, vST, SRD_WS, sST),
        ], tested=True)
        a.I("ds_write_b128 %s, %s offset:%d" % (vXS, vr(X0, 4), XS))
        self.ts_layer(9)
        self.ts_save()
        a.I("s_branch L_pq_next")
        a.label("L_pq_pub1")
        a.hist = hsave
        a.I("v_cvt_pk_bf16_f32 v2, v%d, v%d" % (D0, D0 + 4))
        a.I("v_cvt_pk_bf16_f32 v3, v%d, v%d" % (D0 + 8, D0 + 12))
        a.I("s_mov_b32 s56, 0xffff0000")
        for k in range(4):
            a.I("v_mov_b32 v%d, s%d" % (TG + k, 60 + k))
        a.I("v_lshl_or_b32 v%d, v2, 16, v%d" % (TG, TG))
        a.I("v_and_or_b32 v%d, v2, s56, v%d" % (TG + 1, TG + 1))
        a.I("v_lshl_or_b32 v%d, v3, 16, v%d" % (TG + 2, TG + 2))
        a.I("v_and_or_b32 v%d, v3, s56, v%d" % (TG + 3, TG + 3))
        a.I("buffer_store_dwordx4 %s, %s, %s, s71 offen%s" % (vr(TG, 4), vQ1, SRD_WS, "" if o["fast"] else " sc1"))
        self.ts(3)
        self.wait_go("v1")
        a.I("s_cmp_lg_u32 %s, 0" % sMode)
        a.I("s_cbranch_scc1 L_pq_cs")
        a.I("buffer_store_dwordx4 %s, %s, %s, s71 offen sc1" % (vr(TG, 4), vQ1, SRD_WS))
        a.label("L_pq_cs")
        cs_compute()
        self.wait_go("v1")
        self.moded_stores(["buffer_store_dwordx2 v[2:3], %s, %s, %s offen" % (vCSP, SRD_WS, sCS)])
        self.lds_wait_ge("v13", GOX, "1", "v1", sleep=1)
        a.label("L_pq_next")
        a.I("s_add_u32 %s, %s, 2" % (sL, sL))
        a.I("s_cmp_le_u32 %s, 4" % sL)
        a.settle()
        a.I("s_cbranch_scc1 L_pq_loop")
        a.I("s_or_b32 s56, %s, %s" % (sG, sHP))
        a.I("s_or_b32 s56, s56, %s" % sRole)
        a.I("s_cmp_eq_u32 s56, 0")
        a.I("s_cbranch_scc1 L_pq_loop")
        a.I("s_branch L_end")
        a.label("L_pq_final")
        a.I("buffer_store_short v%d, %s, %s, %s offen" % (DS, vXI, SRD_X, sXI))
        a.I("buffer_store_short_d16_hi v%d, %s, %s, %s offen offset:16" % (DS, vXI, SRD_X, sXI))
        a.I("buffer_store_short v%d, %s, %s, %s offen offset:32" % (DS + 1, vXI, SRD_X, sXI))
        a.I("buffer_store_short_d16_hi v%d, %s, %s, %s offen offset:48" % (DS + 1, vXI, SRD_X, sXI))
        a.I("s_branch L_end")

    def po(self):
        a, o = self.a, self.o
        vWO, vMLG, vXP, vO2W, vO2R, vTM, vWXW, vWXR, vFW, vF = "v6", "v7", "v8", "v9", "v10", "v11", "v12", "v15", "v5", "v126"
        WC, G0, ML, SM, A0, DO, D0, F = 16, 48, 80, 84, 88, 96, 100, 108
        AO, FL, GG = G0, G0 + 16, G0 + 20
        sHH, sCB, sWO, sOG, sMLG, sXP, sDupLo, sDupHi = "s64", "s65", "s66", "s68", "s69", "s70", "s71", "s72"
        a.label("L_PO")
        a.I("s_and_b32 %s, %s, 1" % (sPar, sRole))
        if o["pf"]:
            self.srd(SRD_M1, "A_v", 32 << 20)
            a.I("s_lshl_b32 s60, %s, 1" % sU)
            a.I("s_add_u32 s60, s60, %s" % sPar)
            a.I("s_lshr_b32 s58, s60, 3")
            a.I("s_and_b32 s59, s60, 7")
            self.sacc("s58", [("s58", 23), (sG, 20), ("s59", 15), (sW, 13)], 3072 * 256)
            a.I("s_add_u32 s59, s58, 4096")
            if o["pfdelay"]:
                a.I("s_sleep %d" % o["pfdelay"])
            for q in range(8):
                if q > o["pfd"]:
                    a.I("s_waitcnt vmcnt(%d)" % o["pfd"])
                a.I("buffer_load_dwordx4 %s, v4, %s, %s offen offset:%d%s" % (vr(G0 + 4 * q, 4), SRD_M1, "s59" if q >= 4 else "s58", (q & 3) * 1024, ["", " nt", "", " sc1"][o["pf"]]))
        self.load_epoch()
        a.I("s_add_u32 %s, %s, 1" % (sL, sPar))
        a.I("s_lshr_b32 %s, %s, 2" % (sHH, sU))
        a.I("s_and_b32 %s, %s, 3" % (sCB, sU))
        a.I("s_lshl_b32 s60, %s, 2" % sG)
        a.I("s_add_u32 s60, s60, %s" % sHH)
        a.I("s_cmp_lg_u32 %s, 0" % sPar)
        self.srd_sel(SRD_M0, "A_wo", "B_wo", 4 << 20)
        self.sacc(sWO, [("s60", 17), (sW, 11), (sCB, 8)], 0)
        a.I("v_lshlrev_b32 v16, 4, v2")
        a.I("v_lshl_add_u32 %s, v3, 15, v16" % vWO)
        self.sacc(sOG, [("s60", 13), (sW, 11)], OBUF)
        self.sacc(sMLG, [(sG, 15), (sHH, 11), (sW, 9)], MLBUF)
        a.I("v_and_b32 v17, 3, v2")
        a.I("v_lshlrev_b32 %s, 6, v17" % vMLG)
        self.sacc(sXP, [(sPar, 17), (sCB, 15), (sW, 13), ("s60", 7)], XBUF)
        a.I("v_lshlrev_b32 v16, 3, v3")
        a.I("v_lshl_add_u32 v16, v2, 3, v16")
        a.I("v_mov_b32 v18, 0x%x" % OOB)
        a.I("v_cmp_eq_u32 vcc, 0, v17")
        a.I("v_cndmask_b32 %s, v18, v16, vcc" % vXP)
        a.I("v_and_b32 v17, 1, v3")
        a.I("v_or_b32 %s, -2, v17" % vTM)
        a.I("v_lshlrev_b32 v17, 3, v17")
        a.I("v_lshl_add_u32 v17, v2, 4, v17")
        a.I("s_lshl_b32 s56, %s, 8" % sW)
        a.I("v_add_u32 %s, s56, v17" % vO2W)
        a.I("v_lshrrev_b32 v16, 2, v2")
        a.I("v_lshlrev_b32 v17, 4, v3")
        a.I("v_lshl_add_u32 %s, v16, 8, v17" % vO2R)
        self.sacc("s58", [(sPar, 15), (sW, 13)], WX)
        a.I("v_add_u32 %s, s58, v4" % vWXW)
        self.sacc("s58", [(sPar, 15), (sW, 11)], WX)
        a.I("v_add_u32 %s, s58, v4" % vWXR)
        a.I("s_lshl_b32 s56, %s, 4" % sPar)
        a.I("v_mov_b32 %s, s56" % vF)
        a.I("v_add_u32 %s, s56, v14" % vFW)
        self.selector(SM, 0xffff, "v16", "v17")
        a.I("s_mov_b32 %s, 0x01000100" % sDupLo)
        a.I("s_mov_b32 %s, 0x03020302" % sDupHi)
        a.I("v_mov_b32 v0, 1")
        a.I("s_cmp_lg_u32 %s, 0" % sPar)
        a.I("s_cbranch_scc1 L_po_gb")
        a.I("s_cmp_lg_u32 %s, 0" % sW)
        a.I("s_cbranch_scc1 L_po_ga")
        a.I("s_waitcnt lgkmcnt(0)")
        a.I("s_add_u32 s74, s74, 1")
        a.I("s_addc_u32 s75, s75, 0")
        self.sacc("s58", [(sG, 12), (sI, 7)], GFLAGS + 128)
        a.I("s_mov_b32 s59, %d" % o["hintmax"])
        a.label("L_po_bg")
        a.I("buffer_load_dwordx2 v[16:17], v13, %s, s58 offen sc1" % SRD_WS)
        a.I("s_waitcnt vmcnt(0)")
        a.I("v_xor_b32 v16, s74, v16")
        a.I("v_bitop3_b32 v16, v16, v17, s75 bitop3:0xf6")
        a.I("v_cmp_ne_u32 vcc, 0, v16")
        a.I("s_cbranch_vccz L_po_bgd")
        a.I("s_sleep 2")
        a.I("s_sub_u32 s59, s59, 1")
        a.I("s_cbranch_scc0 L_po_bg")
        a.label("L_po_bgd")
        a.I("ds_write_b32 v13, v0 offset:%d" % WGO)
        a.label("L_po_ga")
        self.lds_wait_ge("v13", WGO, "1", "v16", sleep=1)
        self.prio(2)
        a.I("s_branch L_po_ld")
        a.label("L_po_gb")
        self.lds_wait_ge("v14", FQX, "2", "v16", sleep=2)
        a.I("s_sleep 4")
        a.label("L_po_ld")
        a.I("s_mov_b32 s59, %s" % sWO)
        for e in range(8):
            a.I("buffer_load_dwordx4 %s, %s, %s, s59 offen offset:%d nt" % (vr(G0 + 4 * e, 4), vWO, SRD_M0, (e & 1) * 1024))
            if e & 1 and e < 7:
                a.I("s_add_u32 s59, s59, 8192")
        a.I("s_waitcnt vmcnt(0)")
        self.transpose(G0, WC, 4)
        for j in range(8):
            a.I("ds_write_b128 %s, %s offset:%d" % (vWXW, vr(WC + 4 * j, 4), 1024 * j))
        self.flag_set(vFW, FWX, "v0")
        self.exchange(FWX, FL, [], sval="1", sleep=1, vbase=vF)
        for ks in range(4):
            for jj in range(2):
                a.I("ds_read_b128 %s, %s offset:%d" % (vr(WC + 4 * (2 * ks + jj), 4), vWXR, 8192 * ks + 1024 * jj))
        self.ts(2)
        self.lds_wait_ge("v13", GO, "1", "v1", sleep=1)

        a.label("L_po_loop")
        self.prio(0)
        a.I("v_mov_b32 v0, %s" % sL)
        a.I("s_add_u32 s59, %s, 4096" % sXP)
        self.lds_wait_ge("v14", FQX, sL, "v1", sleep=2)
        loads = [("buffer_load_dwordx2 %s, %s, %s, %s offen offset:%d sc1" % (vr(ML + 2 * k, 2), vMLG, SRD_WS, sMLG, 256 * k), ["v%d" % (ML + 2 * k + 1)]) for k in range(2)]
        for r in range(2):
            loads.append(("buffer_load_dwordx4 %s, v4, %s, %s offen offset:%d sc1" % (vr(GG + 4 * r, 4), SRD_WS, sOG, r * 1024), ["v%d" % (GG + 4 * r)]))
        self.poll2(loads, "v1", "v2", sPar)
        self.ts_layer(8)
        a.I("v_max_f32 v1, v%d, v%d" % (ML, ML + 2))
        a.I("v_max_f32_dpp v1, v1, v1 quad_perm:[1,0,3,2] row_mask:0xf bank_mask:0xf")
        a.I("v_max_f32_dpp v1, v1, v1 quad_perm:[2,3,0,1] row_mask:0xf bank_mask:0xf")
        a.I("v_sub_f32 v%d, v%d, v1" % (F, ML))
        a.I("v_sub_f32 v%d, v%d, v1" % (F + 1, ML + 2))
        a.I("v_exp_f32 v%d, v%d" % (F, F))
        a.I("v_exp_f32 v%d, v%d" % (F + 1, F + 1))
        a.I("v_mul_f32 v1, v%d, v%d" % (F, ML + 1))
        a.I("v_fmac_f32 v1, v%d, v%d" % (F + 1, ML + 3))
        a.I("v_add_f32_dpp v1, v1, v1 quad_perm:[1,0,3,2] row_mask:0xf bank_mask:0xf")
        a.I("v_add_f32_dpp v1, v1, v1 quad_perm:[2,3,0,1] row_mask:0xf bank_mask:0xf")
        a.I("v_rcp_f32 v2, v1")
        a.I("v_pk_mul_f32 %s, %s, v[2:3] op_sel_hi:[1,0]" % (vr(F, 2), vr(F, 2)))
        a.I("v_cvt_pk_bf16_f32 v1, v%d, v%d" % (F, F + 1))
        for q in range(4):
            a.I("v_mov_b32_dpp v2, v1 quad_perm:[%d,%d,%d,%d] row_mask:0x%x bank_mask:0xf" % (q, q, q, q, 1 << q))
        a.I("v_perm_b32 v%d, v2, v2, %s" % (F, sDupLo))
        a.I("v_perm_b32 v%d, v2, v2, %s" % (F + 1, sDupHi))
        for r in range(2):
            for t in range(4):
                a.I("v_and_b32 v%d, v%d, v%d" % (A0 + 4 * r + t, F + r, SM + t))
        for r in range(2):
            a.I("v_mfma_f32_16x16x32_bf16 %s, %s, %s, %s" % (vr(DO, 4), vr(A0 + 4 * r, 4), vr(GG + 4 * r, 4), "0" if r == 0 else vr(DO, 4)))
        a.I("v_cvt_pk_bf16_f32 v%d, v%d, v%d" % (DO, DO, DO + 1))
        a.I("v_cvt_pk_bf16_f32 v%d, v%d, v%d" % (DO + 1, DO + 2, DO + 3))
        a.I("ds_write_b64 %s, %s offset:%d" % (vO2W, vr(DO, 2), OL2))
        self.flag_set("v14", FOX, "v0")
        self.exchange(FOX, FL, ["ds_read_b128 %s, %s offset:%d" % (vr(AO + 4 * ks, 4), vO2R, OL2 + 64 * ks) for ks in range(4)])
        for jj in range(2):
            for ks in range(4):
                a.I("v_mfma_f32_16x16x32_bf16 %s, %s, %s, %s" % (vr(D0 + 4 * jj, 4), vr(WC + 4 * (2 * ks + jj), 4), vr(AO + 4 * ks, 4), "0" if ks == 0 else vr(D0 + 4 * jj, 4)))
        for jj in range(2):
            d = D0 + 4 * jj
            a.I("v_cvt_pk_bf16_f32 v%d, v%d, v%d" % (d, d, d + 1))
            a.I("v_cvt_pk_bf16_f32 v%d, v%d, v%d" % (d + 1, d + 2, d + 3))
            a.I("v_and_b32 v%d, %s, v%d" % (d, vTM, d))
            a.I("buffer_store_dwordx2 %s, %s, %s, %s offen sc1" % (vr(d, 2), vXP, SRD_WS, "s59" if jj else sXP))
        self.flag_set("v14", FOP, "v0")
        self.ts_layer(9)
        self.ts_save()
        a.I("s_add_u32 %s, %s, 0x40000" % (sXP, sXP))
        a.I("s_add_u32 %s, %s, 2" % (sL, sL))
        a.I("s_cmp_le_u32 %s, 4" % sL)
        a.settle()
        a.I("s_cbranch_scc1 L_po_loop")
        a.I("s_branch L_end")

    def epilogue(self):
        a = self.a
        for l, lines in self.stubs:
            a.label(l)
            a.hist = []
            for x in lines:
                if x.endswith(":"):
                    a.label(x[:-1])
                else:
                    a.I(x)
        a.label("L_end")
        if self.o["ts"]:
            a.I("s_memtime s[16:17]")
            a.I("s_memrealtime s[18:19]")
            for _ in range(4):
                a.I("s_sleep 127")
            a.I("s_mov_b64 exec, 1")
            a.I("s_lshl_b32 s56, s2, 4")
            a.I("s_lshl_b32 s57, %s, 2" % sRole)
            a.I("s_add_u32 s56, s56, s57")
            a.I("s_add_u32 s56, s56, %s" % sW)
            a.I("s_lshl_b32 s56, s56, 7")
            a.I("s_add_u32 s56, s56, 0x%x" % TSBUF)
            a.I("s_waitcnt lgkmcnt(0) vmcnt(0)")
            for k in range(NTS + 2):
                sr = TS0 + 2 * k if k < NTS else 16 + 2 * (k - NTS)
                a.I("v_mov_b32 v16, s%d" % sr)
                a.I("v_mov_b32 v17, s%d" % (sr + 1))
                a.I("buffer_store_dwordx2 v[16:17], v13, %s, s56 offen offset:%d" % (SRD_WS, 8 * k))
                a.I("s_nop 1")
        a.label("L_exit")
        a.I("s_endpgm")
        a.label("L_codeend")

    def build(self):
        a = self.a
        if self.o["ts"]:
            for k in range(2 * NTS):
                a.I("s_mov_b32 s%d, 0" % (TS0 + k))
        self.prologue()
        self.att()
        self.handshake()
        self.pq()
        self.po()
        self.epilogue()
        ref = open("cdna_kernels/%s.s.ref" % NAME).read().splitlines()
        head = [l for l in ref if l.startswith(";") and "@launch" not in l]
        assert a.maxv <= 128, a.maxv
        out = "\n".join(head) + "\n"
        out += "; @launch grid=(256,1,1) block=(1024,1,1) lds=%d\n" % LDS_BYTES
        out += '.amdgcn_target "amdgcn-amd-amdhsa--gfx950"\n.text\n.globl %s_kernel\n.p2align 8\n.type %s_kernel,@function\n%s_kernel:\n' % (NAME, NAME, NAME)
        out += a.text()
        out += '.section .rodata,"a"\n.p2align 6\n.amdhsa_kernel %s_kernel\n' % NAME
        out += "  .amdhsa_next_free_vgpr 128\n  .amdhsa_next_free_sgpr 102\n  .amdhsa_accum_offset 128\n"
        out += "  .amdhsa_group_segment_fixed_size 0\n  .amdhsa_kernarg_size 104\n  .amdhsa_user_sgpr_count 2\n"
        out += "  .amdhsa_user_sgpr_kernarg_segment_ptr 1\n  .amdhsa_system_sgpr_workgroup_id_x 1\n.end_amdhsa_kernel\n"
        return out


if __name__ == "__main__":
    opts = {}
    outp = "cdna_kernels/%s.s" % NAME
    for arg in sys.argv[1:]:
        if arg.startswith("-o"):
            outp = arg[2:]
        else:
            k, v = arg.split("=")
            opts[k] = int(v, 0)
    open(outp, "w").write(Gen(**opts).build())
    print("wrote", outp)
```

```python
import re

TRANS = ("v_exp_f32", "v_rcp_f32", "v_rsq_f32", "v_log_f32", "v_sqrt_f32")


def _regs(tok):
    tok = tok.strip()
    tok = tok.lstrip("-")
    m = re.fullmatch(r"abs\((.*)\)", tok)
    if m:
        tok = m.group(1)
    m = re.fullmatch(r"([vsa])(\d+)", tok)
    if m:
        return [(m.group(1), int(m.group(2)))]
    m = re.fullmatch(r"([vsa])\[(\d+):(\d+)\]", tok)
    if m:
        return [(m.group(1), i) for i in range(int(m.group(2)), int(m.group(3)) + 1)]
    if tok == "vcc":
        return [("s", 106), ("s", 107)]
    if tok == "exec":
        return [("s", 126), ("s", 127)]
    return []


class Asm:
    def __init__(self):
        self.lines = []
        self.hist = []
        self.maxv = 0
        self.maxs = 0
        self.nlabel = 0
        self.allow_mfma_waw = False
        self.pending = None

    def after(self, n, fn):
        self.pending = [n, fn]

    def raw(self, text):
        self.lines.append(text)

    def comment(self, text):
        self.lines.append("    ; " + text)

    def label(self, name):
        self.lines.append(name + ":")

    def newlabel(self, base="L"):
        self.nlabel += 1
        return "%s_%d" % (base, self.nlabel)

    def _advance(self, n):
        for h in self.hist:
            h["age"] += n
        self.hist = [h for h in self.hist if h["age"] < 24]

    def nop(self, n):
        while n > 0:
            k = min(n, 16)
            self.lines.append("    s_nop %d" % (k - 1))
            self._advance(k)
            n -= k

    def settle(self):
        need = 0
        for h in self.hist:
            if h["kind"] == "mfma":
                need = max(need, 8 - h["age"])
            elif h["kind"] in ("valu", "trans"):
                need = max(need, (5 if any(k == "s" for k, _ in h["w"]) else 2) - h["age"])
            elif h["kind"] == "store":
                need = max(need, 2 - h["age"])
        if need > 0:
            self.nop(need)

    def I(self, text):
        text = text.strip()
        parts = text.split(None, 1)
        op = parts[0]
        rest = parts[1] if len(parts) > 1 else ""
        ops = []
        cur = ""
        depth = 0
        for ch in rest:
            if ch in "[(":
                depth += 1
            if ch in "])":
                depth -= 1
            if ch == "," and depth == 0:
                ops.append(cur.strip())
                cur = ""
            else:
                cur += ch
        if cur.strip():
            ops.append(cur.strip())
        mods = ""
        if ops:
            sp = ops[-1].split(None, 1)
            ops[-1] = sp[0]
            mods = sp[1] if len(sp) > 1 else ""
        allregs = [r for o in ops for r in _regs(o)]
        for k, i in allregs:
            if k == "v":
                self.maxv = max(self.maxv, i + 1)
            if k == "s" and i < 104:
                self.maxs = max(self.maxs, i + 1)

        kind = "other"
        w, r, c = [], [], []
        dpp_r = []
        perm_r = []
        rl_r = []
        if op.startswith("v_mfma"):
            kind = "mfma"
            w = _regs(ops[0])
            r = _regs(ops[1]) + _regs(ops[2])
            c = _regs(ops[3])
        elif op.startswith("v_permlane") or op == "v_swap_b32":
            kind = "valu"
            w = _regs(ops[0]) + _regs(ops[1])
            r = list(w)
            if op.startswith("v_permlane"):
                perm_r = list(w)
        elif op.startswith("v_readfirstlane") or op.startswith("v_readlane"):
            kind = "valu"
            w = _regs(ops[0])
            r = [x for o in ops[1:] for x in _regs(o)]
            rl_r = _regs(ops[1])
        elif op.startswith("v_"):
            kind = "trans" if op.replace("_e32", "").replace("_e64", "") in TRANS else "valu"
            w = _regs(ops[0])
            r = [x for o in ops[1:] for x in _regs(o)]
            if op.startswith("v_fmac") or "_dpp" in op:
                r += w
            if "_dpp" in op:
                dpp_r = _regs(ops[1])
            if op.startswith("v_cndmask") and len(ops) == 3:
                r += _regs("vcc")
        elif op.startswith("buffer_load") or op.startswith("global_load"):
            kind = "load"
            w = _regs(ops[0])
            r = [x for o in ops[1:] for x in _regs(o)]
        elif op.startswith("buffer_store") or op.startswith("global_store") or op.startswith("buffer_atomic"):
            kind = "store"
            r = [x for o in ops for x in _regs(o)]
            c = _regs(ops[0])
        elif op.startswith("ds_read"):
            kind = "dsr"
            w = _regs(ops[0])
            r = [x for o in ops[1:] for x in _regs(o)]
        elif op.startswith("ds_"):
            kind = "dsw"
            r = [x for o in ops for x in _regs(o)]
        elif op.startswith("s_"):
            kind = "salu"

        isvalu = kind in ("valu", "trans")
        ismem = kind in ("load", "store", "dsr", "dsw")
        need = 0
        W, R, C = set(w), set(r), set(c)
        for h in self.hist:
            hw = h["w"]
            req = 0
            if h["kind"] in ("valu", "trans"):
                vw = {x for x in hw if x[0] == "v"}
                sw = {x for x in hw if x[0] == "s"}
                if kind == "mfma" and vw & (R | C):
                    req = max(req, 2)
                if vw & set(dpp_r):
                    req = max(req, 2)
                if vw & set(perm_r):
                    req = max(req, 2)
                if vw & set(rl_r):
                    req = max(req, 1)
                if h["kind"] == "trans" and kind != "trans" and (isvalu or ismem or kind == "mfma") and vw & (R | C):
                    req = max(req, 1)
                if sw & R:
                    if isvalu or kind == "mfma":
                        req = max(req, 2)
                    if kind in ("load", "store"):
                        req = max(req, 5)
            elif h["kind"] == "mfma":
                if kind == "mfma":
                    if hw & C:
                        req = max(req, 0 if hw == C else 6)
                    if hw & R:
                        req = max(req, 8)
                    if not self.allow_mfma_waw:
                        if hw & W and hw != W:
                            req = max(req, 8)
                        if hw & W and not (hw == C):
                            req = max(req, 8)
                elif isvalu or ismem:
                    if hw & (R | W):
                        req = max(req, 8)
                    if (isvalu or kind in ("load", "dsr")) and h["c"] & W:
                        req = max(req, 3)
            elif h["kind"] == "store":
                if len(h["c"]) >= 3 and h["c"] & W:
                    req = max(req, 2)
            need = max(need, req - h["age"])
        if need > 0:
            self.nop(need)
        self.lines.append("    " + text)
        self._advance(1)
        if op == "s_nop":
            self._advance(int(ops[0], 0))
        self.hist.append(dict(kind=kind, w=W, r=R, c=C, age=0))
        if self.pending:
            self.pending[0] -= 1
            if self.pending[0] <= 0:
                fn = self.pending[1]
                self.pending = None
                fn()

    def text(self):
        return "\n".join(self.lines) + "\n"
```

```python
import sys, os, math, struct
sys.path.insert(0, os.path.dirname(os.path.abspath(__file__)))
from asmlib import Asm

NAME = "interleave_layers__sliding_block_cached__sliding_block_cached__decode"

DEFAULTS = dict(
    ts=0,
    fast=1,
    dx=8,
    da=3, db=11,
    kq=14,
    bstart=3,
    prio=1,
    gsleep=1,
    pgap=1, dwq=4, psleep=2, khint=11, hintmax=40, kdelay=0, nb0=4, pf=0, pfd=3, pfdelay=0, cpf=0, db1=1, nb1=0, diag=0, dmul=4, wob=0, wobd=12, vf=2, epq=1, qgate=1, pfb=0, pfgate=1, pfbd=3, pfbdelay=0, pfnt=1, nbq1=0, dq1=3, fake=0, fs=2, spq=1, arm=1, da1=1, na1=0, xrs=0, dx2=8, dx3=15, dx4=8, dx5=7, m1=1, m2=1, cmb=17, q1b=1, opos=0, qpos=0, cg=2, cgk=16, gg=0, tb=0, tbw=0, pe=0, ap=1, arml=0, sp=0, qi=0, nwe=0, weg=2, wed=10, pad=1, fapd=0, fapw=0, eat=1, epb=0, mv=0, cpe=1, fh=0, fhb=1, fhd=0, csl=36, osl=22, xs=0, xl=0, xw=0,
)

QBUF = 0x000000
OBUF = 0x080000
SBUF = 0x0C0000
MLBUF, CSBUF, STBUF = SBUF, SBUF + 0x2000, SBUF + 0x6000
XBUF = 0x140000
Q1BUF = 0x200000
GFLAGS = 0x2B0000
PFLAGS = 0x2C0000
FLAGS2 = 0x2D0000
FLAGS = 0x2E0000
EPOCH = 0x2F0000
TSBUF = 0x300000
WS_BYTES = 0x400000
OOB = 0x40000000

FQX, FAQ, FOX, FOP, FISS, FWX, FST, FAP, FAO, GO, GOX, ARM, WGO = (
    0x00, 0x10, 0x20, 0x30, 0x40, 0x60, 0x80, 0x90, 0xB0, 0xF0, 0xF4, 0xF8, 0xFC)
FVX = 0x100
FHINT = 0x140
FQP = 0x160
FBI = 0x1A0
TBL = 0x1C0
ST1 = 0x180
MLL = 0x200
LLL = 0x240
QL = 0x400
OL2 = 0x400
XL = 0xC00
PL = 0x1000
XS = 0x1000
VX = 0x4000
WX = 0x4000
KX = 0x14000
LDS_BYTES = 0x24000

SRD_WS, SRD_M0, SRD_M1, SRD_X = "s[4:7]", "s[8:11]", "s[12:15]", "s[44:47]"
sW, sRole, sG, sI, sL, sPar, sBud, sSelLo, sSelHi, sMode = (
    "s42", "s43", "s48", "s49", "s50", "s51", "s52", "s53", "s54", "s55")
sCls, sU = "s3", "s73"
KA = dict(A_x=16, A_k=18, A_v=20, A_wq=22, A_wo=24, B_x=26, B_k=28, B_v=30, B_wq=32, B_wo=34,
          out=36, dbg=38, ws=40)
MASK0 = 20
TS0 = 76
NTS = 13


NOTES = """    ; One persistent launch, 256 workgroups x 16 waves, one per CU.  g = wg & 7 owns kv head g.
    ; Odd (wg >> 3): attention workgroups keep their K/V slices of both sets in registers.
    ; Even: projection workgroups keep their wq / wo tiles of both sets in registers.
    ; Hand-offs (q partials, attention partials, x partials) go through the workspace with parity tags on
    ; buffers this launch cleared itself; a launch counter in the workspace tells this launch's start-up
    ; flags from older ones.  LayerNorm is applied after the q projection (statistics + column sums).
    ; All waits are bounded.  Plain stores are used inside a group only if all of it sits on one XCD.
"""


def f32bits(x):
    return struct.unpack("<I", struct.pack("<f", x))[0]


def vr(a, n):
    return "v[%d:%d]" % (a, a + n - 1)


class Gen:
    def __init__(self, **opt):
        self.o = dict(DEFAULTS)
        self.o.update(opt)
        self.a = Asm()
        self.stubs = []

    def ts(self, k):
        if self.o["ts"] == 9 and k != 0:
            return
        if self.o["ts"]:
            assert k < 12
            if k == 0:
                self.a.I("s_memrealtime s[%d:%d]" % (TS0, TS0 + 1))
                self.a.I("s_memtime s[%d:%d]" % (TS0 + 24, TS0 + 25))
            else:
                self.a.I("s_memtime s[%d:%d]" % (TS0 + 2 * k, TS0 + 2 * k + 1))

    def ts_layer(self, k):
        self.ts(k)

    def ts_save(self):
        a = self.a
        if self.o["ts"] in (0, 9):
            return
        ln = a.newlabel("LT")
        a.I("s_waitcnt lgkmcnt(0)")
        a.I("s_cmp_lg_u32 s%d, 0" % (TS0 + 2 * 5))
        a.I("s_cbranch_scc1 %s" % ln)
        for k in range(8, 12):
            a.I("s_mov_b64 s[%d:%d], s[%d:%d]" % (TS0 + 2 * (k - 4), TS0 + 2 * (k - 4) + 1, TS0 + 2 * k, TS0 + 2 * k + 1))
        a.label(ln)

    def srd_sel(self, srd, pa, pb, nbytes):
        a = self.a
        b = int(srd[2:srd.index(":")])
        a.I("s_cselect_b32 s%d, s%d, s%d" % (b, KA[pb], KA[pa]))
        a.I("s_cselect_b32 s%d, s%d, s%d" % (b + 1, KA[pb] + 1, KA[pa] + 1))
        a.I("s_mov_b32 s%d, 0x%x" % (b + 2, nbytes))
        a.I("s_mov_b32 s%d, 0x00020000" % (b + 3))

    def srd(self, srd, ptr, nbytes):
        a = self.a
        b = int(srd[2:srd.index(":")])
        a.I("s_mov_b32 s%d, s%d" % (b, KA[ptr]))
        a.I("s_mov_b32 s%d, s%d" % (b + 1, KA[ptr] + 1))
        a.I("s_mov_b32 s%d, 0x%x" % (b + 2, nbytes))
        a.I("s_mov_b32 s%d, 0x00020000" % (b + 3))

    def sacc(self, dst, terms, const=0):
        a = self.a
        first = True
        for reg, sh in terms:
            tgt = "s56" if first else "s57"
            if sh:
                a.I("s_lshl_b32 %s, %s, %d" % (tgt, reg, sh))
            else:
                a.I("s_mov_b32 %s, %s" % (tgt, reg))
            if not first:
                a.I("s_add_u32 s56, s56, s57")
            first = False
        a.I("s_add_u32 %s, s56, 0x%x" % (dst, const))

    def prio(self, p):
        if self.o["prio"]:
            self.a.I("s_setprio %d" % p)

    def stub(self, lines):
        l = self.a.newlabel("ST")
        self.stubs.append((l, lines))
        return l

    def retry_stub(self, back, sleep=0, pre=()):
        lines = list(pre)
        if sleep:
            lines.append("s_sleep %d" % sleep)
        lines += ["s_sub_u32 %s, %s, 1" % (sBud, sBud), "s_cbranch_scc0 %s" % back, "s_branch L_end"]
        return self.stub(lines)

    def bail(self, back):
        a = self.a
        a.I("s_sub_u32 %s, %s, 1" % (sBud, sBud))
        a.I("s_cbranch_scc0 %s" % back)
        a.I("s_branch L_end")

    def lds_wait_ge(self, vaddr, off, sval, vt, sleep=1):
        a = self.a
        l0 = a.newlabel("LW")
        a.label(l0)
        a.I("ds_read_b32 %s, %s offset:%d" % (vt, vaddr, off))
        a.I("s_waitcnt lgkmcnt(0)")
        a.I("v_cmp_gt_u32 vcc, %s, %s" % (sval, vt))
        a.I("s_cbranch_vccnz %s" % self.retry_stub(l0, sleep))

    def tagtree(self, regs, vt, vt2, par):
        a = self.a
        regs = list(regs)
        n = len(regs)
        if n == 1:
            a.I("v_bitop3_b32 %s, %s, %s, 1 bitop3:0x28" % (vt, regs[0], par))
            return
        if n < 4:
            a.I("v_bitop3_b32 %s, %s, %s, %s bitop3:0x7e" % (vt, regs[0], regs[1], par))
            for x in regs[2:]:
                a.I("v_bitop3_b32 %s, %s, %s, %s bitop3:0xf6" % (vt, vt, x, par))
            a.I("v_and_b32 %s, 1, %s" % (vt, vt))
            return
        h = n // 2
        A, B = regs[:h], regs[h:]
        a.I("v_bitop3_b32 %s, %s, %s, %s bitop3:0x7e" % (vt, A[0], A[1], par))
        a.I("v_bitop3_b32 %s, %s, %s, %s bitop3:0x7e" % (vt2, B[0], B[1], par))
        A, B = A[2:], B[2:]
        for i in range(max(len(A), len(B))):
            if i < len(A):
                a.I("v_bitop3_b32 %s, %s, %s, %s bitop3:0xf6" % (vt, vt, A[i], par))
            if i < len(B):
                a.I("v_bitop3_b32 %s, %s, %s, %s bitop3:0xf6" % (vt2, vt2, B[i], par))
        a.I("v_bitop3_b32 %s, %s, %s, 1 bitop3:0xa8" % (vt, vt, vt2))

    def poll(self, loads, vt, vt2, par, sleep=0):
        a = self.a
        l0 = a.newlabel("LP")
        a.label(l0)
        for ld, _ in loads:
            a.I(ld)
        a.I("s_waitcnt vmcnt(0)")
        self.tagtree([t for _, tg in loads for t in tg], vt, vt2, par)
        a.I("v_cmp_ne_u32 vcc, 0, %s" % vt)
        a.I("s_cbranch_vccnz %s" % self.retry_stub(l0, sleep, pre=["s_mov_b64 exec, vcc"]))
        a.I("s_mov_b64 exec, -1")

    def exchange(self, flagoff, vf, reads, sval=None, shadow=None, nshadow_ds=0, vbase="v13", sleep=0, optimistic=True, wait=True, fullstub=False, lowspin=0):
        a = self.a
        chk = ["v_min3_u32 v%d, v%d, v%d, v%d" % (vf, vf, vf + 1, vf + 2),
               "v_min_u32 v%d, v%d, v%d" % (vf, vf, vf + 3),
               "v_cmp_gt_u32 vcc, %s, v%d" % (sval or sL, vf)]
        rdf = "ds_read_b128 %s, %s offset:%d" % (vr(vf, 4), vbase, flagoff)
        if reads and optimistic == 2:
            l0 = a.newlabel("LXF")
            a.label(l0)
            a.I(rdf)
            for r in reads:
                a.I(r)
            a.I("s_waitcnt lgkmcnt(%d)" % (0 if self.o["ts"] not in (0, 9) else len(reads)))
            for x in chk:
                a.I(x)
            a.I("s_cbranch_vccnz %s" % self.retry_stub(l0, sleep))
        elif reads and optimistic:
            l1, ls = a.newlabel("LXD"), a.newlabel("LXS")
            a.I(rdf)
            for r in reads:
                a.I(r)
            if callable(shadow):
                shadow()
            else:
                for x in (shadow or []):
                    a.I(x)
            a.I("s_waitcnt lgkmcnt(%d)" % (0 if self.o["ts"] not in (0, 9) else len(reads) + nshadow_ds))
            for x in chk:
                a.I(x)
            if fullstub:
                lines = ["s_sub_u32 %s, %s, 1" % (sBud, sBud), "s_cbranch_scc1 L_end", rdf] + list(reads)
                lines += ["s_waitcnt lgkmcnt(%d)" % (0 if self.o["ts"] not in (0, 9) else len(reads))] + chk
                lines += ["s_cbranch_vccnz %s" % ls, "s_branch %s" % l1]
            else:
                lines = ["s_setprio 1"] * lowspin + ["s_sub_u32 %s, %s, 1" % (sBud, sBud), "s_cbranch_scc1 L_end", rdf, "s_waitcnt lgkmcnt(0)"] + chk
                lines += ["s_cbranch_vccnz %s" % ls] + ["s_setprio 3"] * lowspin + list(reads) + ["s_branch %s" % l1]
            self.stubs.append((ls, lines))
            a.I("s_cbranch_vccnz %s" % ls)
            a.label(l1)
        else:
            l0 = a.newlabel("LX")
            a.label(l0)
            a.I(rdf)
            a.I("s_waitcnt lgkmcnt(0)")
            for x in chk:
                a.I(x)
            a.I("s_cbranch_vccnz %s" % self.retry_stub(l0, sleep))
            for r in reads:
                a.I(r)
        if reads and wait:
            a.I("s_waitcnt lgkmcnt(0)")

    def flag_set(self, vaddr, off, vval):
        self.a.I("ds_write_b32 %s, %s offset:%d" % (vaddr, vval, off))

    def mode_test(self):
        if self.o["fast"]:
            self.a.I("s_cmp_eq_u32 %s, 0" % sMode)

    def moded_stores(self, stores, tested=False):
        a = self.a
        if not self.o["fast"]:
            for s in stores:
                a.I(s + " sc1")
            return
        l1 = a.newlabel("LSD")
        if not tested:
            self.mode_test()
        a.I("s_cbranch_scc1 %s" % self.stub(["s_nop 7"] + [x + " sc1" for x in stores] + ["s_branch %s" % l1]))
        for s in stores:
            a.I(s)
        a.label(l1)

    def transpose(self, stg, dst, ndw):
        a = self.a
        for j in range(2 * ndw):
            u = j >> 1
            sel = sSelHi if (j & 1) else sSelLo
            for t in range(4):
                a.I("v_perm_b32 v%d, v%d, v%d, %s" % (dst + 4 * j + t, stg + ndw * (2 * t + 1) + u, stg + ndw * (2 * t) + u, sel))

    def wait_go(self, vt):
        a = self.a
        self.lds_wait_ge("v13", GO, "1", vt, sleep=1)
        a.I("v_readfirstlane_b32 %s, %s" % (sMode, vt))
        a.I("s_lshr_b32 %s, %s, 1" % (sMode, sMode))

    def epoch_tags(self):
        a = self.a
        a.I("s_add_u32 s74, s74, 1")
        a.I("s_addc_u32 s75, s75, 0")
        for k in range(4):
            a.I("s_lshr_b64 s[56:57], s[74:75], %d" % (15 * k))
            a.I("s_and_b32 s57, s56, 0x4000")
            a.I("s_and_b32 s56, s56, 0x3fff")
            a.I("s_lshl_b32 s57, s57, 1")
            a.I("s_or_b32 s%d, s56, s57" % (60 + k))

    def load_epoch(self):
        a = self.a
        a.I("s_add_u32 s56, s%d, 0x%x" % (KA["ws"], EPOCH))
        a.I("s_addc_u32 s57, s%d, 0" % (KA["ws"] + 1))
        a.I("s_load_dwordx2 s[74:75], s[56:57], 0")

    def selector(self, dst, val, t0, t1):
        a = self.a
        a.I("v_and_b32 %s, 1, v1" % t0)
        a.I("v_lshlrev_b32 %s, 4, %s" % (t0, t0))
        a.I("v_mov_b32 %s, 0x%x" % (t1, val))
        a.I("v_lshlrev_b32 %s, %s, %s" % (t0, t0, t1))
        a.I("v_bfe_u32 %s, v1, 1, 2" % t1)
        for t in range(4):
            a.I("v_cmp_eq_u32 vcc, %d, %s" % (t, t1))
            a.I("v_cndmask_b32 v%d, v13, %s, vcc" % (dst + t, t0))

    def poll2(self, loads, vt, vt2, par, on_first=(), data=None, early=0, defer=0, entry=None, warm=0):
        a = self.a
        l0 = a.newlabel("LP")
        tags = [t for _, tg in loads for t in tg]
        if warm:
            a.I("s_cmp_gt_u32 %s, %d" % (sL, warm))
            a.I("s_cbranch_scc1 %s" % l0)
            for ld in data:
                a.I(ld)
        a.label(l0)
        for ld, _ in loads:
            a.I(ld)
        if early:
            le = a.newlabel("LE")
            a.I("s_cmp_gt_u32 %s, %d" % (sL, early))
            a.I("s_cbranch_scc1 %s" % le)
            for ld in data:
                a.I(ld)
            a.label(le)
        if entry:
            a.label(entry)
        a.I("s_waitcnt vmcnt(0)")
        self.tagtree(tags, vt, vt2, par)
        a.I("v_cmp_ne_u32 vcc, 0, %s" % vt)
        lt = a.newlabel("LPT")
        lines = ["s_sub_u32 %s, %s, 1" % (sBud, sBud), "s_cbranch_scc1 L_end",
                 "s_cmp_eq_u64 vcc, -1", "s_cbranch_scc0 %s" % lt,
                 "s_sleep %d" % self.o["psleep"], "s_branch %s" % l0,
                 lt + ":", "s_setprio 3"] + list(on_first) + ([] if early else ["s_mov_b64 exec, vcc"]) + ["s_branch %s" % l0]
        a.I("s_cbranch_vccnz %s" % self.stub(lines))
        def issue():
            if early:
                le = a.newlabel("LE")
                a.I("s_cbranch_scc0 %s" % le)
                for ld in data:
                    a.I(ld)
                a.label(le)
            else:
                for ld in (data or []):
                    a.I(ld)

        if not early:
            a.I("s_mov_b64 exec, -1")
        if not defer:
            issue()
        self.prio(3)
        for x in on_first:
            a.I(x)
        if defer:
            a.after(defer, issue)

    def prologue(self):
        a = self.a
        a.I("s_cmp_ge_u32 s2, 256")
        a.I("s_cbranch_scc1 L_exit")
        a.I("s_load_dwordx16 s[16:31], s[0:1], 0")
        a.I("s_load_dwordx8 s[32:39], s[0:1], 64")
        a.I("s_load_dwordx2 s[40:41], s[0:1], 96")
        self.ts(0)
        if self.o["diag"]:
            a.I("s_memrealtime s[76:77]")
            a.I("s_memtime s[86:87]")
        a.I("v_and_b32 v1, 63, v0")
        a.I("v_lshrrev_b32 v2, 6, v0")
        a.I("s_and_b32 %s, s2, 7" % sG)
        a.I("v_readfirstlane_b32 s58, v2")
        a.I("v_lshlrev_b32 v4, 4, v1")
        a.I("v_and_b32 v2, 15, v1")
        a.I("v_lshrrev_b32 v3, 4, v1")
        a.I("s_lshr_b32 %s, s2, 4" % sU)
        if self.o["fh"]:
            self.fast_head()
        a.I("v_mov_b32 v13, 0")
        a.I("v_lshlrev_b32 v5, 2, v1")
        a.I("s_and_b32 %s, s58, 3" % sW)
        a.I("s_lshr_b32 %s, s58, 2" % sRole)
        a.I("s_lshr_b32 %s, s2, 3" % sI)
        a.I("s_and_b32 %s, %s, 1" % (sCls, sI))
        a.I("s_mov_b32 %s, 0x10000" % sBud)
        a.I("s_mov_b32 %s, 0x05040100" % sSelLo)
        a.I("s_mov_b32 %s, 0x07060302" % sSelHi)
        a.I("s_mov_b32 %s, 0" % sMode)
        a.I("s_mov_b32 %s, 1" % sL)
        a.I("s_lshl_b32 s56, %s, 2" % sW)
        a.I("v_mov_b32 v14, s56")
        if self.o["cpe"] and not self.o["fh"]:
            a.I("s_lshl_b32 s56, %s, 2" % sCls)
            a.I("s_add_u32 s56, s56, %s" % sRole)
            if self.o["cpe"] == 3:
                a.I("s_cmp_lg_u32 %s, 0" % sRole)
            else:
                a.I("s_cmp_lg_u32 s56, %d" % (self.o["cpe"] - 1))
            a.I("s_cbranch_scc1 L_nocpe")
            a.I("s_getpc_b64 s[44:45]")
            a.label("L_pc1")
            a.I("s_mov_b32 s46, L_codeend-L_pc1")
            a.I("s_mov_b32 s47, 0x00020000")
            a.I("s_mul_i32 s57, %s, 3072" % sW)
            for k in range(3):
                a.I("buffer_load_dwordx4 v[40:43], v4, s[44:47], s57 offen offset:%d" % (1024 * k))
            a.label("L_nocpe")
        if self.o["epq"]:
            a.I("s_lshl_b32 s56, %s, 2" % sCls)
            a.I("s_add_u32 s56, s56, %s" % sRole)
            a.I("s_cmp_lt_u32 s56, 2")
            a.I("s_cbranch_scc1 L_PQ")
        if self.o["eat"]:
            a.I("s_cmp_lt_u32 %s, 2" % sRole)
            a.I("s_cbranch_scc1 L_ATT")
        if self.o["cpf"]:
            a.I("s_cmp_lg_u32 %s, 3" % sRole)
            a.I("s_cbranch_scc1 L_nocpf")
            a.I("s_getpc_b64 s[44:45]")
            a.label("L_pc0")
            a.I("s_mov_b32 s46, L_codeend-L_pc0")
            a.I("s_mov_b32 s47, 0x00020000")
            a.I("s_lshl_b32 s56, %s, 12" % sW)
            for k in range(4):
                a.I("buffer_load_dwordx4 v[40:43], v4, s[44:47], s56 offen offset:%d" % (1024 * k))
            if self.o["cpf"] > 1:
                a.I("s_add_u32 s56, s56, 16384")
                for k in range(4):
                    a.I("buffer_load_dwordx4 v[40:43], v4, s[44:47], s56 offen offset:%d" % (1024 * k))
            a.label("L_nocpf")
        a.I("s_cmp_lg_u32 s58, %d" % (8 if self.o["epq"] else 0))
        a.I("s_cbranch_scc1 L_noinit")
        a.I("ds_write_b32 v5, v13")
        a.I("ds_write_b32 v5, v13 offset:256")
        a.I("v_mov_b32 v6, 0x3f803f80")
        a.I("v_and_b32 v7, 0x7c, v5")
        a.I("ds_write_b32 v7, v6 offset:%d" % (XL + 4 * 128))
        a.I("v_mov_b32 v6, -1")
        a.I("ds_write_b32 v5, v6 offset:%d" % MLL)
        a.I("ds_write_b32 v5, v6 offset:%d" % (MLL + 256))
        a.label("L_noinit")
        a.I("s_waitcnt lgkmcnt(0)")
        a.I("s_barrier")
        self.srd(SRD_WS, "ws", WS_BYTES)
        a.I("s_cmp_eq_u32 s58, 13")
        a.I("s_cbranch_scc1 L_HS")
        a.label("L_roles")
        a.I("s_lshl_b32 s56, %s, 2" % sCls)
        a.I("s_add_u32 s56, s56, %s" % sRole)
        if not self.o["epq"]:
            a.I("s_cmp_lt_u32 s56, 2")
            a.I("s_cbranch_scc1 L_PQ")
        a.I("s_cmp_lt_u32 s56, 4")
        a.I("s_cbranch_scc1 L_PO")

    def fast_head(self):
        a = self.a
        a.I("s_cmp_ge_u32 s58, 8")
        a.I("s_cbranch_scc1 L_norm")
        a.I("s_mov_b32 s11, 0x00020000")
        a.I("s_bitcmp1_b32 s2, 3")
        a.I("s_cbranch_scc0 L_fh_p")
        a.I("s_lshr_b32 s56, %s, 2" % sU)
        a.I("s_lshl3_add_u32 s56, s56, %s" % sG)
        a.I("s_and_b32 s57, %s, 3" % sU)
        a.I("s_lshl4_add_u32 s56, s56, s57")
        a.I("s_lshl3_add_u32 s56, s56, s58")
        a.I("s_addk_i32 s56, 96")
        a.I("s_lshl_b32 s56, s56, 13")
        a.I("v_lshlrev_b32 v16, 4, v2")
        a.I("v_lshl_add_u32 v8, v3, 10, v16")
        a.I("s_brev_b32 s10, 64")
        a.I("s_waitcnt lgkmcnt(0)")
        a.I("s_mov_b64 s[8:9], s[%d:%d]" % (KA["A_v"], KA["A_v"] + 1))
        self.ts(1)
        for i in range(4):
            a.I("buffer_load_dwordx4 %s, v8, s[8:11], s56 offen offset:%d nt" % (vr(52 + 4 * i, 4), i * 256))
        a.I("s_branch L_norm")
        a.label("L_fh_p")
        a.I("s_bfe_u32 s56, %s, 0x20001" % sU)
        a.I("s_lshl_b32 s56, s56, 5")
        a.I("s_and_b32 s57, %s, 1" % sU)
        a.I("s_or_b32 s56, s56, s57")
        a.I("v_and_b32 v22, 1, v3")
        a.I("s_cmp_ge_u32 s58, 4")
        a.I("s_cbranch_scc1 L_fh_x")
        a.I("s_getpc_b64 s[8:9]")
        a.label("L_pc1")
        a.I("s_mov_b32 s10, L_codeend-L_pc1")
        a.I("s_mul_i32 s57, s58, 3072")
        for k in range(3):
            a.I("buffer_load_dwordx4 v[40:43], v4, s[8:11], s57 offen offset:%d" % (1024 * k))
        a.I("s_lshl_b32 s56, s56, 5")
        a.I("s_or_b32 s56, s56, %s" % sG)
        a.I("s_lshr_b32 s57, %s, 3" % sU)
        a.I("s_lshl1_add_u32 s56, s56, s57")
        a.I("s_lshl2_add_u32 s56, s56, s58")
        a.I("s_lshl_b32 s56, s56, 7")
        a.I("v_lshlrev_b32 v20, 3, v2")
        a.I("v_lshl_add_u32 v21, v22, 19, v20")
        a.I("v_lshrrev_b32 v23, 1, v3")
        a.I("v_lshl_add_u32 v6, v23, 13, v21")
        a.I("v_add_u32 v7, 0x4000, v6")
        a.I("s_mov_b32 s57, 0x10000")
        a.I("s_lshl_b32 s10, s57, 6")
        a.I("s_waitcnt lgkmcnt(0)")
        a.I("s_mov_b64 s[8:9], s[%d:%d]" % (KA["A_wq"], KA["A_wq"] + 1))
        if self.o["fhd"]:
            a.I("s_sleep %d" % self.o["fhd"])
        self.ts(11)
        for e in range(8):
            for ks in range(2):
                a.I("buffer_load_dwordx2 %s, v%d, s[8:11], s56 offen nt" % (vr(52 + 16 * ks + 2 * e, 2), 6 + ks))
            if e < 7:
                a.I("s_add_u32 s56, s56, s57")
        a.I("s_branch L_norm")
        a.label("L_fh_x")
        a.I("s_setprio 3")
        a.I("s_sub_u32 s57, s58, 4")
        a.I("s_lshl2_add_u32 s56, s56, s57")
        a.I("s_lshl_b32 s56, s56, 1")
        a.I("s_lshl_b32 s57, s57, 10")
        a.I("v_bfe_u32 v21, v2, 1, 2")
        a.I("v_and_b32 v23, 1, v2")
        a.I("v_lshl_add_u32 v23, v23, 1, v22")
        a.I("v_lshlrev_b32 v24, 10, v21")
        a.I("v_lshl_add_u32 v11, v23, 6, v24")
        a.I("s_movk_i32 s10, 4096")
        a.I("s_waitcnt lgkmcnt(0)")
        a.I("s_mov_b64 s[8:9], s[%d:%d]" % (KA["A_x"], KA["A_x"] + 1))
        a.I("buffer_load_dwordx4 v[96:99], v4, s[8:11], s57 offen")
        for rr in range(4):
            a.I("buffer_load_ushort v%d, v11, s[8:11], s56 offen offset:%d" % (116 + rr, 16 * rr))
        a.label("L_norm")

    def att(self):
        a, o = self.a, self.o
        vKA, vKB, vV, vQLR, vOP, vMLP, vMLW, vPW, vPR, vMLR, vF, vFW = (
            "v6", "v7", "v8", "v9", "v10", "v11", "v15", "v5", "v16", "v17", "v2", "v3")
        TM = 12
        M_, L_ = 18, 19
        K0, V0, G0, P0, S0 = 20, 52, 84, 116, 120
        sKV, sOP, sMLP, sRow, sKV2, sSgn, sQuad = "s64", "s65", "s66", "s67", "s69", "s70", "s71"
        a.label("L_ATT")
        a.I("s_and_b32 %s, %s, 1" % (sQuad, sRole))
        a.I("s_lshr_b32 %s, %s, 1" % (sPar, sRole))
        a.I("s_lshl_b32 %s, %s, 1" % (sRow, sU))
        a.I("s_add_u32 %s, %s, %s" % (sRow, sRow, sQuad))
        a.I("s_add_u32 %s, %s, 1" % (sL, sPar))
        if not o["eat"]:
            a.I("s_cmp_lg_u32 %s, 0" % sPar)
            self.srd_sel(SRD_M0, "A_k", "B_k", 32 << 20)
            self.srd_sel(SRD_M1, "A_v", "B_v", 32 << 20)
        a.I("s_lshr_b32 s58, %s, 3" % sRow)
        a.I("s_and_b32 s59, %s, 7" % sRow)
        self.sacc(sKV, [("s58", 23), (sG, 20), ("s59", 15), (sW, 13)], 3072 * 256)
        a.I("s_add_u32 %s, %s, 4096" % (sKV2, sKV))
        a.I("v_lshlrev_b32 v16, 4, v2")
        a.I("v_lshl_add_u32 %s, v3, 10, v16" % vV)
        a.I("v_mov_b32 v18, 1")
        a.I("s_lshl_b32 s56, %s, 4" % sQuad)
        a.I("v_add_u32 v19, s56, v14")
        lds_ = []
        for q in range(8):
            lds_.append("buffer_load_dwordx4 %s, v4, %s, %s offen offset:%d nt" % (vr(K0 + 4 * q, 4), SRD_M0, sKV2 if q >= 4 else sKV, (q & 3) * 1024))
        for i in range(8):
            so = sKV2 if i >= 4 else sKV
            lds_.append("buffer_load_dwordx4 %s, %s, %s, %s offen offset:%d nt" % (vr(V0 + 4 * i, 4), vV, SRD_M1, so, (i & 3) * 256))
        if o["vf"]:
            lds_ = lds_[8:] + lds_[:8]
        a.I("s_cmp_lg_u32 %s, 0" % sPar)
        a.I("s_cbranch_scc1 L_att_sb")
        if o["kdelay"]:
            a.I("s_sleep %d" % o["kdelay"])
        if o["eat"]:
            assert o["vf"]
            a.I("s_mov_b32 s14, 0x%x" % (32 << 20))
            a.I("s_mov_b32 s15, 0x00020000")
            a.I("s_waitcnt lgkmcnt(0)")
            a.I("s_mov_b64 s[12:13], s[%d:%d]" % (KA["A_v"], KA["A_v"] + 1))
        if not o["fh"]:
            self.ts(1)
        for k, ld in enumerate(lds_):
            if o["fh"] and k < 4:
                continue
            d = o["da1"] if k < o["na1"] else o["da"]
            if o["eat"] and k == 4:
                self.srd(SRD_M0, "A_k", 32 << 20)
                self.srd(SRD_WS, "ws", WS_BYTES)
                a.I("s_barrier")
            if k > d:
                a.I("s_waitcnt vmcnt(%d)" % d)
            if k == o["kq"]:
                a.I("ds_write_b32 v19, v18 offset:%d" % FISS)
            if k == o["khint"]:
                a.I("ds_write_b32 v19, v18 offset:%d" % FHINT)
            a.I(ld)
        if o["nbq1"]:
            a.I("v_mov_b32 v18, 2")
            a.I("ds_write_b32 v19, v18 offset:%d" % FISS)
        a.I("s_branch L_att_se")
        a.label("L_att_sb")
        if o["eat"]:
            a.I("s_waitcnt lgkmcnt(0)")
            self.srd(SRD_M0, "B_k", 32 << 20)
            self.srd(SRD_M1, "B_v", 32 << 20)
            self.srd(SRD_WS, "ws", WS_BYTES)
        self.load_epoch()
        a.I("s_cmp_lg_u32 %s, 0" % sQuad)
        a.I("s_cbranch_scc1 L_att_b1")
        self.collect_first(G0, S0)
        a.I("s_branch L_att_b2")
        a.label("L_att_b1")
        a.I("s_cmp_lg_u32 %s, 0" % sW)
        a.I("s_cbranch_scc1 L_att_b2")
        self.lds_wait_ge("v13", FHINT, "1", "v16", sleep=1)
        a.I("s_add_u32 s74, s74, 1")
        a.I("s_addc_u32 s75, s75, 0")
        a.I("v_mov_b32 v16, s74")
        a.I("v_mov_b32 v17, s75")
        self.sacc("s58", [(sG, 12), (sI, 7)], GFLAGS)
        a.I("s_mov_b64 exec, 1")
        a.I("buffer_store_dwordx2 v[16:17], v13, %s, s58 offen" % SRD_WS)
        a.I("s_mov_b64 exec, -1")
        a.label("L_att_b2")
        if o["nbq1"]:
            lq = a.newlabel("LBQ")
            a.I("s_cmp_eq_u32 %s, 0" % sQuad)
            a.I("s_cbranch_scc1 %s" % lq)
            self.exchange(FISS, S0, [], sval="2", sleep=2)
            self.exchange(FISS + 16, S0, [], sval="2", sleep=1)
            self.ts(1)
            for k, ld in enumerate(lds_):
                if k == o["nbq1"]:
                    self.exchange(FAP, S0, [], sval="1", sleep=1)
                    self.exchange(FAP + 16, S0, [], sval="1", sleep=1)
                if k < o["nbq1"] and k > o["dq1"]:
                    a.I("s_waitcnt vmcnt(%d)" % o["dq1"])
                a.I(ld)
            a.I("s_branch L_att_se")
            a.label(lq)
        if o["bstart"] == 2:
            self.exchange(FAP, S0, [], sval="1", sleep=2)
            self.exchange(FAP + 16, S0, [], sval="1", sleep=1)
        elif o["bstart"] in (1, 3):
            self.exchange(FAQ, S0, [], sval="1", sleep=2)
            if o["tb"]:
                self.lds_wait_ge("v13", TBL, "1", "v16", sleep=2)
                a.I("v_readfirstlane_b32 s58, v16")
                lt = a.newlabel("LTB")
                a.label(lt)
                a.I("s_memrealtime s[56:57]")
                a.I("s_waitcnt lgkmcnt(0)")
                a.I("s_sub_u32 s56, s56, s58")
                a.I("s_cmp_lt_i32 s56, %d" % o["tb"])
                a.I("s_cbranch_scc1 %s" % self.retry_stub(lt, 2))
        else:
            self.lds_wait_ge("v19", FISS, "1", "v16", sleep=2)
        self.ts(1)
        for k, ld in enumerate(lds_):
            d = o["db1"] if k < o["nb1"] else o["db"]
            if o["bstart"] == 3 and k == o["nb0"]:
                self.exchange(FAP, S0, [], sval="1", sleep=1)
                self.exchange(FAP + 16, S0, [], sval="1", sleep=1)
                if o["fapd"]:
                    a.I("s_sleep %d" % o["fapd"])
            if k > d:
                a.I("s_waitcnt vmcnt(%d)" % d)
            if o["cg"] and k == o["cgk"]:
                a.I("ds_write_b32 v19, v18 offset:%d" % FBI)
            a.I(ld)
        if o["cg"] and o["cgk"] == 16:
            a.I("ds_write_b32 v19, v18 offset:%d" % FBI)
        if o["bstart"] < 2:
            self.exchange(FAP, S0, [], sval="1", sleep=2)
            self.exchange(FAP + 16, S0, [], sval="1", sleep=1)
        a.label("L_att_se")
        self.ts(2)
        a.I("s_lshl_b32 s58, %s, 4" % sRole)
        a.I("v_add_u32 v0, s58, v14")
        a.I("s_mov_b32 %s, 0" % sSgn)
        self.sacc(sOP, [(sG, 15), (sRow, 8), (sW, 6)], OBUF)
        if o["m1"]:
            a.I("s_lshr_b32 s60, %s, 3" % sRow)
            a.I("s_and_b32 s61, %s, 3" % sRow)
            a.I("s_bfe_u32 s62, %s, 0x10002" % sRow)
            self.sacc(sMLP, [(sG, 15), ("s60", 8), (sW, 6), ("s61", 4), ("s62", 3)], MLBUF)
        else:
            self.sacc(sMLP, [(sG, 15), (sRow, 6)], MLBUF)
        a.I("v_lshlrev_b32 v16, 2, v2")
        a.I("v_lshl_add_u32 %s, v3, 13, v16" % vOP)
        a.I("v_and_b32 v16, 3, v1")
        a.I("v_cmp_eq_u32 vcc, 0, v16")
        a.I("v_cndmask_b32 v%d, 0, 1, vcc" % TM)
        a.I("v_lshrrev_b32 v18, 2, v2")
        a.I("v_lshlrev_b32 v19, 4, v3")
        a.I("v_lshl_add_u32 %s, v18, 8, v19" % vQLR)
        if o["pad"]:
            a.I("v_lshl_add_u32 %s, v18, 6, %s" % (vQLR, vQLR))
        a.I("s_lshl_b32 s56, %s, 7" % sRole)
        a.I("v_add_u32 %s, s56, v19" % vMLR)
        a.I("v_lshl_add_u32 %s, v18, 4, v14" % vMLW)
        a.I("v_add_u32 %s, s56, %s" % (vMLW, vMLW))
        a.I("s_lshl_b32 s56, %s, 12" % sQuad)
        a.I("v_add_u32 %s, s56, v4" % vPR)
        a.I("s_lshl_b32 s56, %s, 10" % sW)
        a.I("v_add_u32 %s, s56, %s" % (vPW, vPR))
        if o["m1"]:
            a.I("v_lshlrev_b32 v19, 10, v18")
            a.I("v_and_b32 v1, 0x33, v1")
            a.I("v_cmp_eq_u32 vcc, 0, v1")
        else:
            a.I("v_lshlrev_b32 v19, 3, v2")
            a.I("v_lshl_add_u32 v19, v3, 11, v19")
            a.I("s_cmp_eq_u32 %s, 0" % sW)
            a.I("s_cselect_b32 s56, 8, 0")
            a.I("v_cmp_gt_u32 vcc, s56, v2")
        a.I("v_mov_b32 v1, 0x%x" % OOB)
        a.I("v_cndmask_b32 %s, v1, v19, vcc" % vMLP)
        self.sacc("s60", [(sQuad, 15), (sW, 13)], VX)
        self.sacc("s61", [(sQuad, 15), (sW, 11)], VX)
        a.I("v_xor_b32 v19, v2, v3")
        a.I("v_lshlrev_b32 v19, 4, v19")
        a.I("v_add_u32 v19, s60, v19")
        if o["vf"]:
            a.I("v_add_u32 v19, 0x%x, v19" % (KX - VX))
        a.I("v_lshl_add_u32 %s, v3, 8, v19" % vKA)
        a.I("v_lshl_add_u32 %s, v2, 8, v19" % vKB)
        a.I("v_mov_b32 %s, s58" % vF)
        a.I("v_mov_b32 %s, v0" % vFW)

        def k_prep():
            if o["vf"] == 2:
                for hf in range(2):
                    a.I("s_waitcnt vmcnt(%d)" % (4 - 4 * hf))
                    if hf:
                        self.ts(3)
                    for q in range(4):
                        a.I("v_xor_b32 v1, %d, %s" % (64 * q, vKA))
                        a.I("ds_write_b128 v1, %s offset:%d" % (vr(K0 + 4 * (q + 4 * hf), 4), 1024 * (q + 4 * hf)))
                    for st in range(4):
                        a.I("v_xor_b32 v1, %d, %s" % (64 * st, vKB))
                        a.I("ds_read_b128 %s, v1 offset:%d" % (vr(K0 + 4 * (4 * hf + st), 4), 4096 * hf))
                return
            for q in range(4):
                a.I("v_xor_b32 v1, %d, %s" % (64 * q, vKA))
                a.I("ds_write_b128 v1, %s offset:%d" % (vr(K0 + 4 * q, 4), 1024 * q))
                a.I("ds_write_b128 v1, %s offset:%d" % (vr(K0 + 4 * (q + 4), 4), 1024 * (q + 4)))
            for st in range(4):
                a.I("v_xor_b32 v1, %d, %s" % (64 * st, vKB))
                a.I("ds_read_b128 %s, v1" % vr(K0 + 4 * st, 4))
                a.I("ds_read_b128 %s, v1 offset:4096" % vr(K0 + 4 * (4 + st), 4))

        def v_prep():
            self.transpose(V0, G0, 4)
            a.I("v_add_u32 v1, s60, v4")
            for j in range(8):
                a.I("ds_write_b128 v1, %s offset:%d" % (vr(G0 + 4 * j, 4), 1024 * j))
            a.I("v_mov_b32 v0, 1")
            self.flag_set(vFW, FVX, "v0")
            a.I("v_add_u32 v1, s61, v4")
            self.exchange(FVX, S0, ["ds_read_b128 %s, v1 offset:%d" % (vr(V0 + 4 * (2 * kb + jj), 4), 8192 * kb + 1024 * jj) for kb in range(4) for jj in range(2)],
                          sval="1", vbase=vF, optimistic=False)

        a.I("s_waitcnt vmcnt(8)")
        if o["vf"]:
            v_prep()
            if o["vf"] == 1:
                a.I("s_waitcnt vmcnt(0)")
                self.ts(3)
            k_prep()
        else:
            k_prep()
            a.I("s_waitcnt vmcnt(0) lgkmcnt(0)")
            self.ts(3)
            v_prep()
        self.wait_go("v1")

        a.label("L_att_loop")
        self.prio(0)
        a.I("v_mov_b32 v0, %s" % sL)
        if o["arm"]:
            self.lds_wait_ge("v13", ARM, sL, "v1", sleep=o["gsleep"] if o["arm"] == 1 else 0)
            self.prio(o["ap"])
        QO = G0 + 16
        self.exchange(FAQ, S0, ["ds_read_b128 %s, %s offset:%d" % (vr(QO + 4 * s, 4), vQLR, QL + 64 * s) for s in range(4)], optimistic=2 if o["fs"] & 8 else False, wait=False)
        if not o["arm"] or o["ap"] != 3:
            self.prio(3)
        self.ts_layer(8)
        for T, s in ([(T, s) for s in range(4) for T in range(2)] if o["qi"] else [(T, s) for T in range(2) for s in range(4)]):
            if True:
                if T == 0:
                    a.I("s_waitcnt lgkmcnt(%d)" % (0 if o["ts"] not in (0, 9) else 3 - s))
                a.I("v_mfma_f32_16x16x32_bf16 %s, %s, %s, %s" % (vr(S0 + 4 * T, 4), vr(K0 + (4 * T + s) * 4, 4), vr(QO + 4 * s, 4), "0" if s == 0 else vr(S0 + 4 * T, 4)))
        a.I("v_max3_f32 v%d, v%d, v%d, v%d" % (M_, S0, S0 + 1, S0 + 2))
        a.I("v_max_f32 v%d, v%d, v%d" % (M_, M_, S0 + 3))
        a.I("v_max3_f32 v%d, v%d, v%d, v%d" % (M_, M_, S0 + 4, S0 + 5))
        a.I("v_max3_f32 v%d, v%d, v%d, v%d" % (M_, M_, S0 + 6, S0 + 7))
        a.I("v_mov_b32 v1, v%d" % M_)
        a.I("v_permlane32_swap_b32 v%d, v1" % M_)
        a.I("v_max_f32 v%d, v%d, v1" % (M_, M_))
        a.I("v_mov_b32 v1, v%d" % M_)
        a.I("v_permlane16_swap_b32 v%d, v1" % M_)
        a.I("v_max_f32 v%d, v%d, v1" % (M_, M_))
        for k in range(4):
            a.I("v_pk_add_f32 %s, %s, %s op_sel_hi:[1,0] neg_lo:[0,1] neg_hi:[0,1]" % (vr(S0 + 2 * k, 2), vr(S0 + 2 * k, 2), vr(M_, 2)))
        a.I("ds_write_b32 %s, v%d offset:%d" % (vMLW, M_, MLL))
        for k in range(8):
            a.I("v_exp_f32 v%d, v%d" % (S0 + k, S0 + k))
        for k in range(4):
            a.I("v_cvt_pk_bf16_f32 v%d, v%d, v%d" % (P0 + k, S0 + 2 * k, S0 + 2 * k + 1))
        a.I("ds_write_b128 %s, %s offset:%d" % (vPW, vr(P0, 4), PL))
        self.flag_set(vFW, FAO, "v0")
        if o["m1"]:
            PR = [P0, G0 + 20, G0 + 24, G0 + 28]
            MF, MQ = S0, S0 + 4
            a.I("v_pk_add_f32 %s, %s, %s" % (vr(S0 + 4, 2), vr(S0 + 4, 2), vr(S0, 2)))
            a.I("v_pk_add_f32 %s, %s, %s" % (vr(S0 + 6, 2), vr(S0 + 6, 2), vr(S0 + 2, 2)))
            reads = ["ds_read_b128 %s, %s offset:%d" % (vr(MF, 4), vMLR, MLL)]
            reads += ["ds_read_b128 %s, %s offset:%d" % (vr(PR[kb], 4), vPR, PL + 1024 * kb) for kb in range(4)]

            def shadow():
                self.mode_test()
                a.I("v_pk_add_f32 %s, %s, %s" % (vr(S0 + 4, 2), vr(S0 + 4, 2), vr(S0 + 6, 2)))
                a.I("v_add_f32 v%d, v%d, v%d" % (L_, S0 + 4, S0 + 5))
                a.I("v_add_f32 v1, v%d, v%d" % (S0 + 4, S0 + 5))
                a.I("v_permlane32_swap_b32 v%d, v1" % L_)
                a.I("v_add_f32 v%d, v%d, v1" % (S0 + 4, L_))
                a.I("v_add_f32 v%d, v%d, v1" % (L_, L_))
                a.I("v_permlane16_swap_b32 v%d, v%d" % (L_, S0 + 4))
                a.I("v_add_f32 v%d, v%d, v%d" % (L_, L_, S0 + 4))
                a.I("v_bfi_b32 v%d, 1, %s, v%d" % (L_, sPar, L_))
                self.moded_stores(["buffer_store_dwordx2 %s, %s, %s, %s offen" % (vr(M_, 2), vMLP, SRD_WS, sMLP)], tested=True)

            self.exchange(FAO, G0, reads, shadow=shadow, vbase=vF, lowspin=o["sp"], fullstub=bool(o["fs"] & 4))
            DD = [G0 + 2 * x for x in range(8)]
            fops = [
                "v_max3_f32 v%d, v%d, v%d, v%d" % (MQ, MF, MF + 1, MF + 2),
                "v_max_f32 v%d, v%d, v%d" % (MQ, MQ, MF + 3),
                "v_pk_add_f32 %s, %s, %s op_sel_hi:[1,0] neg_lo:[0,1] neg_hi:[0,1]" % (vr(MF, 2), vr(MF, 2), vr(MQ, 2)),
                "v_pk_add_f32 %s, %s, %s op_sel_hi:[1,0] neg_lo:[0,1] neg_hi:[0,1]" % (vr(MF + 2, 2), vr(MF + 2, 2), vr(MQ, 2)),
                "v_exp_f32 v%d, v%d" % (MF, MF),
                "v_exp_f32 v%d, v%d" % (MF + 1, MF + 1),
                "v_exp_f32 v%d, v%d" % (MF + 2, MF + 2),
                "v_exp_f32 v%d, v%d" % (MF + 3, MF + 3),
            ]
            OA, OB = S0 + 6, S0 + 7
            a.allow_mfma_waw = True
            for x in range(8):
                kb = x >> 1
                a.I("v_mfma_f32_16x16x32_bf16 %s, %s, %s, 0" % (vr(DD[x], 4), vr(PR[kb], 4), vr(V0 + 4 * x, 4)))
                for _ in range(2):
                    if fops:
                        a.I(fops.pop(0))
            a.allow_mfma_waw = False
            self.mode_test()
            a.I("v_mul_f32 v%d, v%d, v%d" % (OA, MF, DD[0]))
            a.I("v_mul_f32 v%d, v%d, v%d" % (OB, MF, DD[1]))
            for kb in range(1, 4):
                a.I("v_fmac_f32 v%d, v%d, v%d" % (OA, MF + kb, DD[2 * kb]))
                a.I("v_fmac_f32 v%d, v%d, v%d" % (OB, MF + kb, DD[2 * kb + 1]))
            a.I("v_cvt_pk_bf16_f32 v%d, v%d, v%d" % (OA, OA, OB))
            a.I("v_bfi_b32 v%d, v%d, %s, v%d" % (OA, TM, sPar, OA))
            self.moded_stores(["buffer_store_dword v%d, %s, %s, %s offen" % (OA, vOP, SRD_WS, sOP)], tested=True)
        else:
            a.I("v_pk_add_f32 %s, %s, %s" % (vr(S0, 2), vr(S0, 2), vr(S0 + 2, 2)))
            a.I("v_pk_add_f32 %s, %s, %s" % (vr(S0 + 4, 2), vr(S0 + 4, 2), vr(S0 + 6, 2)))
            a.I("v_pk_add_f32 %s, %s, %s" % (vr(S0, 2), vr(S0, 2), vr(S0 + 4, 2)))
            a.I("v_add_f32 v%d, v%d, v%d" % (L_, S0, S0 + 1))
            PR = [P0, G0 + 20, G0 + 24, G0 + 28]
            MF, LLr = S0, S0 + 4
            reads = ["ds_read_b128 %s, %s offset:%d" % (vr(MF, 4), vMLR, MLL)]
            reads += ["ds_read_b128 %s, %s offset:%d" % (vr(PR[kb], 4), vPR, PL + 1024 * kb) for kb in range(4)]
            shadow = [
                "v_mov_b32 v1, v%d" % L_,
                "v_permlane32_swap_b32 v%d, v1" % L_,
                "v_add_f32 v%d, v%d, v1" % (L_, L_),
                "v_mov_b32 v1, v%d" % L_,
                "v_permlane16_swap_b32 v%d, v1" % L_,
                "v_add_f32 v%d, v%d, v1" % (L_, L_),
                "v_and_b32 v%d, 0x7fffffff, v%d" % (L_, L_),
                "v_or_b32 v%d, %s, v%d" % (L_, sSgn, L_),
                "ds_write_b32 %s, v%d offset:%d" % (vMLW, L_, LLL),
            ]
            self.exchange(FAO, LLr, reads, shadow=shadow, nshadow_ds=1, vbase=vF, fullstub=bool(o["fs"] & 4))
            a.I("ds_read_b128 %s, %s offset:%d" % (vr(LLr, 4), vMLR, LLL))
            DD = [G0 + 2 * x for x in range(8)]
            fops = [
                "v_max3_f32 v%d, v%d, v%d, v%d" % (M_, MF, MF + 1, MF + 2),
                "v_max_f32 v%d, v%d, v%d" % (M_, M_, MF + 3),
                "v_pk_add_f32 %s, %s, %s op_sel_hi:[1,0] neg_lo:[0,1] neg_hi:[0,1]" % (vr(MF, 2), vr(MF, 2), vr(M_, 2)),
                "v_pk_add_f32 %s, %s, %s op_sel_hi:[1,0] neg_lo:[0,1] neg_hi:[0,1]" % (vr(MF + 2, 2), vr(MF + 2, 2), vr(M_, 2)),
                "v_exp_f32 v%d, v%d" % (MF, MF),
                "v_exp_f32 v%d, v%d" % (MF + 1, MF + 1),
                "v_exp_f32 v%d, v%d" % (MF + 2, MF + 2),
                "v_exp_f32 v%d, v%d" % (MF + 3, MF + 3),
            ]
            a.allow_mfma_waw = True
            for x in range(8):
                kb = x >> 1
                a.I("v_mfma_f32_16x16x32_bf16 %s, %s, %s, 0" % (vr(DD[x], 4), vr(PR[kb], 4), vr(V0 + 4 * x, 4)))
                for _ in range(2):
                    if fops:
                        a.I(fops.pop(0))
            a.allow_mfma_waw = False
            ll = a.newlabel("LL")
            a.label(ll)
            a.I("s_waitcnt lgkmcnt(0)")
            a.I("v_bitop3_b32 v1, v%d, v%d, %s bitop3:0x7e" % (LLr, LLr + 1, sSgn))
            a.I("v_bitop3_b32 v1, v1, v%d, %s bitop3:0xf6" % (LLr + 2, sSgn))
            a.I("v_bitop3_b32 v1, v1, v%d, %s bitop3:0xf6" % (LLr + 3, sSgn))
            a.I("v_cmp_gt_i32 vcc, 0, v1")
            a.I("s_cbranch_vccnz %s" % self.retry_stub(ll, pre=["ds_read_b128 %s, %s offset:%d" % (vr(LLr, 4), vMLR, LLL)]))
            self.mode_test()
            a.I("v_mul_f32 v%d, v%d, v%d" % (L_, MF, LLr))
            OA, OB = P0, P0 + 1
            a.I("v_mul_f32 v%d, v%d, v%d" % (OA, MF, DD[0]))
            a.I("v_mul_f32 v%d, v%d, v%d" % (OB, MF, DD[1]))
            for kb in range(1, 4):
                a.I("v_fmac_f32 v%d, v%d, v%d" % (L_, MF + kb, LLr + kb))
                a.I("v_fmac_f32 v%d, v%d, v%d" % (OA, MF + kb, DD[2 * kb]))
                a.I("v_fmac_f32 v%d, v%d, v%d" % (OB, MF + kb, DD[2 * kb + 1]))
            a.I("v_and_b32 v%d, 0x7ffffffe, v%d" % (L_, L_))
            a.I("v_cvt_pk_bf16_f32 v%d, v%d, v%d" % (OA, OA, OB))
            a.I("v_or_b32 v%d, %s, v%d" % (L_, sPar, L_))
            a.I("v_bfi_b32 v%d, v%d, %s, v%d" % (OA, TM, sPar, OA))
            self.moded_stores([
                "buffer_store_dword v%d, %s, %s, %s offen" % (OA, vOP, SRD_WS, sOP),
                "buffer_store_dwordx2 %s, %s, %s, %s offen" % (vr(M_, 2), vMLP, SRD_WS, sMLP),
            ], tested=True)
        a.I("v_and_b32 v1, 31, %s" % vFW)
        if o["fapw"]:
            a.I("s_waitcnt vmcnt(0)")
        self.flag_set("v1", FAP, "v0")
        self.ts_layer(9)
        a.I("s_brev_b32 %s, 1" % sSgn)
        a.I("s_cmp_eq_u32 %s, 4" % sL)
        a.I("s_cbranch_scc1 L_att_fin")
        a.I("s_add_u32 %s, %s, 1" % (sL, sL))
        a.I("s_cmp_lg_u32 %s, 0" % sQuad)
        a.I("s_cbranch_scc1 L_att_nc")
        self.collect(G0, S0, P0)
        a.label("L_att_nc")
        self.ts_save()
        a.I("s_add_u32 %s, %s, 1" % (sL, sL))
        a.I("s_cmp_le_u32 %s, 4" % sL)
        a.settle()
        a.I("s_cbranch_scc1 L_att_loop")
        a.I("s_branch L_end")
        a.label("L_att_fin")
        a.I("s_cmp_lg_u32 s2, 8")
        a.I("s_cbranch_scc1 L_end")
        a.I("s_or_b32 s56, %s, %s" % (sW, sQuad))
        a.I("s_cmp_lg_u32 s56, 0")
        a.I("s_cbranch_scc1 L_end")
        a.I("v_mov_b32 v18, s74")
        a.I("v_mov_b32 v19, s75")
        a.I("s_mov_b64 exec, 1")
        a.I("s_mov_b32 s58, 0x%x" % EPOCH)
        a.I("buffer_store_dwordx2 v[18:19], v13, %s, s58 offen sc1" % SRD_WS)
        a.I("s_branch L_end")

    QSC = f32bits(128 ** -0.5 * math.log2(math.e))

    def lane_ids(self, t):
        a = self.a
        a.I("v_lshrrev_b32 v%d, 4, v4" % t)
        a.I("v_and_b32 v%d, 15, v%d" % (t + 1, t))
        a.I("v_bfe_u32 v%d, v%d, 4, 1" % (t + 2, t))
        a.I("v_lshlrev_b32 v%d, 3, v%d" % (t + 2, t + 2))
        a.I("v_lshl_add_u32 v%d, v%d, 4, v%d" % (t + 2, t + 1, t + 2))
        a.I("s_mul_i32 s56, %s, %d" % (sW, 320 if self.o["pad"] else 256))
        a.I("v_add_u32 v%d, s56, v%d" % (t + 2, t + 2))

    def collect_first(self, G0, T8):
        a, o = self.a, self.o
        SE2, DQ, ID = G0 + 16, G0 + 24, G0 + 28
        self.lane_ids(ID)
        a.I("v_and_b32 v16, 7, v%d" % ID)
        a.I("v_mov_b32 v17, 1.0")
        for t in range(8):
            a.I("v_cmp_eq_u32 vcc, %d, v16" % t)
            a.I("v_cndmask_b32 v%d, v13, v17, vcc" % (SE2 + t))
        a.I("s_waitcnt lgkmcnt(0)")
        self.epoch_tags()
        a.I("s_lshr_b32 s58, %s, 2" % sU)
        self.sacc("s58", [(sG, 16), ("s58", 14), (sW, 12)], Q1BUF)
        a.I("v_mov_b32 v0, 1")
        a.I("ds_write_b32 v13, v0 offset:%d" % ARM)
        self.lds_wait_ge("v14", FISS, "1", "v16", sleep=2)
        self.prio(3)
        l0, l1 = a.newlabel("LQ"), a.newlabel("LQD")
        a.label(l0)
        for r in range(4):
            a.I("buffer_load_dwordx4 %s, v4, %s, s58 offen offset:%d sc1" % (vr(G0 + 4 * r, 4), SRD_WS, r * 1024))
        a.I("s_waitcnt vmcnt(0)")
        for k in range(4):
            a.I("v_bitop3_b32 v%d, v%d, v%d, s%d bitop3:0x7e" % (T8 + k, G0 + k, G0 + 4 + k, 60 + k))
            a.I("v_bitop3_b32 v%d, v%d, v%d, s%d bitop3:0x7e" % (T8 + 4 + k, G0 + 8 + k, G0 + 12 + k, 60 + k))
        a.I("v_or3_b32 v16, v%d, v%d, v%d" % (T8, T8 + 1, T8 + 2))
        a.I("v_or3_b32 v17, v%d, v%d, v%d" % (T8 + 3, T8 + 4, T8 + 5))
        a.I("v_or3_b32 v16, v16, v%d, v%d" % (T8 + 6, T8 + 7))
        a.I("v_or_b32 v16, v16, v17")
        a.I("v_and_b32 v16, 0xffff, v16")
        a.I("v_cmp_ne_u32 vcc, 0, v16")
        a.I("s_and_b64 exec, exec, vcc")
        a.I("s_cbranch_scc0 %s" % l1)
        a.I("s_sleep 1")
        self.bail(l0)
        a.label(l1)
        a.I("s_mov_b64 exec, -1")
        self.ts(11)
        for r in range(4):
            a.I("v_mfma_f32_16x16x32_bf16 %s, %s, %s, %s" % (vr(DQ, 4), vr(SE2 + 4 * (r >> 1), 4), vr(G0 + 4 * r, 4), "0" if r == 0 else vr(DQ, 4)))
        for k in range(4):
            a.I("v_mul_f32 v%d, 0x%x, v%d" % (DQ + k, self.QSC, DQ + k))
        a.I("v_cvt_pk_bf16_f32 v%d, v%d, v%d" % (DQ, DQ, DQ + 1))
        a.I("v_cvt_pk_bf16_f32 v%d, v%d, v%d" % (DQ + 1, DQ + 2, DQ + 3))
        a.I("ds_write_b64 v%d, %s offset:%d" % (ID + 2, vr(DQ, 2), QL))
        self.flag_set("v14", FAQ, "v0")
        self.prio(0)

    def collect(self, G0, S0, P0):
        a, o = self.a, self.o
        SEL, DQ, CS, ID, ST = G0 + 8, G0 + 12, G0 + 16, G0 + 20, G0 + 24
        vSTG = "v%d" % (G0 + 26)
        sParQ = "s59"
        self.prio(0)
        a.I("v_mov_b32 v0, %s" % sL)
        self.lane_ids(ID)
        a.I("v_mov_b32 v1, v%d" % ID)
        self.selector(SEL, 0x3f80, "v%d" % S0, "v%d" % (S0 + 1))
        a.I("v_and_b32 %s, 7, v1" % vSTG)
        a.I("v_lshlrev_b32 %s, 7, %s" % (vSTG, vSTG))
        a.I("s_xor_b32 s63, %s, 1" % sPar)
        a.I("s_lshr_b32 s58, %s, 2" % sU)
        self.sacc("s60", ([] if o["q1b"] else [("s63", 18)]) + [(sG, 15), ("s58", 13), (sW, 11)], QBUF)
        if o["m2"]:
            a.I("s_lshr_b32 s62, %s, 1" % sW)
            self.sacc("s61", [(sG, 15), ("s62", 12), ("s58", 10)], STBUF)
        else:
            self.sacc("s61", [(sG, 15), ("s63", 10), ("s58", 3)], STBUF)
        self.sacc("s58", [(sG, 15), ("s63", 13), (sW, 11)], CSBUF)
        a.I("s_mov_b32 s63, 0")
        if o["q1b"]:
            assert o["m2"]
            sParQ = sL
        else:
            a.I("s_lshr_b32 %s, %s, 2" % (sParQ, sL))

        def gather_loads(sb):
            return [("buffer_load_dwordx4 %s, v4, %s, %s offen offset:%d sc1" % (vr(G0 + 4 * r, 4), SRD_WS, sb, r * 1024), ["v%d" % (G0 + 4 * r)]) for r in range(2)]

        t1, t2 = "v1", "v%d" % S0
        if o["csl"]:
            lz = a.newlabel("LZ")
            a.I("s_cmp_gt_u32 %s, 2" % sL)
            a.I("s_cbranch_scc1 %s" % lz)
            a.I("s_sleep %d" % o["csl"])
            a.label(lz)
        if o["cg"] == 1:
            self.exchange(FBI, S0, [], sval="1", sleep=4)
            self.exchange(FBI + 16, S0, [], sval="1", sleep=2)
        self.poll(gather_loads("s58"), t1, t2, "0", sleep=4)
        if o["cg"] == 2:
            self.exchange(FBI, S0, [], sval="1", sleep=4)
            self.exchange(FBI + 16, S0, [], sval="1", sleep=2)
        a.I("v_mfma_f32_16x16x32_bf16 %s, %s, %s, 0" % (vr(CS, 4), vr(SEL, 4), vr(G0, 4)))
        a.I("v_mfma_f32_16x16x32_bf16 %s, %s, %s, %s" % (vr(CS, 4), vr(SEL, 4), vr(G0 + 4, 4), vr(CS, 4)))
        if o["m2"]:
            dpp = " row_mask:0xf bank_mask:0xf"
            T = G0 + 28
            qloads = [ld for ld, _ in gather_loads("s60")]
            self.poll2([("buffer_load_dwordx4 %s, v4, %s, s61 offen sc1" % (vr(ST, 4), SRD_WS), ["v%d" % (ST + 1), "v%d" % (ST + 3)])], t1, t2, sL,
                       on_first=[] if o["arml"] else ["ds_write_b32 v13, v0 offset:%d" % ARM], data=qloads, early=2 if o["cmb"] & 2 else 0, defer=o["qpos"], warm=2 if o["cmb"] & 16 else 0)
            if o["arml"] == 1:
                a.I("ds_write_b32 v13, v0 offset:%d" % ARM)
            a.I("v_pk_add_f32 %s, %s, %s" % (vr(ST, 2), vr(ST, 2), vr(ST + 2, 2)))
            for rot in (8, 4, 2, 1):
                a.I("v_add_f32_dpp v%d, v%d, v%d row_ror:%d%s" % (ST, ST, ST, rot, dpp))
                a.I("v_add_f32_dpp v%d, v%d, v%d row_ror:%d%s" % (ST + 1, ST + 1, ST + 1, rot, dpp))
            for sw in ("32", "16"):
                a.I("v_mov_b32 v%d, v%d" % (T, ST))
                a.I("v_mov_b32 v%d, v%d" % (T + 1, ST + 1))
                a.I("v_permlane%s_swap_b32 v%d, v%d" % (sw, ST, T))
                a.I("v_permlane%s_swap_b32 v%d, v%d" % (sw, ST + 1, T + 1))
                a.I("v_pk_add_f32 %s, %s, %s" % (vr(ST, 2), vr(ST, 2), vr(T, 2)))
            if o["arml"] == 2:
                a.I("ds_write_b32 v13, v0 offset:%d" % ARM)
            a.I("v_mul_f32 v%d, 0x%x, v%d" % (ST, f32bits(-1.0 / 512), ST))
            a.I("v_mul_f32 v%d, 0x%x, v%d" % (ST + 1, f32bits(1.0 / 512), ST + 1))
            a.I("v_pk_mul_f32 %s, %s, %s op_sel_hi:[1,0]" % (vr(CS, 2), vr(CS, 2), vr(ST, 2)))
            a.I("v_pk_mul_f32 %s, %s, %s op_sel_hi:[1,0]" % (vr(CS + 2, 2), vr(CS + 2, 2), vr(ST, 2)))
            a.I("v_fma_f32 v%d, -v%d, v%d, v%d" % (ST + 1, ST, ST, ST + 1))
            a.I("v_max_f32 v%d, 0, v%d" % (ST + 1, ST + 1))
            a.I("v_add_f32 v%d, 0x%x, v%d" % (ST + 1, f32bits(1e-5), ST + 1))
            a.I("v_rsq_f32 v%d, v%d" % (ST + 1, ST + 1))
            a.I("v_mul_f32 v%d, 0x%x, v%d" % (ST + 1, self.QSC, ST + 1))
            lo = a.newlabel("LO")
            a.label(lo)
            for r in range(2):
                a.I("s_waitcnt vmcnt(%d)" % (1 - r))
                a.I("v_mfma_f32_16x16x32_bf16 %s, %s, %s, %s" % (vr(DQ, 4), vr(SEL, 4), vr(G0 + 4 * r, 4), vr(CS, 4) if r == 0 else vr(DQ, 4)))
            self.tagtree(["v%d" % G0, "v%d" % (G0 + 4)], t1, t2, sParQ)
            a.I("v_cmp_ne_u32 vcc, 0, %s" % t1)
            a.I("s_cbranch_vccnz %s" % self.retry_stub(lo, 0, pre=["s_mov_b64 exec, vcc"] + qloads + ["s_mov_b64 exec, -1"]))
            self.ts_layer(10)
            a.I("v_pk_mul_f32 %s, %s, %s op_sel:[0,1] op_sel_hi:[1,1]" % (vr(DQ, 2), vr(DQ, 2), vr(ST, 2)))
            a.I("v_pk_mul_f32 %s, %s, %s op_sel:[0,1] op_sel_hi:[1,1]" % (vr(DQ + 2, 2), vr(DQ + 2, 2), vr(ST, 2)))
        else:
            st_load = "buffer_load_dwordx2 %s, %s, %s, s61 offen sc1" % (vr(ST, 2), vSTG, SRD_WS)
            loads = [(st_load, ["v%d" % ST, "v%d" % (ST + 1)])] + gather_loads("s60")
            self.poll2(loads, t1, t2, sParQ, on_first=["ds_write_b32 v13, v0 offset:%d" % ARM])
            self.ts_layer(10)
            a.I("v_mfma_f32_16x16x32_bf16 %s, %s, %s, 0" % (vr(DQ, 4), vr(SEL, 4), vr(G0, 4)))
            a.I("v_mfma_f32_16x16x32_bf16 %s, %s, %s, %s" % (vr(DQ, 4), vr(SEL, 4), vr(G0 + 4, 4), vr(DQ, 4)))
            if o["fake"] & 16:
                a.I("s_branch L_co_fk")
            for rot in (4, 2, 1):
                a.I("v_add_f32_dpp v%d, v%d, v%d row_ror:%d row_mask:0xf bank_mask:0xf" % (ST, ST, ST, rot))
                a.I("v_add_f32_dpp v%d, v%d, v%d row_ror:%d row_mask:0xf bank_mask:0xf" % (ST + 1, ST + 1, ST + 1, rot))
            a.I("v_mul_f32 v%d, 0x%x, v%d" % (ST, f32bits(1.0 / 512), ST))
            a.I("v_mul_f32 v%d, 0x%x, v%d" % (ST + 1, f32bits(1.0 / 512), ST + 1))
            a.I("v_fma_f32 v%d, -v%d, v%d, v%d" % (ST + 1, ST, ST, ST + 1))
            a.I("v_max_f32 v%d, 0, v%d" % (ST + 1, ST + 1))
            a.I("v_add_f32 v%d, 0x%x, v%d" % (ST + 1, f32bits(1e-5), ST + 1))
            a.I("v_rsq_f32 v%d, v%d" % (ST + 1, ST + 1))
            a.I("v_pk_fma_f32 %s, %s, %s, %s op_sel_hi:[1,0,1] neg_lo:[0,1,0] neg_hi:[0,1,0]" % (vr(DQ, 2), vr(CS, 2), vr(ST, 2), vr(DQ, 2)))
            a.I("v_pk_fma_f32 %s, %s, %s, %s op_sel_hi:[1,0,1] neg_lo:[0,1,0] neg_hi:[0,1,0]" % (vr(DQ + 2, 2), vr(CS + 2, 2), vr(ST, 2), vr(DQ + 2, 2)))
            a.I("v_mul_f32 v%d, 0x%x, v%d" % (ST + 1, self.QSC, ST + 1))
            a.I("v_pk_mul_f32 %s, %s, %s op_sel:[0,1] op_sel_hi:[1,1]" % (vr(DQ, 2), vr(DQ, 2), vr(ST, 2)))
            a.I("v_pk_mul_f32 %s, %s, %s op_sel:[0,1] op_sel_hi:[1,1]" % (vr(DQ + 2, 2), vr(DQ + 2, 2), vr(ST, 2)))
            if o["fake"] & 16:
                a.label("L_co_fk")
                a.I("s_nop 7")
        a.I("v_cvt_pk_bf16_f32 v%d, v%d, v%d" % (DQ, DQ, DQ + 1))
        a.I("v_cvt_pk_bf16_f32 v%d, v%d, v%d" % (DQ + 1, DQ + 2, DQ + 3))
        a.I("ds_write_b64 v%d, %s offset:%d" % (ID + 2, vr(DQ, 2), QL))
        self.flag_set("v14", FAQ, "v0")

    def handshake(self):
        a, o = self.a, self.o
        EP = 68
        a.label("L_HS")
        self.load_epoch()
        if o["tb"] or o["tbw"]:
            a.I("s_memrealtime s[60:61]")
        for k in range(4):
            a.I("v_mov_b32 v%d, -1" % (16 + k))
        a.I("s_lshl_b32 s58, %s, 15" % sG)
        a.I("s_lshl_b32 s59, %s, 10" % sI)
        a.I("s_add_u32 s67, s58, s59")

        def group_clears(fl):
            for base in (OBUF, SBUF, QBUF, QBUF + 0x40000)[:3 if o["q1b"] else 4]:
                a.I("s_add_u32 s58, s67, 0x%x" % base)
                a.I("buffer_store_dwordx4 v[16:19], v4, %s, s58 offen%s" % (SRD_WS, fl))

        group_clears("" if o["fast"] else " sc1")
        a.I("v_lshrrev_b32 v20, 3, v1")
        a.I("v_lshlrev_b32 v20, 12, v20")
        a.I("v_and_b32 v21, 7, v1")
        a.I("v_lshl_add_u32 v20, v21, 4, v20")
        a.I("s_and_b32 s58, %s, 3" % sU)
        a.I("s_lshr_b32 s59, %s, 2" % sU)
        self.sacc("s58", [("s58", 15), (sG, 9), ("s59", 7), (sCls, 18)], XBUF)
        a.I("buffer_store_dwordx4 v[16:19], v20, %s, s58 offen sc1" % SRD_WS)
        a.I("s_add_u32 s58, s58, 0x20000")
        a.I("buffer_store_dwordx4 v[16:19], v20, %s, s58 offen sc1" % SRD_WS)
        a.I("s_mov_b32 s66, s58")
        a.I("s_getreg_b32 s72, hwreg(HW_REG_XCC_ID)")
        a.I("s_and_b32 s72, s72, 15")
        a.I("v_mov_b32 v%d, s72" % (EP + 2))
        a.I("v_mov_b32 v%d, 0" % (EP + 3))
        a.I("s_lshr_b32 s71, s67, 3")
        a.I("s_lshl_b32 s58, %s, 5" % sG)
        a.I("v_and_b32 v24, 31, v1")
        a.I("v_add_u32 v26, s58, v24")
        a.I("v_lshlrev_b32 v26, 7, v26")
        a.I("v_add_u32 v24, 0x%x, v26" % PFLAGS)
        a.I("v_add_u32 v27, 0x%x, v26" % FLAGS)
        a.I("v_cmp_gt_u32 vcc, 32, v1")
        a.I("v_cndmask_b32 v24, v27, v24, vcc")
        a.I("s_waitcnt lgkmcnt(0)")
        a.I("s_add_u32 s56, s74, 1")
        a.I("s_addc_u32 s57, s75, 0")
        a.I("v_mov_b32 v%d, s56" % EP)
        a.I("v_mov_b32 v%d, s57" % (EP + 1))
        if o["tb"] or o["tbw"]:
            a.I("v_mov_b32 v%d, s60" % (EP + 3))
        a.I("s_waitcnt vmcnt(2)")
        pass
        a.I("s_mov_b64 exec, 1")
        a.I("s_add_u32 s58, s71, 0x%x" % PFLAGS)
        a.I("buffer_store_dwordx4 %s, v13, %s, s58 offen" % (vr(EP, 4), SRD_WS))
        a.I("s_waitcnt vmcnt(1)")
        a.I("s_add_u32 s58, s71, 0x%x" % FLAGS)
        a.I("buffer_store_dwordx4 %s, v13, %s, s58 offen sc1" % (vr(EP, 4), SRD_WS))
        a.I("s_mov_b64 exec, -1")
        if o["xw"]:
            fl = ["", " sc1", "", " sc0 sc1"][o["xw"]]
            a.I("buffer_load_dwordx4 v[32:35], v20, %s, s66 offen%s" % (SRD_WS, fl))
            a.I("s_sub_u32 s66, s66, 0x20000")
            a.I("buffer_load_dwordx4 v[32:35], v20, %s, s66 offen%s" % (SRD_WS, fl))
        a.I("v_mov_b32 v29, 0")
        a.I("v_xor_b32 v28, -1, v%d" % EP)
        a.label("L_pc_fp")
        a.I("s_and_b32 s56, %s, 7" % sBud)
        a.I("s_cmp_eq_u32 s56, 1")
        a.I("s_cselect_b32 exec_hi, -1, 0")
        a.I("buffer_load_dwordx4 v[28:31], v24, %s, 0 offen sc1" % SRD_WS)
        a.I("s_mov_b64 exec, -1")
        a.I("s_waitcnt vmcnt(0)")
        a.I("v_xor_b32 v20, v28, v%d" % EP)
        a.I("v_bitop3_b32 v20, v20, v29, v%d bitop3:0xf6" % (EP + 1))
        a.I("v_cmp_eq_u32 vcc, 0, v20")
        a.I("v_cmp_eq_u32 s[56:57], s72, v30")
        a.I("s_and_b32 s58, vcc_lo, s56")
        a.I("s_cmp_eq_u32 s58, -1")
        a.I("s_cselect_b32 s58, %d, 0" % (3 if o["fast"] else 0))
        a.I("s_cmp_lg_u32 s58, 0")
        a.I("s_cbranch_scc1 L_pc_go")
        if o["fast"]:
            a.I("s_andn2_b32 s58, vcc_hi, s57")
            a.I("s_cbranch_scc1 L_pc_safe")
            a.I("s_sleep 1")
            self.bail("L_pc_fp")
        a.label("L_pc_safe")
        group_clears(" sc1")
        a.I("s_waitcnt vmcnt(0)")
        a.I("s_mov_b64 exec, 1")
        a.I("s_add_u32 s58, s71, 0x%x" % FLAGS2)
        a.I("buffer_store_dwordx4 %s, v13, %s, s58 offen sc1" % (vr(EP, 4), SRD_WS))
        a.I("s_mov_b64 exec, -1")
        a.I("v_add_u32 v24, 0x%x, v26" % FLAGS2)
        a.label("L_pc_fp2")
        a.I("buffer_load_dwordx4 v[28:31], v24, %s, 0 offen sc1" % SRD_WS)
        a.I("s_waitcnt vmcnt(0)")
        a.I("v_xor_b32 v20, v28, v%d" % EP)
        a.I("v_bitop3_b32 v20, v20, v29, v%d bitop3:0xf6" % (EP + 1))
        a.I("v_cmp_eq_u32 vcc, 0, v20")
        a.I("s_mov_b32 s58, 1")
        a.I("s_cmp_eq_u32 vcc_lo, -1")
        a.I("s_cbranch_scc1 L_pc_go")
        a.I("s_sleep 1")
        self.bail("L_pc_fp2")
        a.label("L_pc_go")
        a.I("v_mov_b32 v20, s58")
        a.I("ds_write_b32 v13, v20 offset:%d" % GO)
        a.I("s_cmp_lg_u32 %s, 0" % sCls)
        a.I("s_cbranch_scc1 %s" % ("L_hs_k" if o["tb"] else "L_roles"))
        a.I("s_and_b32 s58, %s, 6" % sU)
        a.I("v_and_b32 v24, 31, v1")
        a.I("v_lshl_add_u32 v25, v24, 3, s58")
        a.I("v_lshrrev_b32 v27, 5, v1")
        a.I("v_add_u32 v25, v25, v27")
        a.I("v_lshlrev_b32 v25, 7, v25")
        a.I("v_add_u32 v25, 0x%x, v25" % FLAGS)
        a.I("s_add_u32 s58, s71, 0x%x" % (FLAGS + 128))
        if o["gg"]:
            self.exchange(FQP, 28, [], sval="1", sleep=4)
        a.label("L_hs_fp3")
        a.I("buffer_load_dwordx2 v[28:29], v25, %s, 0 offen sc1" % SRD_WS)
        a.I("buffer_load_dwordx2 v[30:31], v13, %s, s58 offen sc1" % SRD_WS)
        a.I("s_waitcnt vmcnt(0)")
        a.I("v_bitop3_b32 v20, v28, v30, v%d bitop3:0x7e" % EP)
        a.I("v_bitop3_b32 v21, v29, v31, v%d bitop3:0x7e" % (EP + 1))
        a.I("v_or_b32 v20, v20, v21")
        a.I("v_cmp_ne_u32 vcc, 0, v20")
        a.I("s_cbranch_vccz L_hs_fd")
        a.I("s_sleep 4")
        self.bail("L_hs_fp3")
        a.label("L_hs_fd")
        a.I("v_mov_b32 v20, 1")
        a.I("ds_write_b32 v13, v20 offset:%d" % GOX)
        a.I("s_branch L_roles")
        if o["tb"]:
            a.label("L_hs_k")
            self.lds_wait_ge("v13", FHINT, "1", "v20", sleep=4)
            a.I("v_and_b32 v24, 7, v1")
            a.I("v_lshlrev_b32 v24, 12, v24")
            self.sacc("s58", [(sI, 7)], FLAGS)
            a.I("buffer_load_dwordx4 v[28:31], v24, %s, s58 offen sc1" % SRD_WS)
            a.I("s_waitcnt vmcnt(0)")
            a.I("v_xor_b32 v20, v28, v%d" % EP)
            a.I("v_bitop3_b32 v20, v20, v29, v%d bitop3:0xf6" % (EP + 1))
            a.I("v_subrev_u32 v21, s60, v31")
            a.I("v_cmp_eq_u32 vcc, 0, v20")
            a.I("v_cndmask_b32 v21, 0, v21, vcc")
            a.I("v_max_i32 v21, 0, v21")
            a.I("v_min_i32 v21, 200, v21")
            for m in ("quad_perm:[1,0,3,2]", "quad_perm:[2,3,0,1]", "row_ror:4"):
                a.I("v_max_i32_dpp v21, v21, v21 %s row_mask:0xf bank_mask:0xf" % m)
            a.I("v_add_u32 v21, s60, v21")
            a.I("v_or_b32 v21, 1, v21")
            a.I("ds_write_b32 v13, v21 offset:%d" % TBL)
            a.I("s_branch L_roles")

    def pq(self):
        a, o = self.a, self.o
        vWQ, vQP, vST, vXW, vXR, vXI, vCSP, vTM, vS1, vQ1, vXS = (
            "v6", "v7", "v8", "v9", "v10", "v11", "v12", "v15", "v5", "v16", "v17")
        WC, G0, XO_, FL, D0, DS, X0, SEL, DX, TG = 20, 52, 84, 92, 96, 112, 116, 120, 84, 124
        XR, XU = D0, D0 + 4
        sRB, sHP, sWQ, sQP, sCS, sST, sXG, sXI = "s64", "s65", "s66", "s67", "s68", "s69", "s70", "s72"
        a.label("L_PQ")

        def srds():
            a.I("s_cmp_lg_u32 %s, 0" % sRole)
            self.srd_sel(SRD_M0, "A_wq", "B_wq", 4 << 20)
            if o["fake"] & 1:
                a.I("s_cselect_b32 s10, 0, s10")
            self.srd(SRD_X, "A_x", 4096)
            if o["fh"]:
                return
            a.I("s_cbranch_scc0 L_pq_n0")
            a.I("s_setprio 3")
            a.I("s_lshl_b32 s58, %s, 10" % sW)
            a.I("buffer_load_dwordx4 %s, v4, %s, s58 offen" % (vr(XR, 4), SRD_X))
            a.label("L_pq_n0")

        if not o["epq"]:
            srds()
        a.I("s_and_b32 %s, %s, 7" % (sRB, sU))
        a.I("s_lshr_b32 %s, %s, 3" % (sHP, sU))
        a.I("s_lshr_b32 s58, %s, 1" % sRB)
        a.I("s_and_b32 s59, %s, 1" % sRB)
        self.sacc(sWQ, [("s58", 20), ("s59", 15), (sG, 10), (sHP, 9), (sW, 7)], 0)
        self.sacc(sXI, [("s58", 8), ("s59", 3), (sW, 1)], 0)
        a.I("v_lshlrev_b32 v20, 3, v2")
        a.I("v_and_b32 v22, 1, v3")
        a.I("v_lshl_add_u32 v21, v22, 19, v20")
        a.I("v_lshrrev_b32 v23, 1, v3")
        a.I("v_lshl_add_u32 %s, v23, 13, v21" % vWQ)
        if o["epq"]:
            a.I("s_waitcnt lgkmcnt(0)")
            if not o["epb"] and not o["fh"]:
                a.I("s_barrier")
            srds()
            self.srd(SRD_WS, "ws", WS_BYTES)

        def load_wq(bar=-1):
            a.I("s_mov_b32 s59, %s" % sWQ)
            for e in range(8):
                if e == bar:
                    a.I("s_barrier")
                for ks in range(2):
                    a.I("buffer_load_dwordx2 %s, %s, %s, s59 offen nt" % (vr(G0 + 16 * ks + 2 * e, 2), vWQ, SRD_M0))
                    if (e, ks) != (7, 1):
                        a.I("s_add_u32 s59, s59, %d" % (16384 if ks == 0 else 65536 - 16384))

        def transpose_wq():
            for ks in range(2):
                self.transpose(G0 + 16 * ks, WC + 16 * ks, 2)

        if not o["fh"]:
            a.I("s_cmp_lg_u32 %s, 0" % sRole)
        if o["fh"]:
            pass
        elif o["epb"]:
            a.I("s_cbranch_scc1 %s" % self.stub(["s_barrier", "s_branch L_pq_nw"]))
            self.ts(11)
            load_wq(o["epb"])
        else:
            a.I("s_cbranch_scc1 L_pq_nw")
            self.ts(11)
            load_wq()
        a.label("L_pq_nw")
        self.load_epoch()
        a.I("v_bfe_u32 v21, v2, 1, 2")
        a.I("v_and_b32 v23, 1, v2")
        a.I("v_lshlrev_b32 v23, 1, v23")
        a.I("v_add_u32 v23, v23, v22")
        a.I("v_lshlrev_b32 v24, 10, v21")
        a.I("v_lshl_add_u32 %s, v23, 6, v24" % vXI)
        if not o["fh"]:
            a.I("s_cmp_eq_u32 %s, 0" % sRole)
            a.I("s_cbranch_scc1 L_pq_nx")
            for rr in range(4):
                a.I("buffer_load_ushort v%d, %s, %s, %s offen offset:%d" % (X0 + rr, vXI, SRD_X, sXI, 16 * rr))
            a.label("L_pq_nx")
        elif o["fh"] == 1:
            a.I("s_cmp_lg_u32 %s, 0" % sRole)
            a.I("s_cbranch_scc1 L_pq_nx")
            a.I("s_barrier")
            a.label("L_pq_nx")
        self.ts(1)
        a.I("v_lshlrev_b32 %s, 3, v21" % vS1)
        a.I("v_lshlrev_b32 v24, 7, v21")
        a.I("v_lshl_add_u32 v24, v23, 3, v24")
        a.I("s_lshl_b32 s58, %s, 5" % sW)
        a.I("v_add_u32 %s, s58, v24" % vXW)
        a.I("s_lshl_b32 s58, %s, 10" % sW)
        a.I("v_add_u32 %s, s58, v4" % vXS)
        a.I("v_mov_b32 v25, 0x%x" % OOB)
        a.I("v_lshl_add_u32 %s, v3, 13, v20" % vQP)
        a.I("v_cmp_gt_u32 vcc, 16, v1")
        a.I("v_cndmask_b32 %s, v25, v20, vcc" % vCSP)
        a.I("v_and_b32 v24, 1, v2")
        a.I("v_xor_b32 %s, 1, v24" % vTM)
        a.I("v_lshlrev_b32 v24, 11, v24")
        a.I("v_lshl_add_u32 v24, v3, 14, v24")
        a.I("v_lshrrev_b32 v26, 1, v2")
        a.I("v_lshl_add_u32 %s, v26, 4, v24" % vQ1)
        a.I("v_lshlrev_b32 v24, 3, v3")
        a.I("v_lshlrev_b32 v26, 2, v3")
        a.I("v_add_u32 v27, 4, v24")
        a.I("v_cmp_eq_u32 vcc, v26, v2")
        a.I("v_cndmask_b32 %s, v25, v27, vcc" % vST)
        a.I("v_cmp_eq_u32 vcc, 1, v2")
        a.I("v_cndmask_b32 %s, %s, v24, vcc" % (vST, vST))
        a.I("s_or_b32 s63, %s, %s" % (sW, sHP))
        a.I("s_cmp_eq_u32 s63, 0")
        a.I("s_cselect_b32 s63, 0, 0x%x" % OOB)
        a.I("v_or_b32 %s, s63, %s" % (vST, vST))
        if o["m2"]:
            a.I("v_lshlrev_b32 v24, 10, v21")
            a.I("v_lshl_add_u32 v24, v23, 3, v24")
            a.I("v_and_b32 v26, 0x28, v1")
            a.I("v_cmp_eq_u32 s[56:57], 0, v26")
            a.I("v_cndmask_b32 %s, v25, v24, s[56:57]" % vST)
        a.I("v_lshrrev_b32 v24, 2, v2")
        if not (o["pad"] and o["m2"]):
            a.I("v_mov_b32 v26, 4")
            a.I("v_cndmask_b32 v24, v24, v26, vcc")
        a.I("v_lshlrev_b32 v24, 7, v24")
        a.I("v_lshl_add_u32 %s, v3, 4, v24" % vXR)
        self.selector(SEL, 0x3f80, "v24", "v26")
        a.I("v_mov_b32 v0, 1")
        a.I("s_lshr_b32 s58, %s, 1" % sW)
        a.I("s_and_b32 s59, %s, 1" % sW)
        self.sacc("s71", [(sG, 15), (sHP, 12), ("s58", 11), (sRB, 8), ("s59", 7)], 0)
        self.sacc(sQP, [("s71", 0)] + ([] if o["q1b"] else [(sRole, 18)]), QBUF)
        self.sacc(sCS, [("s71", 0), (sRole, 13)], CSBUF)
        if o["m2"]:
            self.sacc(sST, [(sG, 15), (sHP, 12), (sRB, 7), (sW, 5)], STBUF)
        else:
            self.sacc(sST, [(sG, 15), (sRole, 10), (sRB, 7)], STBUF)
        self.sacc("s71", [(sG, 16), (sHP, 13), ("s58", 12), (sRB, 8), ("s59", 7)], Q1BUF)
        a.I("s_xor_b32 s58, %s, 1" % sRole)
        self.sacc(sXG, [("s58", 17), (sRB, 14), (sW, 12)], XBUF)
        if o["fake"] & 4:
            a.I("s_lshl_b32 s58, %s, 30" % sHP)
            a.I("s_add_u32 %s, %s, s58" % (sXG, sXG))
        a.I("s_mov_b32 %s, 0" % sPar)
        a.I("s_waitcnt lgkmcnt(0)")
        self.epoch_tags()
        a.I("s_cmp_lg_u32 %s, 0" % sRole)
        a.I("s_cbranch_scc1 L_pq_b0")
        self.srd(SRD_X, "out", 4096)
        if o["fh"] == 2:
            a.I("s_barrier")
        a.I("s_waitcnt vmcnt(0)")
        self.ts(2)
        if o["diag"] == 2:
            a.I("s_memrealtime s[78:79]")
        transpose_wq()
        a.I("s_branch L_pq_mm")

        def cs_compute():
            for k in range(4):
                a.I("v_mov_b32 v%d, 0x3f803f80" % (DS + k))
            for ks in range(2):
                for j in range(4):
                    a.I("v_mfma_f32_16x16x32_bf16 %s, %s, %s, %s" % (vr(D0 + 4 * j, 4), vr(DS, 4), vr(WC + 16 * ks + 4 * j, 4), "0" if ks == 0 else vr(D0 + 4 * j, 4)))
            a.I("v_cvt_pk_bf16_f32 v2, v%d, v%d" % (D0, D0 + 4))
            a.I("v_cvt_pk_bf16_f32 v3, v%d, v%d" % (D0 + 8, D0 + 12))
            a.I("v_bfi_b32 v2, %s, 0, v2" % vTM)

        a.label("L_pq_b0")
        a.I("s_waitcnt vmcnt(0)")
        for k in range(4):
            a.I("v_lshlrev_b32 v%d, 16, v%d" % (XU + 2 * k, XR + k))
            a.I("v_and_b32 v%d, 0xffff0000, v%d" % (XU + 2 * k + 1, XR + k))
        a.I("v_pk_add_f32 %s, %s, %s" % (vr(XR, 2), vr(XU, 2), vr(XU + 2, 2)))
        a.I("v_pk_add_f32 %s, %s, %s" % (vr(XR + 2, 2), vr(XU + 4, 2), vr(XU + 6, 2)))
        a.I("v_pk_add_f32 %s, %s, %s" % (vr(XR, 2), vr(XR, 2), vr(XR + 2, 2)))
        a.I("v_add_f32 v%d, v%d, v%d" % (XR, XR, XR + 1))

        def wave_sum(r):
            for rot in (8, 4, 2, 1):
                a.I("v_add_f32_dpp v%d, v%d, v%d row_ror:%d row_mask:0xf bank_mask:0xf" % (r, r, r, rot))
            a.I("v_mov_b32 v1, v%d" % r)
            a.I("v_permlane32_swap_b32 v%d, v1" % r)
            a.I("v_add_f32 v%d, v%d, v1" % (r, r))
            a.I("v_mov_b32 v1, v%d" % r)
            a.I("v_permlane16_swap_b32 v%d, v1" % r)
            a.I("v_add_f32 v%d, v%d, v1" % (r, r))

        wave_sum(XR)
        a.I("v_mul_f32 v%d, 0x%x, v%d" % (XR, f32bits(1.0 / 512), XR))
        for k in range(4):
            a.I("v_pk_add_f32 %s, %s, %s op_sel_hi:[1,0] neg_lo:[0,1] neg_hi:[0,1]" % (vr(XU + 2 * k, 2), vr(XU + 2 * k, 2), vr(XR, 2)))
        a.I("v_pk_mul_f32 %s, %s, %s" % (vr(XR + 2, 2), vr(XU, 2), vr(XU, 2)))
        for k in range(1, 4):
            a.I("v_pk_fma_f32 %s, %s, %s, %s" % (vr(XR + 2, 2), vr(XU + 2 * k, 2), vr(XU + 2 * k, 2), vr(XR + 2, 2)))
        a.I("v_add_f32 v%d, v%d, v%d" % (XR + 1, XR + 2, XR + 3))
        wave_sum(XR + 1)
        a.I("v_mul_f32 v%d, 0x%x, v%d" % (XR + 1, f32bits(1.0 / 512), XR + 1))
        a.I("v_add_f32 v%d, 0x%x, v%d" % (XR + 1, f32bits(1e-5), XR + 1))
        a.I("v_rsq_f32 v%d, v%d" % (XR + 1, XR + 1))
        a.I("v_lshlrev_b32 v1, 1, v14")
        if o["fh"] and o["fhb"]:
            a.I("s_barrier")
        a.I("ds_write_b64 v1, %s offset:%d" % (vr(XR, 2), ST1))
        self.flag_set("v14", FST, "v0")
        for rr in range(4):
            a.I("v_lshlrev_b32 v%d, 16, v%d" % (X0 + rr, X0 + rr))
        self.exchange(FST, FL, ["ds_read_b64 %s, %s offset:%d" % (vr(XR, 2), vS1, ST1)])
        for k in range(2):
            a.I("v_pk_add_f32 %s, %s, %s op_sel_hi:[1,0] neg_lo:[0,1] neg_hi:[0,1]" % (vr(XU + 2 * k, 2), vr(X0 + 2 * k, 2), vr(XR, 2)))
            a.I("v_pk_mul_f32 %s, %s, %s op_sel:[0,1] op_sel_hi:[1,1]" % (vr(XU + 2 * k, 2), vr(XU + 2 * k, 2), vr(XR, 2)))
        a.I("v_cvt_pk_bf16_f32 v%d, v%d, v%d" % (DS, XU, XU + 1))
        a.I("v_cvt_pk_bf16_f32 v%d, v%d, v%d" % (DS + 1, XU + 2, XU + 3))
        a.I("ds_write_b64 %s, %s offset:%d" % (vXW, vr(DS, 2), XL))
        a.I("ds_write_b128 %s, %s offset:%d" % (vXS, vr(X0, 4), XS))
        self.flag_set("v14", FQX, "v0")
        a.I("s_setprio 0")
        self.lds_wait_ge("v13", WGO, "1", "v1", sleep=2)
        a.I("s_sleep %d" % o["dwq"])
        load_wq()
        a.I("s_waitcnt vmcnt(0)")
        self.ts(2)
        transpose_wq()
        a.I("s_mov_b32 %s, 0" % sL)
        a.I("s_branch L_pq_cs")

        a.label("L_pq_loop")
        self.prio(0)
        a.I("v_mov_b32 v0, %s" % sL)
        a.I("s_sub_u32 s58, %s, 1" % sL)
        a.I("s_lshr_b32 %s, %s, 2" % (sPar, sL))
        self.lds_wait_ge("v14", FOP, "s58", "v1", sleep=o["gsleep"])
        self.prio(3)
        a.I("ds_read_b128 %s, %s offset:%d" % (vr(X0, 4), vXS, XS))
        dxs = [o["dx2"], o["dx3"], o["dx4"], o["dx5"]]
        if len(set(dxs)) == 1:
            a.I("s_sleep %d" % dxs[0])
        else:
            m = min(dxs)
            for L, d in zip((2, 3, 4, 5), dxs):
                if d > m:
                    ld2 = a.newlabel("LD")
                    a.I("s_cmp_lg_u32 %s, %d" % (sL, L))
                    a.I("s_cbranch_scc1 %s" % ld2)
                    a.I("s_sleep %d" % (d - m))
                    a.label(ld2)
            a.I("s_sleep %d" % m)
        loads = [("buffer_load_dwordx4 %s, v4, %s, %s offen offset:%d %s" % (vr(G0 + 4 * r, 4), SRD_WS, sXG, r * 1024, ["sc1", "sc0 sc1", "sc1 nt", "sc0 sc1 nt"][o["xl"]]), ["v%d" % (G0 + 4 * r)]) for r in range(4)]
        if o["spq"]:
            HX = DS
            a.I("s_waitcnt lgkmcnt(0)")
            a.I("v_pk_mul_f32 %s, %s, 0.5 op_sel_hi:[1,0]" % (vr(HX, 2), vr(X0, 2)))
            a.I("v_pk_mul_f32 %s, %s, 0.5 op_sel_hi:[1,0]" % (vr(HX + 2, 2), vr(X0 + 2, 2)))
            l0 = a.newlabel("LP")
            a.label(l0)
            for ld, _ in loads:
                a.I(ld)
            a.I("s_mov_b64 exec, -1")
            for r in range(4):
                a.I("s_waitcnt vmcnt(%d)" % (3 - r))
                a.I("v_mfma_f32_16x16x32_bf16 %s, %s, %s, %s" % (vr(DX, 4), vr(SEL, 4), vr(G0 + 4 * r, 4), vr(HX, 4) if r == 0 else vr(DX, 4)))
            self.tagtree([t for _, tg in loads for t in tg], "v1", "v2", "0")
            a.I("v_cmp_ne_u32 vcc, 0, v1")
            a.I("s_cbranch_vccnz %s" % self.retry_stub(l0, o["xrs"], pre=["s_mov_b64 exec, vcc", "s_nop 4"]))
            self.ts_layer(8)
            if o["diag"] == 3:
                a.I("s_cmp_lg_u32 %s, 3" % sL)
                a.I("s_cbranch_scc1 L_dg3")
                a.I("s_memrealtime s[78:79]")
                a.label("L_dg3")
            a.I("s_add_u32 %s, %s, 0x40000" % (sXG, sXG))
            for k in range(4):
                a.I("v_add_f32_dpp v%d, v%d, v%d row_ror:8 row_mask:0xf bank_mask:0xf" % (X0 + k, DX + k, DX + k))
        else:
            self.poll(loads, "v1", "v2", "0")
            self.ts_layer(8)
            if o["diag"] == 3:
                a.I("s_cmp_lg_u32 %s, 3" % sL)
                a.I("s_cbranch_scc1 L_dg3")
                a.I("s_memrealtime s[78:79]")
                a.label("L_dg3")
            for r in range(4):
                a.I("v_mfma_f32_16x16x32_bf16 %s, %s, %s, %s" % (vr(DX, 4), vr(SEL, 4), vr(G0 + 4 * r, 4), "0" if r == 0 else vr(DX, 4)))
            a.I("s_add_u32 %s, %s, 0x40000" % (sXG, sXG))
            a.I("s_waitcnt lgkmcnt(0)")
            for k in range(4):
                a.I("v_add_f32_dpp v%d, v%d, v%d row_ror:8 row_mask:0xf bank_mask:0xf" % (DX + 4 + k, DX + k, DX + k))
            a.I("v_pk_add_f32 %s, %s, %s" % (vr(X0, 2), vr(X0, 2), vr(DX + 4, 2)))
            a.I("v_pk_add_f32 %s, %s, %s" % (vr(X0 + 2, 2), vr(X0 + 2, 2), vr(DX + 6, 2)))
        a.I("v_cvt_pk_bf16_f32 v%d, v%d, v%d" % (DS, X0, X0 + 1))
        a.I("v_cvt_pk_bf16_f32 v%d, v%d, v%d" % (DS + 1, X0 + 2, X0 + 3))
        a.I("s_cmp_eq_u32 %s, 5" % sL)
        a.I("s_cbranch_scc1 L_pq_final")
        a.I("ds_write_b64 %s, %s offset:%d" % (vXW, vr(DS, 2), XL))
        self.flag_set("v14", FQX, "v0")
        a.label("L_pq_mm")
        def st_shadow():
            ls = a.newlabel("LNS")
            a.I("s_cmp_eq_u32 %s, 1" % sL)
            a.I("s_cbranch_scc1 %s" % ls)
            self.mode_test()
            a.I("v_pk_add_f32 %s, %s, %s" % (vr(TG, 2), vr(X0, 2), vr(X0 + 2, 2)))
            a.I("v_pk_mul_f32 %s, %s, %s" % (vr(TG + 2, 2), vr(X0, 2), vr(X0, 2)))
            a.I("v_pk_fma_f32 %s, %s, %s, %s" % (vr(TG + 2, 2), vr(X0 + 2, 2), vr(X0 + 2, 2), vr(TG + 2, 2)))
            a.I("v_add_f32 v%d, v%d, v%d" % (DS + 2, TG, TG + 1))
            a.I("v_add_f32 v%d, v%d, v%d" % (DS + 3, TG + 2, TG + 3))
            a.I("v_bfi_b32 v%d, 1, %s, v%d" % (DS + 3, sL, DS + 3))
            self.moded_stores(["buffer_store_dwordx2 %s, %s, %s, %s offen" % (vr(DS + 2, 2), vST, SRD_WS, sST)], tested=True)
            a.label(ls)

        self.exchange(FQX, FL, ["ds_read_b128 %s, %s offset:%d" % (vr(XO_ + 4 * ks, 4), vXR, XL + 64 * ks) for ks in range(2)],
                      optimistic=2 if o["fs"] & 1 else True, shadow=st_shadow if o["m2"] else None)
        for ks in range(0 if (o["fake"] & 32 or o["m2"]) else 2):
            a.I("v_mfma_f32_16x16x32_bf16 %s, %s, %s, %s" % (vr(DS, 4), vr(XO_ + 4 * ks, 4), vr(XO_ + 4 * ks, 4), "0" if ks == 0 else vr(DS, 4)))
        for jp in range(2):
            for ks in range(2):
                for j in (2 * jp, 2 * jp + 1):
                    a.I("v_mfma_f32_16x16x32_bf16 %s, %s, %s, %s" % (vr(D0 + 4 * j, 4), vr(XO_ + 4 * ks, 4), vr(WC + 16 * ks + 4 * j, 4), "0" if ks == 0 else vr(D0 + 4 * j, 4)))
        a.I("s_cmp_eq_u32 %s, 1" % sL)
        a.I("s_cbranch_scc1 L_pq_pub1")
        hsave = [dict(x) for x in a.hist]
        self.mode_test()
        if not o["m2"]:
            a.I("v_bfi_b32 v%d, 1, %s, v%d" % (DS, sPar, DS))
        a.I("v_cvt_pk_bf16_f32 v2, v%d, v%d" % (D0, D0 + 4))
        a.I("v_bfi_b32 v2, %s, %s, v2" % (vTM, sL if o["q1b"] else sPar))
        a.I("v_cvt_pk_bf16_f32 v3, v%d, v%d" % (D0 + 8, D0 + 12))
        self.moded_stores([
            "buffer_store_dwordx2 v[2:3], %s, %s, %s offen" % (vQP, SRD_WS, sQP),
            "buffer_store_dword v%d, %s, %s, %s offen" % (DS, vST, SRD_WS, sST),
        ][:1 if o["m2"] else 2], tested=True)
        if o["wob"] == 4:
            if o["fapw"] & 2:
                a.I("s_waitcnt vmcnt(0)")
            self.flag_set("v14", FQP, "v0")
        a.I("ds_write_b128 %s, %s offset:%d" % (vXS, vr(X0, 4), XS))
        self.ts_layer(9)
        self.ts_save()
        a.I("s_branch L_pq_next")
        a.label("L_pq_pub1")
        a.hist = hsave
        a.I("v_cvt_pk_bf16_f32 v2, v%d, v%d" % (D0, D0 + 4))
        a.I("v_cvt_pk_bf16_f32 v3, v%d, v%d" % (D0 + 8, D0 + 12))
        a.I("s_mov_b32 s56, 0xffff0000")
        for k in range(4):
            a.I("v_mov_b32 v%d, s%d" % (TG + k, 60 + k))
        a.I("v_lshl_or_b32 v%d, v2, 16, v%d" % (TG, TG))
        a.I("v_and_or_b32 v%d, v2, s56, v%d" % (TG + 1, TG + 1))
        a.I("v_lshl_or_b32 v%d, v3, 16, v%d" % (TG + 2, TG + 2))
        a.I("v_and_or_b32 v%d, v3, s56, v%d" % (TG + 3, TG + 3))
        a.I("buffer_store_dwordx4 %s, %s, %s, s71 offen%s" % (vr(TG, 4), vQ1, SRD_WS, "" if o["fast"] else " sc1"))
        self.ts(3)
        if o["qgate"]:
            self.flag_set("v14", FQP, "v0")
        self.wait_go("v1")
        a.I("s_cmp_lg_u32 %s, 0" % sMode)
        a.I("s_cbranch_scc1 L_pq_cs")
        a.I("buffer_store_dwordx4 %s, %s, %s, s71 offen sc1" % (vr(TG, 4), vQ1, SRD_WS))
        a.label("L_pq_cs")
        cs_compute()
        self.wait_go("v1")
        self.moded_stores(["buffer_store_dwordx2 v[2:3], %s, %s, %s offen" % (vCSP, SRD_WS, sCS)])
        self.lds_wait_ge("v13", GOX, "1", "v1", sleep=1)
        a.label("L_pq_next")
        a.I("s_add_u32 %s, %s, 2" % (sL, sL))
        a.I("s_cmp_le_u32 %s, 4" % sL)
        a.settle()
        a.I("s_cbranch_scc1 L_pq_loop")
        a.I("s_or_b32 s56, %s, %s" % (sG, sHP))
        a.I("s_or_b32 s56, s56, %s" % sRole)
        a.I("s_cmp_eq_u32 s56, 0")
        a.I("s_cbranch_scc1 L_pq_loop")
        a.I("s_branch L_end")
        a.label("L_pq_final")
        a.I("buffer_store_short v%d, %s, %s, %s offen" % (DS, vXI, SRD_X, sXI))
        a.I("buffer_store_short_d16_hi v%d, %s, %s, %s offen offset:16" % (DS, vXI, SRD_X, sXI))
        a.I("buffer_store_short v%d, %s, %s, %s offen offset:32" % (DS + 1, vXI, SRD_X, sXI))
        a.I("buffer_store_short_d16_hi v%d, %s, %s, %s offen offset:48" % (DS + 1, vXI, SRD_X, sXI))
        if o["diag"]:
            a.I("s_memrealtime s[80:81]")
            a.I("s_waitcnt lgkmcnt(0)")
            if o["diag"] == 1:
                a.I("s_mov_b32 s78, s80")
            a.I("s_sub_u32 s78, s78, s76")
            a.I("s_min_u32 s78, s78, 10000")
            a.I("s_mul_i32 s78, s78, %d" % o["dmul"])
            if o["diag"] == 4:
                a.I("s_mov_b32 s78, %d" % o["dmul"])
            if o["diag"] == 5:
                a.I("s_memtime s[88:89]")
                a.I("s_waitcnt lgkmcnt(0)")
                a.I("s_sub_u32 s78, s88, s86")
                a.I("s_lshr_b32 s78, s78, 3")
                a.I("s_min_u32 s78, s78, 20000")
            a.label("L_dgs")
            a.I("s_sleep 2")
            a.I("s_memrealtime s[82:83]")
            a.I("s_waitcnt lgkmcnt(0)")
            a.I("s_sub_u32 s84, s82, s80")
            a.I("s_cmp_lt_u32 s84, s78")
            a.I("s_cbranch_scc1 L_dgs")
        a.I("s_branch L_end")

    def po(self):
        a, o = self.a, self.o
        vWO, vMLG, vXP, vO2W, vO2R, vTM, vWXW, vWXR, vFW, vF = "v6", "v7", "v8", "v9", "v10", "v11", "v12", "v15", "v5", "v126"
        WC, G0, ML, SM, A0, DO, D0, F = 16, 48, 80, 84, 88, 96, 100, 108
        AO, FL, GG = G0, G0 + 16, G0 + 20
        sHH, sCB, sWO, sOG, sMLG, sXP, sDupLo, sDupHi = "s64", "s65", "s66", "s68", "s69", "s70", "s71", "s72"
        a.label("L_PO")
        a.I("s_and_b32 %s, %s, 1" % (sPar, sRole))
        if o["pf"]:
            self.srd(SRD_M1, "A_v", 32 << 20)
            a.I("s_lshl_b32 s60, %s, 1" % sU)
            a.I("s_add_u32 s60, s60, %s" % sPar)
            a.I("s_lshr_b32 s58, s60, 3")
            a.I("s_and_b32 s59, s60, 7")
            self.sacc("s58", [("s58", 23), (sG, 20), ("s59", 15), (sW, 13)], 3072 * 256)
            a.I("s_add_u32 s59, s58, 4096")
            if o["pfdelay"]:
                a.I("s_sleep %d" % o["pfdelay"])
            for q in range(8):
                if q > o["pfd"]:
                    a.I("s_waitcnt vmcnt(%d)" % o["pfd"])
                a.I("buffer_load_dwordx4 %s, v4, %s, %s offen offset:%d%s" % (vr(G0 + 4 * q, 4), SRD_M1, "s59" if q >= 4 else "s58", (q & 3) * 1024, ["", " nt", "", " sc1"][o["pf"]]))
        self.load_epoch()
        a.I("s_add_u32 %s, %s, 1" % (sL, sPar))
        a.I("s_lshr_b32 %s, %s, 2" % (sHH, sU))
        a.I("s_and_b32 %s, %s, 3" % (sCB, sU))
        a.I("s_lshl_b32 s60, %s, 2" % sG)
        a.I("s_add_u32 s60, s60, %s" % sHH)
        a.I("s_cmp_lg_u32 %s, 0" % sPar)
        self.srd_sel(SRD_M0, "A_wo", "B_wo", 4 << 20)
        if o["fake"] & 2:
            a.I("s_cselect_b32 s10, 0, s10")
        self.sacc(sWO, [("s60", 17), (sW, 11), (sCB, 8)], 0)
        a.I("v_lshlrev_b32 v16, 4, v2")
        a.I("v_lshl_add_u32 %s, v3, 15, v16" % vWO)
        self.sacc(sOG, [("s60", 13), (sW, 11)], OBUF)
        a.I("v_and_b32 v17, 3, v2")
        if o["m1"]:
            self.sacc(sMLG, [(sG, 15), (sHH, 10), (sW, 8)], MLBUF)
            a.I("v_lshlrev_b32 %s, 4, v2" % vMLG)
        else:
            self.sacc(sMLG, [(sG, 15), (sHH, 11), (sW, 9)], MLBUF)
            a.I("v_lshlrev_b32 %s, 6, v17" % vMLG)
        self.sacc(sXP, [(sPar, 17), (sCB, 15), (sW, 13), ("s60", 7)], XBUF)
        a.I("v_lshlrev_b32 v16, 3, v3")
        a.I("v_lshl_add_u32 v16, v2, 3, v16")
        a.I("v_mov_b32 v18, 0x%x" % OOB)
        a.I("v_cmp_eq_u32 vcc, 0, v17")
        a.I("v_cndmask_b32 %s, v18, v16, vcc" % vXP)
        a.I("v_and_b32 v17, 1, v3")
        a.I("v_or_b32 %s, -2, v17" % vTM)
        a.I("v_lshlrev_b32 v17, 3, v17")
        a.I("v_lshl_add_u32 v17, v2, 4, v17")
        a.I("s_mul_i32 s56, %s, %d" % (sW, 320 if o["pad"] else 256))
        a.I("v_add_u32 %s, s56, v17" % vO2W)
        a.I("v_lshrrev_b32 v16, 2, v2")
        a.I("v_lshlrev_b32 v17, 4, v3")
        a.I("v_lshl_add_u32 %s, v16, 8, v17" % vO2R)
        if o["pad"]:
            a.I("v_lshl_add_u32 %s, v16, 6, %s" % (vO2R, vO2R))
        self.sacc("s58", [(sPar, 15), (sW, 13)], WX)
        a.I("v_add_u32 %s, s58, v4" % vWXW)
        self.sacc("s58", [(sPar, 15), (sW, 11)], WX)
        a.I("v_add_u32 %s, s58, v4" % vWXR)
        a.I("s_lshl_b32 s56, %s, 4" % sPar)
        a.I("v_mov_b32 %s, s56" % vF)
        a.I("v_add_u32 %s, s56, v14" % vFW)
        self.selector(SM, 0xffff, "v16", "v17")
        a.I("s_mov_b32 %s, 0x01000100" % sDupLo)
        a.I("s_mov_b32 %s, 0x03020302" % sDupHi)
        a.I("v_mov_b32 v0, 1")
        a.I("s_cmp_lg_u32 %s, 0" % sPar)
        a.I("s_cbranch_scc1 L_po_gb")
        a.I("s_cmp_lg_u32 %s, 0" % sW)
        a.I("s_cbranch_scc1 L_po_ga")
        a.I("s_waitcnt lgkmcnt(0)")
        a.I("s_add_u32 s74, s74, 1")
        a.I("s_addc_u32 s75, s75, 0")
        self.sacc("s58", [(sG, 12), (sI, 7)], GFLAGS + 128)
        a.I("s_mov_b32 s59, %d" % o["hintmax"])
        a.label("L_po_bg")
        a.I("buffer_load_dwordx2 v[16:17], v13, %s, s58 offen sc1" % SRD_WS)
        a.I("s_waitcnt vmcnt(0)")
        a.I("v_xor_b32 v16, s74, v16")
        a.I("v_bitop3_b32 v16, v16, v17, s75 bitop3:0xf6")
        a.I("v_cmp_ne_u32 vcc, 0, v16")
        a.I("s_cbranch_vccz L_po_bgd")
        a.I("s_sleep 2")
        a.I("s_sub_u32 s59, s59, 1")
        a.I("s_cbranch_scc0 L_po_bg")
        a.label("L_po_bgd")
        if o["qgate"]:
            self.exchange(FQP, 16, [], sval="1", sleep=1)
        a.I("ds_write_b32 v13, v0 offset:%d" % WGO)
        a.label("L_po_ga")
        self.lds_wait_ge("v13", WGO, "1", "v16", sleep=1)
        self.prio(2)
        a.I("s_branch L_po_ld")
        a.label("L_po_gb")
        if o["pfb"]:
            self.srd(SRD_M1, "B_k", 32 << 20)
            a.I("s_lshr_b32 s58, %s, 2" % sU)
            a.I("s_and_b32 s59, %s, 3" % sU)
            self.sacc("s58", [("s58", 23), (sG, 20), ("s59", 16), (sW, 13)], 3072 * 256)
            if o["pfgate"] == 0:
                self.lds_wait_ge("v13", WGO, "1", "v16", sleep=2)
            else:
                self.lds_wait_ge("v14", FWX, "1", "v16", sleep=2)
            if o["pfbdelay"]:
                a.I("s_sleep %d" % o["pfbdelay"])
            n = 0
            for q in range(8 - o["pfb"], 8):
                for qd in range(2):
                    a.I("s_add_u32 s59, s58, %d" % (qd * 32768 + (q >> 2) * 4096))
                    if n > o["pfbd"]:
                        a.I("s_waitcnt vmcnt(%d)" % o["pfbd"])
                    a.I("buffer_load_dwordx4 %s, v4, %s, s59 offen offset:%d%s" % (vr(G0 + 4 * (n & 7), 4), SRD_M1, (q & 3) * 1024, " nt" if o["pfnt"] else ""))
                    n += 1
        if o["nwe"]:
            if o["weg"] == 2:
                self.lds_wait_ge("v14", FWX, "1", "v16", sleep=2)
            elif o["weg"] == 3:
                self.lds_wait_ge("v14", FOP, "1", "v16", sleep=1)
            elif o["weg"] == 0:
                self.exchange(FQP, 16, [], sval="1", sleep=2)
            else:
                self.lds_wait_ge("v13", WGO, "1", "v16", sleep=2)
            if o["wed"]:
                a.I("s_sleep %d" % o["wed"])
            a.I("s_mov_b32 s59, %s" % sWO)
            for e in range(o["nwe"]):
                a.I("buffer_load_dwordx4 %s, %s, %s, s59 offen offset:%d nt" % (vr(G0 + 4 * e, 4), vWO, SRD_M0, (e & 1) * 1024))
                if e & 1 and e < 7:
                    a.I("s_add_u32 s59, s59, 8192")
            self.lds_wait_ge("v14", FQX, "2", "v16", sleep=2)
            a.I("s_sleep %d" % o["wobd"])
            a.I("s_branch L_po_ld2")
        if o["wob"] == 0:
            self.lds_wait_ge("v14", FQX, "2", "v16", sleep=2)
        elif o["wob"] == 1:
            self.lds_wait_ge("v13", WGO, "1", "v16", sleep=2)
        elif o["wob"] == 2:
            self.lds_wait_ge("v14", FWX, "1", "v16", sleep=2)
        elif o["wob"] == 4:
            self.lds_wait_ge("v14", FQX, "2", "v16", sleep=2)
            self.exchange(FQP, 16, [], sval="2", sleep=1)
        elif o["wob"] == 3:
            self.lds_wait_ge("v14", FOP, "1", "v16", sleep=2)
        if o["wobd"]:
            a.I("s_sleep %d" % o["wobd"])
        a.label("L_po_ld")
        a.I("s_mov_b32 s59, %s" % sWO)
        for e in range(8):
            if o["nwe"] and e == o["nwe"]:
                a.label("L_po_ld2")
            a.I("buffer_load_dwordx4 %s, %s, %s, s59 offen offset:%d nt" % (vr(G0 + 4 * e, 4), vWO, SRD_M0, (e & 1) * 1024))
            if e & 1 and e < 7:
                a.I("s_add_u32 s59, s59, 8192")
        if o["pe"]:
            assert o["cmb"] & 5 == 5
            self.lds_wait_ge("v13", GO, "1", "v1", sleep=1)
            self.lds_wait_ge("v14", FQX, sL, "v1", sleep=1)
            a.I("s_add_u32 s59, %s, 4096" % sXP)
        a.I("s_waitcnt vmcnt(0)")
        self.transpose(G0, WC, 4)
        if o["pe"]:
            a.I("buffer_load_dwordx4 %s, %s, %s, %s offen sc1" % (vr(ML, 4), vMLG, SRD_WS, sMLG))
            for r in range(2):
                a.I("buffer_load_dwordx4 %s, v4, %s, %s offen offset:%d sc1" % (vr(GG + 4 * r, 4), SRD_WS, sOG, r * 1024))
        for j in range(8):
            a.I("ds_write_b128 %s, %s offset:%d" % (vWXW, vr(WC + 4 * j, 4), 1024 * j))
        self.flag_set(vFW, FWX, "v0")
        self.exchange(FWX, FL, [], sval="1", sleep=1, vbase=vF)
        for ks in range(4):
            for jj in range(2):
                a.I("ds_read_b128 %s, %s offset:%d" % (vr(WC + 4 * (2 * ks + jj), 4), vWXR, 8192 * ks + 1024 * jj))
        self.ts(2)
        if o["pe"]:
            a.I("v_mov_b32 v0, %s" % sL)
            self.prio(0)
            a.I("s_waitcnt lgkmcnt(0)")
            a.I("s_cmp_gt_u32 %s, 2" % sL)
            a.I("s_branch L_po_chk")
        else:
            self.lds_wait_ge("v13", GO, "1", "v1", sleep=1)

        if o["fake"] & 8:
            for t in range(8):
                a.I("v_and_b32 v%d, 0x3c003c00, v%d" % (A0 + t, SM + (t & 3)))
        a.label("L_po_loop")
        self.prio(0)
        a.I("v_mov_b32 v0, %s" % sL)
        a.I("s_add_u32 s59, %s, 4096" % sXP)
        self.lds_wait_ge("v14", FQX, sL, "v1", sleep=2)
        if o["osl"]:
            lz = a.newlabel("LZ")
            a.I("s_cmp_lt_u32 %s, 3" % sL)
            a.I("s_cbranch_scc1 %s" % lz)
            a.I("s_sleep %d" % o["osl"])
            a.label(lz)
        if o["m1"]:
            dpp = " row_mask:0xf bank_mask:0xf"
            oloads = ["buffer_load_dwordx4 %s, v4, %s, %s offen offset:%d sc1" % (vr(GG + 4 * r, 4), SRD_WS, sOG, r * 1024) for r in range(2)]
            self.poll2([("buffer_load_dwordx4 %s, %s, %s, %s offen sc1" % (vr(ML, 4), vMLG, SRD_WS, sMLG), ["v%d" % (ML + 1), "v%d" % (ML + 3)])], "v1", "v2", sPar,
                       data=oloads, early=(2 if o["cmb"] & 4 else 1) if o["cmb"] & 1 else 0, defer=o["opos"], entry="L_po_chk" if o["pe"] else None, warm=1 if o["cmb"] & 8 else 0)
            E = F + 2
            a.I("v_max_f32_dpp v%d, v%d, v%d row_ror:4%s" % (F, ML, ML, dpp))
            a.I("v_max_f32_dpp v%d, v%d, v%d row_ror:4%s" % (F + 1, ML + 2, ML + 2, dpp))
            a.I("v_max_f32_dpp v%d, v%d, v%d row_ror:8%s" % (F, F, F, dpp))
            a.I("v_max_f32_dpp v%d, v%d, v%d row_ror:8%s" % (F + 1, F + 1, F + 1, dpp))
            a.I("v_max_f32 v2, v%d, v%d" % (F, F + 1))
            a.I("v_max_f32_dpp v2, v2, v2 quad_perm:[1,0,3,2]%s" % dpp)
            a.I("v_max_f32_dpp v2, v2, v2 quad_perm:[2,3,0,1]%s" % dpp)
            a.I("v_sub_f32 v%d, v%d, v2" % (E, ML))
            a.I("v_sub_f32 v%d, v%d, v2" % (E + 1, ML + 2))
            a.I("v_exp_f32 v%d, v%d" % (E, E))
            a.I("v_exp_f32 v%d, v%d" % (E + 1, E + 1))
            a.I("v_pk_add_f32 %s, %s, v[2:3] op_sel_hi:[1,0] neg_lo:[0,1] neg_hi:[0,1]" % (vr(F, 2), vr(F, 2)))
            a.I("v_mul_f32 v1, v%d, v%d" % (E, ML + 1))
            a.I("v_fmac_f32 v1, v%d, v%d" % (E + 1, ML + 3))
            a.I("v_exp_f32 v%d, v%d" % (F, F))
            a.I("v_exp_f32 v%d, v%d" % (F + 1, F + 1))
            for m in ("quad_perm:[1,0,3,2]", "quad_perm:[2,3,0,1]", "row_ror:4", "row_ror:8"):
                a.I("v_add_f32_dpp v1, v1, v1 %s%s" % (m, dpp))
            a.I("v_rcp_f32 v2, v1")
            a.I("v_pk_mul_f32 %s, %s, v[2:3] op_sel_hi:[1,0]" % (vr(F, 2), vr(F, 2)))
            a.I("v_cvt_pk_bf16_f32 v1, v%d, v%d" % (F, F + 1))
            for q in range(4):
                a.I("v_mov_b32_dpp v2, v1 quad_perm:[%d,%d,%d,%d] row_mask:0x%x bank_mask:0xf" % (q, q, q, q, 1 << q))
            a.I("v_perm_b32 v%d, v2, v2, %s" % (F, sDupLo))
            a.I("v_perm_b32 v%d, v2, v2, %s" % (F + 1, sDupHi))
            for r in range(2):
                for t in range(4):
                    a.I("v_and_b32 v%d, v%d, v%d" % (A0 + 4 * r + t, F + r, SM + t))
            lo = a.newlabel("LO")
            a.label(lo)
            for r in range(2):
                a.I("s_waitcnt vmcnt(%d)" % (1 - r))
                a.I("v_mfma_f32_16x16x32_bf16 %s, %s, %s, %s" % (vr(DO, 4), vr(A0 + 4 * r, 4), vr(GG + 4 * r, 4), "0" if r == 0 else vr(DO, 4)))
            self.tagtree(["v%d" % GG, "v%d" % (GG + 4)], "v1", "v2", sPar)
            a.I("v_cmp_ne_u32 vcc, 0, v1")
            a.I("s_cbranch_vccnz %s" % self.retry_stub(lo, 0, pre=["s_mov_b64 exec, vcc"] + oloads + ["s_mov_b64 exec, -1"]))
            self.ts_layer(8)
        else:
            loads = [("buffer_load_dwordx2 %s, %s, %s, %s offen offset:%d sc1" % (vr(ML + 2 * k, 2), vMLG, SRD_WS, sMLG, 256 * k), ["v%d" % (ML + 2 * k + 1)]) for k in range(2)]
            for r in range(2):
                loads.append(("buffer_load_dwordx4 %s, v4, %s, %s offen offset:%d sc1" % (vr(GG + 4 * r, 4), SRD_WS, sOG, r * 1024), ["v%d" % (GG + 4 * r)]))
            self.poll2(loads, "v1", "v2", sPar)
            self.ts_layer(8)
            if o["fake"] & 8:
                a.I("s_branch L_po_fk")
            a.I("v_max_f32 v1, v%d, v%d" % (ML, ML + 2))
            a.I("v_max_f32_dpp v1, v1, v1 quad_perm:[1,0,3,2] row_mask:0xf bank_mask:0xf")
            a.I("v_max_f32_dpp v1, v1, v1 quad_perm:[2,3,0,1] row_mask:0xf bank_mask:0xf")
            a.I("v_sub_f32 v%d, v%d, v1" % (F, ML))
            a.I("v_sub_f32 v%d, v%d, v1" % (F + 1, ML + 2))
            a.I("v_exp_f32 v%d, v%d" % (F, F))
            a.I("v_exp_f32 v%d, v%d" % (F + 1, F + 1))
            a.I("v_mul_f32 v1, v%d, v%d" % (F, ML + 1))
            a.I("v_fmac_f32 v1, v%d, v%d" % (F + 1, ML + 3))
            a.I("v_add_f32_dpp v1, v1, v1 quad_perm:[1,0,3,2] row_mask:0xf bank_mask:0xf")
            a.I("v_add_f32_dpp v1, v1, v1 quad_perm:[2,3,0,1] row_mask:0xf bank_mask:0xf")
            a.I("v_rcp_f32 v2, v1")
            a.I("v_pk_mul_f32 %s, %s, v[2:3] op_sel_hi:[1,0]" % (vr(F, 2), vr(F, 2)))
            a.I("v_cvt_pk_bf16_f32 v1, v%d, v%d" % (F, F + 1))
            for q in range(4):
                a.I("v_mov_b32_dpp v2, v1 quad_perm:[%d,%d,%d,%d] row_mask:0x%x bank_mask:0xf" % (q, q, q, q, 1 << q))
            a.I("v_perm_b32 v%d, v2, v2, %s" % (F, sDupLo))
            a.I("v_perm_b32 v%d, v2, v2, %s" % (F + 1, sDupHi))
            for r in range(2):
                for t in range(4):
                    a.I("v_and_b32 v%d, v%d, v%d" % (A0 + 4 * r + t, F + r, SM + t))
            if o["fake"] & 8:
                a.label("L_po_fk")
            for r in range(2):
                a.I("v_mfma_f32_16x16x32_bf16 %s, %s, %s, %s" % (vr(DO, 4), vr(A0 + 4 * r, 4), vr(GG + 4 * r, 4), "0" if r == 0 else vr(DO, 4)))
        a.I("v_cvt_pk_bf16_f32 v%d, v%d, v%d" % (DO, DO, DO + 1))
        a.I("v_cvt_pk_bf16_f32 v%d, v%d, v%d" % (DO + 1, DO + 2, DO + 3))
        a.I("ds_write_b64 %s, %s offset:%d" % (vO2W, vr(DO, 2), OL2))
        self.flag_set("v14", FOX, "v0")
        self.exchange(FOX, FL, ["ds_read_b128 %s, %s offset:%d" % (vr(AO + 4 * ks, 4), vO2R, OL2 + 64 * ks) for ks in range(4)],
                      optimistic=2 if o["fs"] & 2 else True)
        for jj in range(2):
            for ks in range(4):
                a.I("v_mfma_f32_16x16x32_bf16 %s, %s, %s, %s" % (vr(D0 + 4 * jj, 4), vr(WC + 4 * (2 * ks + jj), 4), vr(AO + 4 * ks, 4), "0" if ks == 0 else vr(D0 + 4 * jj, 4)))
        for jj in range(2):
            d = D0 + 4 * jj
            a.I("v_cvt_pk_bf16_f32 v%d, v%d, v%d" % (d, d, d + 1))
            a.I("v_cvt_pk_bf16_f32 v%d, v%d, v%d" % (d + 1, d + 2, d + 3))
            a.I("v_and_b32 v%d, %s, v%d" % (d, vTM, d))
            a.I("buffer_store_dwordx2 %s, %s, %s, %s offen %s" % (vr(d, 2), vXP, SRD_WS, "s59" if jj else sXP, ["sc1", "sc0 sc1", "sc1 nt", "sc0 sc1 nt"][o["xs"]]))
        self.flag_set("v14", FOP, "v0")
        if o["ts"] == 9:
            a.I("s_mov_b64 s[%d:%d], s[%d:%d]" % (TS0 + 2, TS0 + 3, TS0 + 4, TS0 + 5))
            a.I("s_memrealtime s[%d:%d]" % (TS0 + 4, TS0 + 5))
            a.I("s_waitcnt lgkmcnt(0)")
        self.ts_layer(9)
        self.ts_save()
        a.I("s_add_u32 %s, %s, 0x40000" % (sXP, sXP))
        a.I("s_add_u32 %s, %s, 2" % (sL, sL))
        a.I("s_cmp_le_u32 %s, 4" % sL)
        a.settle()
        a.I("s_cbranch_scc1 L_po_loop")
        a.I("s_branch L_end")

    def epilogue(self):
        a = self.a
        for l, lines in self.stubs:
            a.label(l)
            a.hist = []
            for x in lines:
                if x.endswith(":"):
                    a.label(x[:-1])
                else:
                    a.I(x)
        a.label("L_end")
        if self.o["ts"]:
            a.I("s_memtime s[16:17]")
            a.I("s_memrealtime s[18:19]")
            for _ in range(4):
                a.I("s_sleep 127")
            a.I("s_mov_b64 exec, 1")
            a.I("s_lshl_b32 s56, s2, 4")
            a.I("s_lshl_b32 s57, %s, 2" % sRole)
            a.I("s_add_u32 s56, s56, s57")
            a.I("s_add_u32 s56, s56, %s" % sW)
            a.I("s_lshl_b32 s56, s56, 7")
            a.I("s_add_u32 s56, s56, 0x%x" % TSBUF)
            a.I("s_waitcnt lgkmcnt(0) vmcnt(0)")
            for k in range(NTS + 2):
                sr = TS0 + 2 * k if k < NTS else 16 + 2 * (k - NTS)
                a.I("v_mov_b32 v16, s%d" % sr)
                a.I("v_mov_b32 v17, s%d" % (sr + 1))
                a.I("buffer_store_dwordx2 v[16:17], v13, %s, s56 offen offset:%d" % (SRD_WS, 8 * k))
                a.I("s_nop 1")
            a.I("s_getpc_b64 s[16:17]")
            a.I("v_mov_b32 v16, s16")
            a.I("v_mov_b32 v17, s17")
            a.I("buffer_store_dwordx2 v[16:17], v13, %s, s56 offen offset:120" % SRD_WS)
        a.label("L_exit")
        a.I("s_endpgm")
        a.label("L_codeend")

    def build(self):
        a = self.a
        if self.o["ts"]:
            for k in range(NTS):
                a.I("s_mov_b64 s[%d:%d], 0" % (TS0 + 2 * k, TS0 + 2 * k + 1))
        self.prologue()
        self.att()
        self.handshake()
        self.pq()
        self.po()
        self.epilogue()
        if self.o["mv"]:
            L = a.lines
            i, j = L.index("L_PQ:"), L.index("L_pq_nw:")
            head = L[i:j] + ["    s_branch L_pq_nw"]
            del L[i:j]
            k = L.index("L_att_sb:" if self.o["mv"] == 1 else "L_ATT:")
            if self.o["mv"] == 2:
                head = ["    s_branch L_ATT"] + head
            L[k:k] = head
        ref = open("cdna_kernels/%s.s.ref" % NAME).read().splitlines()
        head = [l for l in ref if l.startswith(";") and "@launch" not in l]
        assert a.maxv <= 128, a.maxv
        out = "\n".join(head) + "\n"
        out += "; @launch grid=(256,1,1) block=(1024,1,1) lds=%d\n" % LDS_BYTES
        out += '.amdgcn_target "amdgcn-amd-amdhsa--gfx950"\n.text\n.globl %s_kernel\n.p2align 8\n.type %s_kernel,@function\n%s_kernel:\n' % (NAME, NAME, NAME)
        out += NOTES
        out += a.text()
        out += '.section .rodata,"a"\n.p2align 6\n.amdhsa_kernel %s_kernel\n' % NAME
        out += "  .amdhsa_next_free_vgpr 128\n  .amdhsa_next_free_sgpr 102\n  .amdhsa_accum_offset 128\n"
        out += "  .amdhsa_group_segment_fixed_size 0\n  .amdhsa_kernarg_size 104\n  .amdhsa_user_sgpr_count 2\n"
        out += "  .amdhsa_user_sgpr_kernarg_segment_ptr 1\n  .amdhsa_system_sgpr_workgroup_id_x 1\n.end_amdhsa_kernel\n"
        return out


if __name__ == "__main__":
    opts = {}
    outp = "cdna_kernels/%s.s" % NAME
    for arg in sys.argv[1:]:
        if arg.startswith("-o"):
            outp = arg[2:]
        else:
            k, v = arg.split("=")
            opts[k] = int(v, 0)
    open(outp, "w").write(Gen(**opts).build())
    print("wrote", outp)
```

```python
import sys, os, math, struct
sys.path.insert(0, os.path.dirname(os.path.abspath(__file__)))
from asmlib import Asm

NAME = "interleave_layers__sliding_block_cached__sliding_block_cached__decode"

DEFAULTS = dict(
    ts=0,
    fast=1,
    dx=8,
    da=3, db=11,
    kq=14,
    bstart=3,
    prio=1,
    gsleep=1,
    pgap=1, dwq=4, psleep=2, khint=11, hintmax=40, kdelay=0, nb0=4, pf=0, pfd=3, pfdelay=0, cpf=0, db1=1, nb1=0, diag=0, dmul=4, wob=0, wobd=12, vf=2, epq=1, qgate=1, pfb=0, pfgate=1, pfbd=3, pfbdelay=0, pfnt=1, nbq1=0, dq1=3, fake=0, fs=2, spq=1, arm=1, da1=1, na1=0, xrs=0, dx2=8, dx3=15, dx4=8, dx5=7, m1=1, m2=1, cmb=17, q1b=1, opos=0, qpos=0, cg=2, cgk=16, gg=0, tb=0, tbw=0, pe=0, ap=1, arml=0, sp=0, qi=0, nwe=0, weg=2, wed=10, pad=1, fapd=0, fapw=0, eat=1, epb=0, mv=0, cpe=0, fh=0, fhb=1, fhd=0, csl=36, osl=22, xs=0, xl=0, xw=0, ehs=0, hsd=0,
)

QBUF = 0x000000
OBUF = 0x080000
SBUF = 0x0C0000
MLBUF, CSBUF, STBUF = SBUF, SBUF + 0x2000, SBUF + 0x6000
XBUF = 0x140000
Q1BUF = 0x200000
GFLAGS = 0x2B0000
PFLAGS = 0x2C0000
FLAGS2 = 0x2D0000
FLAGS = 0x2E0000
EPOCH = 0x2F0000
TSBUF = 0x300000
WS_BYTES = 0x400000
OOB = 0x40000000

FQX, FAQ, FOX, FOP, FISS, FWX, FST, FAP, FAO, GO, GOX, ARM, WGO = (
    0x00, 0x10, 0x20, 0x30, 0x40, 0x60, 0x80, 0x90, 0xB0, 0xF0, 0xF4, 0xF8, 0xFC)
FVX = 0x100
FHINT = 0x140
FQP = 0x160
FBI = 0x1A0
TBL = 0x1C0
ST1 = 0x180
MLL = 0x200
LLL = 0x240
QL = 0x400
OL2 = 0x400
XL = 0xC00
PL = 0x1000
XS = 0x1000
VX = 0x4000
WX = 0x4000
KX = 0x14000
LDS_BYTES = 0x24000

SRD_WS, SRD_M0, SRD_M1, SRD_X = "s[4:7]", "s[8:11]", "s[12:15]", "s[44:47]"
sW, sRole, sG, sI, sL, sPar, sBud, sSelLo, sSelHi, sMode = (
    "s42", "s43", "s48", "s49", "s50", "s51", "s52", "s53", "s54", "s55")
sCls, sU = "s3", "s73"
KA = dict(A_x=16, A_k=18, A_v=20, A_wq=22, A_wo=24, B_x=26, B_k=28, B_v=30, B_wq=32, B_wo=34,
          out=36, dbg=38, ws=40)
MASK0 = 20
TS0 = 76
NTS = 13


NOTES = """    ; One persistent launch, 256 workgroups x 16 waves, one per CU.  g = wg & 7 owns kv head g.
    ; Odd (wg >> 3): attention workgroups keep their K/V slices of both sets in registers.
    ; Even: projection workgroups keep their wq / wo tiles of both sets in registers.
    ; Hand-offs (q partials, attention partials, x partials) go through the workspace with parity tags on
    ; buffers this launch cleared itself; a launch counter in the workspace tells this launch's start-up
    ; flags from older ones.  LayerNorm is applied after the q projection (statistics + column sums).
    ; All waits are bounded.  Plain stores are used inside a group only if all of it sits on one XCD.
"""


def f32bits(x):
    return struct.unpack("<I", struct.pack("<f", x))[0]


def vr(a, n):
    return "v[%d:%d]" % (a, a + n - 1)


class Gen:
    def __init__(self, **opt):
        self.o = dict(DEFAULTS)
        self.o.update(opt)
        self.a = Asm()
        self.stubs = []

    def ts(self, k):
        if self.o["ts"] == 9 and k != 0:
            return
        if self.o["ts"]:
            assert k < 12
            if k == 0:
                self.a.I("s_memrealtime s[%d:%d]" % (TS0, TS0 + 1))
                self.a.I("s_memtime s[%d:%d]" % (TS0 + 24, TS0 + 25))
            else:
                self.a.I("s_memtime s[%d:%d]" % (TS0 + 2 * k, TS0 + 2 * k + 1))

    def ts_layer(self, k):
        self.ts(k)

    def ts_save(self):
        a = self.a
        if self.o["ts"] in (0, 9):
            return
        ln = a.newlabel("LT")
        a.I("s_waitcnt lgkmcnt(0)")
        a.I("s_cmp_lg_u32 s%d, 0" % (TS0 + 2 * 5))
        a.I("s_cbranch_scc1 %s" % ln)
        for k in range(8, 12):
            a.I("s_mov_b64 s[%d:%d], s[%d:%d]" % (TS0 + 2 * (k - 4), TS0 + 2 * (k - 4) + 1, TS0 + 2 * k, TS0 + 2 * k + 1))
        a.label(ln)

    def srd_sel(self, srd, pa, pb, nbytes):
        a = self.a
        b = int(srd[2:srd.index(":")])
        a.I("s_cselect_b32 s%d, s%d, s%d" % (b, KA[pb], KA[pa]))
        a.I("s_cselect_b32 s%d, s%d, s%d" % (b + 1, KA[pb] + 1, KA[pa] + 1))
        a.I("s_mov_b32 s%d, 0x%x" % (b + 2, nbytes))
        a.I("s_mov_b32 s%d, 0x00020000" % (b + 3))

    def srd(self, srd, ptr, nbytes):
        a = self.a
        b = int(srd[2:srd.index(":")])
        a.I("s_mov_b32 s%d, s%d" % (b, KA[ptr]))
        a.I("s_mov_b32 s%d, s%d" % (b + 1, KA[ptr] + 1))
        a.I("s_mov_b32 s%d, 0x%x" % (b + 2, nbytes))
        a.I("s_mov_b32 s%d, 0x00020000" % (b + 3))

    def sacc(self, dst, terms, const=0):
        a = self.a
        first = True
        for reg, sh in terms:
            tgt = "s56" if first else "s57"
            if sh:
                a.I("s_lshl_b32 %s, %s, %d" % (tgt, reg, sh))
            else:
                a.I("s_mov_b32 %s, %s" % (tgt, reg))
            if not first:
                a.I("s_add_u32 s56, s56, s57")
            first = False
        a.I("s_add_u32 %s, s56, 0x%x" % (dst, const))

    def prio(self, p):
        if self.o["prio"]:
            self.a.I("s_setprio %d" % p)

    def stub(self, lines):
        l = self.a.newlabel("ST")
        self.stubs.append((l, lines))
        return l

    def retry_stub(self, back, sleep=0, pre=()):
        lines = list(pre)
        if sleep:
            lines.append("s_sleep %d" % sleep)
        lines += ["s_sub_u32 %s, %s, 1" % (sBud, sBud), "s_cbranch_scc0 %s" % back, "s_branch L_end"]
        return self.stub(lines)

    def bail(self, back):
        a = self.a
        a.I("s_sub_u32 %s, %s, 1" % (sBud, sBud))
        a.I("s_cbranch_scc0 %s" % back)
        a.I("s_branch L_end")

    def lds_wait_ge(self, vaddr, off, sval, vt, sleep=1):
        a = self.a
        l0 = a.newlabel("LW")
        a.label(l0)
        a.I("ds_read_b32 %s, %s offset:%d" % (vt, vaddr, off))
        a.I("s_waitcnt lgkmcnt(0)")
        a.I("v_cmp_gt_u32 vcc, %s, %s" % (sval, vt))
        a.I("s_cbranch_vccnz %s" % self.retry_stub(l0, sleep))

    def tagtree(self, regs, vt, vt2, par, mask=1):
        a = self.a
        regs = list(regs)
        n = len(regs)
        assert mask == 1 or 1 < n < 4
        if n == 1:
            a.I("v_bitop3_b32 %s, %s, %s, 1 bitop3:0x28" % (vt, regs[0], par))
            return
        if n < 4:
            a.I("v_bitop3_b32 %s, %s, %s, %s bitop3:0x7e" % (vt, regs[0], regs[1], par))
            for x in regs[2:]:
                a.I("v_bitop3_b32 %s, %s, %s, %s bitop3:0xf6" % (vt, vt, x, par))
            a.I("v_and_b32 %s, %d, %s" % (vt, mask, vt))
            return
        h = n // 2
        A, B = regs[:h], regs[h:]
        a.I("v_bitop3_b32 %s, %s, %s, %s bitop3:0x7e" % (vt, A[0], A[1], par))
        a.I("v_bitop3_b32 %s, %s, %s, %s bitop3:0x7e" % (vt2, B[0], B[1], par))
        A, B = A[2:], B[2:]
        for i in range(max(len(A), len(B))):
            if i < len(A):
                a.I("v_bitop3_b32 %s, %s, %s, %s bitop3:0xf6" % (vt, vt, A[i], par))
            if i < len(B):
                a.I("v_bitop3_b32 %s, %s, %s, %s bitop3:0xf6" % (vt2, vt2, B[i], par))
        a.I("v_bitop3_b32 %s, %s, %s, 1 bitop3:0xa8" % (vt, vt, vt2))

    def poll(self, loads, vt, vt2, par, sleep=0):
        a = self.a
        l0 = a.newlabel("LP")
        a.label(l0)
        for ld, _ in loads:
            a.I(ld)
        a.I("s_waitcnt vmcnt(0)")
        self.tagtree([t for _, tg in loads for t in tg], vt, vt2, par)
        a.I("v_cmp_ne_u32 vcc, 0, %s" % vt)
        a.I("s_cbranch_vccnz %s" % self.retry_stub(l0, sleep, pre=["s_mov_b64 exec, vcc"]))
        a.I("s_mov_b64 exec, -1")

    def exchange(self, flagoff, vf, reads, sval=None, shadow=None, nshadow_ds=0, vbase="v13", sleep=0, optimistic=True, wait=True, fullstub=False, lowspin=0):
        a = self.a
        chk = ["v_min3_u32 v%d, v%d, v%d, v%d" % (vf, vf, vf + 1, vf + 2),
               "v_min_u32 v%d, v%d, v%d" % (vf, vf, vf + 3),
               "v_cmp_gt_u32 vcc, %s, v%d" % (sval or sL, vf)]
        rdf = "ds_read_b128 %s, %s offset:%d" % (vr(vf, 4), vbase, flagoff)
        if reads and optimistic == 2:
            l0 = a.newlabel("LXF")
            a.label(l0)
            a.I(rdf)
            for r in reads:
                a.I(r)
            a.I("s_waitcnt lgkmcnt(%d)" % (0 if self.o["ts"] not in (0, 9) else len(reads)))
            for x in chk:
                a.I(x)
            a.I("s_cbranch_vccnz %s" % self.retry_stub(l0, sleep))
        elif reads and optimistic:
            l1, ls = a.newlabel("LXD"), a.newlabel("LXS")
            a.I(rdf)
            for r in reads:
                a.I(r)
            if callable(shadow):
                shadow()
            else:
                for x in (shadow or []):
                    a.I(x)
            a.I("s_waitcnt lgkmcnt(%d)" % (0 if self.o["ts"] not in (0, 9) else len(reads) + nshadow_ds))
            for x in chk:
                a.I(x)
            if fullstub:
                lines = ["s_sub_u32 %s, %s, 1" % (sBud, sBud), "s_cbranch_scc1 L_end", rdf] + list(reads)
                lines += ["s_waitcnt lgkmcnt(%d)" % (0 if self.o["ts"] not in (0, 9) else len(reads))] + chk
                lines += ["s_cbranch_vccnz %s" % ls, "s_branch %s" % l1]
            else:
                lines = ["s_setprio 1"] * lowspin + ["s_sub_u32 %s, %s, 1" % (sBud, sBud), "s_cbranch_scc1 L_end", rdf, "s_waitcnt lgkmcnt(0)"] + chk
                lines += ["s_cbranch_vccnz %s" % ls] + ["s_setprio 3"] * lowspin + list(reads) + ["s_branch %s" % l1]
            self.stubs.append((ls, lines))
            a.I("s_cbranch_vccnz %s" % ls)
            a.label(l1)
        else:
            l0 = a.newlabel("LX")
            a.label(l0)
            a.I(rdf)
            a.I("s_waitcnt lgkmcnt(0)")
            for x in chk:
                a.I(x)
            a.I("s_cbranch_vccnz %s" % self.retry_stub(l0, sleep))
            for r in reads:
                a.I(r)
        if reads and wait:
            a.I("s_waitcnt lgkmcnt(0)")

    def flag_set(self, vaddr, off, vval):
        self.a.I("ds_write_b32 %s, %s offset:%d" % (vaddr, vval, off))

    def mode_test(self):
        if self.o["fast"]:
            self.a.I("s_cmp_eq_u32 %s, 0" % sMode)

    def moded_stores(self, stores, tested=False):
        a = self.a
        if not self.o["fast"]:
            for s in stores:
                a.I(s + " sc1")
            return
        l1 = a.newlabel("LSD")
        if not tested:
            self.mode_test()
        a.I("s_cbranch_scc1 %s" % self.stub(["s_nop 7"] + [x + " sc1" for x in stores] + ["s_branch %s" % l1]))
        for s in stores:
            a.I(s)
        a.label(l1)

    def transpose(self, stg, dst, ndw):
        a = self.a
        for j in range(2 * ndw):
            u = j >> 1
            sel = sSelHi if (j & 1) else sSelLo
            for t in range(4):
                a.I("v_perm_b32 v%d, v%d, v%d, %s" % (dst + 4 * j + t, stg + ndw * (2 * t + 1) + u, stg + ndw * (2 * t) + u, sel))

    def wait_go(self, vt):
        a = self.a
        self.lds_wait_ge("v13", GO, "1", vt, sleep=1)
        a.I("v_readfirstlane_b32 %s, %s" % (sMode, vt))
        a.I("s_lshr_b32 %s, %s, 1" % (sMode, sMode))

    def epoch_tags(self):
        a = self.a
        a.I("s_add_u32 s74, s74, 1")
        a.I("s_addc_u32 s75, s75, 0")
        for k in range(4):
            a.I("s_lshr_b64 s[56:57], s[74:75], %d" % (15 * k))
            a.I("s_and_b32 s57, s56, 0x4000")
            a.I("s_and_b32 s56, s56, 0x3fff")
            a.I("s_lshl_b32 s57, s57, 1")
            a.I("s_or_b32 s%d, s56, s57" % (60 + k))

    def load_epoch(self):
        a = self.a
        a.I("s_add_u32 s56, s%d, 0x%x" % (KA["ws"], EPOCH))
        a.I("s_addc_u32 s57, s%d, 0" % (KA["ws"] + 1))
        a.I("s_load_dwordx2 s[74:75], s[56:57], 0")

    def selector(self, dst, val, t0, t1):
        a = self.a
        a.I("v_and_b32 %s, 1, v1" % t0)
        a.I("v_lshlrev_b32 %s, 4, %s" % (t0, t0))
        a.I("v_mov_b32 %s, 0x%x" % (t1, val))
        a.I("v_lshlrev_b32 %s, %s, %s" % (t0, t0, t1))
        a.I("v_bfe_u32 %s, v1, 1, 2" % t1)
        for t in range(4):
            a.I("v_cmp_eq_u32 vcc, %d, %s" % (t, t1))
            a.I("v_cndmask_b32 v%d, v13, %s, vcc" % (dst + t, t0))

    def poll2(self, loads, vt, vt2, par, on_first=(), data=None, early=0, defer=0, entry=None, warm=0, mask=1):
        a = self.a
        l0 = a.newlabel("LP")
        tags = [t for _, tg in loads for t in tg]
        if warm:
            a.I("s_cmp_gt_u32 %s, %d" % (sL, warm))
            a.I("s_cbranch_scc1 %s" % l0)
            for ld in data:
                a.I(ld)
        a.label(l0)
        for ld, _ in loads:
            a.I(ld)
        if early:
            le = a.newlabel("LE")
            a.I("s_cmp_gt_u32 %s, %d" % (sL, early))
            a.I("s_cbranch_scc1 %s" % le)
            for ld in data:
                a.I(ld)
            a.label(le)
        if entry:
            a.label(entry)
        a.I("s_waitcnt vmcnt(0)")
        self.tagtree(tags, vt, vt2, par, mask)
        a.I("v_cmp_ne_u32 vcc, 0, %s" % vt)
        lt = a.newlabel("LPT")
        lines = ["s_sub_u32 %s, %s, 1" % (sBud, sBud), "s_cbranch_scc1 L_end",
                 "s_cmp_eq_u64 vcc, -1", "s_cbranch_scc0 %s" % lt,
                 "s_sleep %d" % self.o["psleep"], "s_branch %s" % l0,
                 lt + ":", "s_setprio 3"] + list(on_first) + ([] if early else ["s_mov_b64 exec, vcc"]) + ["s_branch %s" % l0]
        a.I("s_cbranch_vccnz %s" % self.stub(lines))
        def issue():
            if early:
                le = a.newlabel("LE")
                a.I("s_cbranch_scc0 %s" % le)
                for ld in data:
                    a.I(ld)
                a.label(le)
            else:
                for ld in (data or []):
                    a.I(ld)

        if not early:
            a.I("s_mov_b64 exec, -1")
        if not defer:
            issue()
        self.prio(3)
        for x in on_first:
            a.I(x)
        if defer:
            a.after(defer, issue)

    def prologue(self):
        a = self.a
        a.I("s_cmp_ge_u32 s2, 256")
        a.I("s_cbranch_scc1 L_exit")
        a.I("s_load_dwordx16 s[16:31], s[0:1], 0")
        a.I("s_load_dwordx8 s[32:39], s[0:1], 64")
        a.I("s_load_dwordx2 s[40:41], s[0:1], 96")
        self.ts(0)
        if self.o["diag"]:
            a.I("s_memrealtime s[76:77]")
            a.I("s_memtime s[86:87]")
        a.I("v_and_b32 v1, 63, v0")
        a.I("v_lshrrev_b32 v2, 6, v0")
        a.I("s_and_b32 %s, s2, 7" % sG)
        a.I("v_readfirstlane_b32 s58, v2")
        a.I("v_lshlrev_b32 v4, 4, v1")
        a.I("v_and_b32 v2, 15, v1")
        a.I("v_lshrrev_b32 v3, 4, v1")
        a.I("s_lshr_b32 %s, s2, 4" % sU)
        if self.o["fh"]:
            self.fast_head()
        a.I("v_mov_b32 v13, 0")
        a.I("v_lshlrev_b32 v5, 2, v1")
        a.I("s_and_b32 %s, s58, 3" % sW)
        a.I("s_lshr_b32 %s, s58, 2" % sRole)
        a.I("s_lshr_b32 %s, s2, 3" % sI)
        a.I("s_and_b32 %s, %s, 1" % (sCls, sI))
        a.I("s_mov_b32 %s, 0x10000" % sBud)
        a.I("s_mov_b32 %s, 0x05040100" % sSelLo)
        a.I("s_mov_b32 %s, 0x07060302" % sSelHi)
        a.I("s_mov_b32 %s, 0" % sMode)
        a.I("s_mov_b32 %s, 1" % sL)
        a.I("s_lshl_b32 s56, %s, 2" % sW)
        a.I("v_mov_b32 v14, s56")
        if self.o["cpe"] and not self.o["fh"]:
            a.I("s_lshl_b32 s56, %s, 2" % sCls)
            a.I("s_add_u32 s56, s56, %s" % sRole)
            if self.o["cpe"] == 3:
                a.I("s_cmp_lg_u32 %s, 0" % sRole)
            else:
                a.I("s_cmp_lg_u32 s56, %d" % (self.o["cpe"] - 1))
            a.I("s_cbranch_scc1 L_nocpe")
            a.I("s_getpc_b64 s[44:45]")
            a.label("L_pc1")
            a.I("s_mov_b32 s46, L_codeend-L_pc1")
            a.I("s_mov_b32 s47, 0x00020000")
            a.I("s_mul_i32 s57, %s, 3072" % sW)
            for k in range(3):
                a.I("buffer_load_dwordx4 v[40:43], v4, s[44:47], s57 offen offset:%d" % (1024 * k))
            a.label("L_nocpe")
        if self.o["epq"]:
            a.I("s_lshl_b32 s56, %s, 2" % sCls)
            a.I("s_add_u32 s56, s56, %s" % sRole)
            a.I("s_cmp_lt_u32 s56, 2")
            a.I("s_cbranch_scc1 L_PQ")
        if self.o["eat"]:
            a.I("s_cmp_lt_u32 %s, 2" % sRole)
            a.I("s_cbranch_scc1 L_ATT")
        if self.o["cpf"]:
            a.I("s_cmp_lg_u32 %s, 3" % sRole)
            a.I("s_cbranch_scc1 L_nocpf")
            a.I("s_getpc_b64 s[44:45]")
            a.label("L_pc0")
            a.I("s_mov_b32 s46, L_codeend-L_pc0")
            a.I("s_mov_b32 s47, 0x00020000")
            a.I("s_lshl_b32 s56, %s, 12" % sW)
            for k in range(4):
                a.I("buffer_load_dwordx4 v[40:43], v4, s[44:47], s56 offen offset:%d" % (1024 * k))
            if self.o["cpf"] > 1:
                a.I("s_add_u32 s56, s56, 16384")
                for k in range(4):
                    a.I("buffer_load_dwordx4 v[40:43], v4, s[44:47], s56 offen offset:%d" % (1024 * k))
            a.label("L_nocpf")
        a.I("s_cmp_lg_u32 s58, %d" % (8 if self.o["epq"] else 0))
        a.I("s_cbranch_scc1 L_noinit")
        a.I("ds_write_b32 v5, v13")
        a.I("ds_write_b32 v5, v13 offset:256")
        if not (self.o["m1"] and self.o["m2"] and self.o["pad"]):
            a.I("v_mov_b32 v6, 0x3f803f80")
            a.I("v_and_b32 v7, 0x7c, v5")
            a.I("ds_write_b32 v7, v6 offset:%d" % (XL + 4 * 128))
            a.I("v_mov_b32 v6, -1")
            a.I("ds_write_b32 v5, v6 offset:%d" % MLL)
            a.I("ds_write_b32 v5, v6 offset:%d" % (MLL + 256))
        a.label("L_noinit")
        if self.o["ehs"]:
            a.I("s_cmp_lg_u32 s58, 13")
            a.I("s_cbranch_scc1 L_noclr")
            self.hs_clears(wait=True)
            a.label("L_noclr")
        a.I("s_waitcnt lgkmcnt(0)")
        a.I("s_barrier")
        self.srd(SRD_WS, "ws", WS_BYTES)
        a.I("s_cmp_eq_u32 s58, 13")
        a.I("s_cbranch_scc1 L_HS")
        a.label("L_roles")
        a.I("s_lshl_b32 s56, %s, 2" % sCls)
        a.I("s_add_u32 s56, s56, %s" % sRole)
        if not self.o["epq"]:
            a.I("s_cmp_lt_u32 s56, 2")
            a.I("s_cbranch_scc1 L_PQ")
        a.I("s_cmp_lt_u32 s56, 4")
        a.I("s_cbranch_scc1 L_PO")

    def fast_head(self):
        a = self.a
        a.I("s_cmp_ge_u32 s58, 8")
        a.I("s_cbranch_scc1 L_norm")
        a.I("s_mov_b32 s11, 0x00020000")
        a.I("s_bitcmp1_b32 s2, 3")
        a.I("s_cbranch_scc0 L_fh_p")
        a.I("s_lshr_b32 s56, %s, 2" % sU)
        a.I("s_lshl3_add_u32 s56, s56, %s" % sG)
        a.I("s_and_b32 s57, %s, 3" % sU)
        a.I("s_lshl4_add_u32 s56, s56, s57")
        a.I("s_lshl3_add_u32 s56, s56, s58")
        a.I("s_addk_i32 s56, 96")
        a.I("s_lshl_b32 s56, s56, 13")
        a.I("v_lshlrev_b32 v16, 4, v2")
        a.I("v_lshl_add_u32 v8, v3, 10, v16")
        a.I("s_brev_b32 s10, 64")
        a.I("s_waitcnt lgkmcnt(0)")
        a.I("s_mov_b64 s[8:9], s[%d:%d]" % (KA["A_v"], KA["A_v"] + 1))
        self.ts(1)
        for i in range(4):
            a.I("buffer_load_dwordx4 %s, v8, s[8:11], s56 offen offset:%d nt" % (vr(52 + 4 * i, 4), i * 256))
        a.I("s_branch L_norm")
        a.label("L_fh_p")
        a.I("s_bfe_u32 s56, %s, 0x20001" % sU)
        a.I("s_lshl_b32 s56, s56, 5")
        a.I("s_and_b32 s57, %s, 1" % sU)
        a.I("s_or_b32 s56, s56, s57")
        a.I("v_and_b32 v22, 1, v3")
        a.I("s_cmp_ge_u32 s58, 4")
        a.I("s_cbranch_scc1 L_fh_x")
        a.I("s_getpc_b64 s[8:9]")
        a.label("L_pc1")
        a.I("s_mov_b32 s10, L_codeend-L_pc1")
        a.I("s_mul_i32 s57, s58, 3072")
        for k in range(3):
            a.I("buffer_load_dwordx4 v[40:43], v4, s[8:11], s57 offen offset:%d" % (1024 * k))
        a.I("s_lshl_b32 s56, s56, 5")
        a.I("s_or_b32 s56, s56, %s" % sG)
        a.I("s_lshr_b32 s57, %s, 3" % sU)
        a.I("s_lshl1_add_u32 s56, s56, s57")
        a.I("s_lshl2_add_u32 s56, s56, s58")
        a.I("s_lshl_b32 s56, s56, 7")
        a.I("v_lshlrev_b32 v20, 3, v2")
        a.I("v_lshl_add_u32 v21, v22, 19, v20")
        a.I("v_lshrrev_b32 v23, 1, v3")
        a.I("v_lshl_add_u32 v6, v23, 13, v21")
        a.I("v_add_u32 v7, 0x4000, v6")
        a.I("s_mov_b32 s57, 0x10000")
        a.I("s_lshl_b32 s10, s57, 6")
        a.I("s_waitcnt lgkmcnt(0)")
        a.I("s_mov_b64 s[8:9], s[%d:%d]" % (KA["A_wq"], KA["A_wq"] + 1))
        if self.o["fhd"]:
            a.I("s_sleep %d" % self.o["fhd"])
        self.ts(11)
        for e in range(8):
            for ks in range(2):
                a.I("buffer_load_dwordx2 %s, v%d, s[8:11], s56 offen nt" % (vr(52 + 16 * ks + 2 * e, 2), 6 + ks))
            if e < 7:
                a.I("s_add_u32 s56, s56, s57")
        a.I("s_branch L_norm")
        a.label("L_fh_x")
        a.I("s_setprio 3")
        a.I("s_sub_u32 s57, s58, 4")
        a.I("s_lshl2_add_u32 s56, s56, s57")
        a.I("s_lshl_b32 s56, s56, 1")
        a.I("s_lshl_b32 s57, s57, 10")
        a.I("v_bfe_u32 v21, v2, 1, 2")
        a.I("v_and_b32 v23, 1, v2")
        a.I("v_lshl_add_u32 v23, v23, 1, v22")
        a.I("v_lshlrev_b32 v24, 10, v21")
        a.I("v_lshl_add_u32 v11, v23, 6, v24")
        a.I("s_movk_i32 s10, 4096")
        a.I("s_waitcnt lgkmcnt(0)")
        a.I("s_mov_b64 s[8:9], s[%d:%d]" % (KA["A_x"], KA["A_x"] + 1))
        a.I("buffer_load_dwordx4 v[96:99], v4, s[8:11], s57 offen")
        for rr in range(4):
            a.I("buffer_load_ushort v%d, v11, s[8:11], s56 offen offset:%d" % (116 + rr, 16 * rr))
        a.label("L_norm")

    def att(self):
        a, o = self.a, self.o
        vKA, vKB, vV, vQLR, vOP, vMLP, vMLW, vPW, vPR, vMLR, vF, vFW = (
            "v6", "v7", "v8", "v9", "v10", "v11", "v15", "v5", "v16", "v17", "v2", "v3")
        TM = 12
        M_, L_ = 18, 19
        K0, V0, G0, P0, S0 = 20, 52, 84, 116, 120
        sKV, sOP, sMLP, sRow, sKV2, sSgn, sQuad = "s64", "s65", "s66", "s67", "s69", "s70", "s71"
        a.label("L_ATT")
        a.I("s_and_b32 %s, %s, 1" % (sQuad, sRole))
        a.I("s_lshr_b32 %s, %s, 1" % (sPar, sRole))
        a.I("s_lshl_b32 %s, %s, 1" % (sRow, sU))
        a.I("s_add_u32 %s, %s, %s" % (sRow, sRow, sQuad))
        a.I("s_add_u32 %s, %s, 1" % (sL, sPar))
        if not o["eat"]:
            a.I("s_cmp_lg_u32 %s, 0" % sPar)
            self.srd_sel(SRD_M0, "A_k", "B_k", 32 << 20)
            self.srd_sel(SRD_M1, "A_v", "B_v", 32 << 20)
        a.I("s_lshr_b32 s58, %s, 3" % sRow)
        a.I("s_and_b32 s59, %s, 7" % sRow)
        self.sacc(sKV, [("s58", 23), (sG, 20), ("s59", 15), (sW, 13)], 3072 * 256)
        a.I("s_add_u32 %s, %s, 4096" % (sKV2, sKV))
        a.I("v_lshlrev_b32 v16, 4, v2")
        a.I("v_lshl_add_u32 %s, v3, 10, v16" % vV)
        a.I("v_mov_b32 v18, 1")
        a.I("s_lshl_b32 s56, %s, 4" % sQuad)
        a.I("v_add_u32 v19, s56, v14")
        lds_ = []
        for q in range(8):
            lds_.append("buffer_load_dwordx4 %s, v4, %s, %s offen offset:%d nt" % (vr(K0 + 4 * q, 4), SRD_M0, sKV2 if q >= 4 else sKV, (q & 3) * 1024))
        for i in range(8):
            so = sKV2 if i >= 4 else sKV
            lds_.append("buffer_load_dwordx4 %s, %s, %s, %s offen offset:%d nt" % (vr(V0 + 4 * i, 4), vV, SRD_M1, so, (i & 3) * 256))
        if o["vf"]:
            lds_ = lds_[8:] + lds_[:8]
        a.I("s_cmp_lg_u32 %s, 0" % sPar)
        a.I("s_cbranch_scc1 L_att_sb")
        if o["kdelay"]:
            a.I("s_sleep %d" % o["kdelay"])
        if o["eat"]:
            assert o["vf"]
            a.I("s_mov_b32 s14, 0x%x" % (32 << 20))
            a.I("s_mov_b32 s15, 0x00020000")
            a.I("s_waitcnt lgkmcnt(0)")
            a.I("s_mov_b64 s[12:13], s[%d:%d]" % (KA["A_v"], KA["A_v"] + 1))
        if not o["fh"]:
            self.ts(1)
        for k, ld in enumerate(lds_):
            if o["fh"] and k < 4:
                continue
            d = o["da1"] if k < o["na1"] else o["da"]
            if o["eat"] and k == 4:
                self.srd(SRD_M0, "A_k", 32 << 20)
                self.srd(SRD_WS, "ws", WS_BYTES)
                a.I("s_barrier")
            if k > d:
                a.I("s_waitcnt vmcnt(%d)" % d)
            if k == o["kq"]:
                a.I("ds_write_b32 v19, v18 offset:%d" % FISS)
            if k == o["khint"]:
                a.I("ds_write_b32 v19, v18 offset:%d" % FHINT)
            a.I(ld)
        if o["nbq1"]:
            a.I("v_mov_b32 v18, 2")
            a.I("ds_write_b32 v19, v18 offset:%d" % FISS)
        a.I("s_branch L_att_se")
        a.label("L_att_sb")
        if o["eat"]:
            a.I("s_waitcnt lgkmcnt(0)")
            self.srd(SRD_M0, "B_k", 32 << 20)
            self.srd(SRD_M1, "B_v", 32 << 20)
            self.srd(SRD_WS, "ws", WS_BYTES)
        self.load_epoch()
        a.I("s_cmp_lg_u32 %s, 0" % sQuad)
        a.I("s_cbranch_scc1 L_att_b1")
        self.collect_first(G0, S0)
        a.I("s_branch L_att_b2")
        a.label("L_att_b1")
        a.I("s_cmp_lg_u32 %s, 0" % sW)
        a.I("s_cbranch_scc1 L_att_b2")
        self.lds_wait_ge("v13", FHINT, "1", "v16", sleep=1)
        a.I("s_add_u32 s74, s74, 1")
        a.I("s_addc_u32 s75, s75, 0")
        a.I("v_mov_b32 v16, s74")
        a.I("v_mov_b32 v17, s75")
        self.sacc("s58", [(sG, 12), (sI, 7)], GFLAGS)
        a.I("s_mov_b64 exec, 1")
        a.I("buffer_store_dwordx2 v[16:17], v13, %s, s58 offen" % SRD_WS)
        a.I("s_mov_b64 exec, -1")
        a.label("L_att_b2")
        if o["nbq1"]:
            lq = a.newlabel("LBQ")
            a.I("s_cmp_eq_u32 %s, 0" % sQuad)
            a.I("s_cbranch_scc1 %s" % lq)
            self.exchange(FISS, S0, [], sval="2", sleep=2)
            self.exchange(FISS + 16, S0, [], sval="2", sleep=1)
            self.ts(1)
            for k, ld in enumerate(lds_):
                if k == o["nbq1"]:
                    self.exchange(FAP, S0, [], sval="1", sleep=1)
                    self.exchange(FAP + 16, S0, [], sval="1", sleep=1)
                if k < o["nbq1"] and k > o["dq1"]:
                    a.I("s_waitcnt vmcnt(%d)" % o["dq1"])
                a.I(ld)
            a.I("s_branch L_att_se")
            a.label(lq)
        if o["bstart"] == 2:
            self.exchange(FAP, S0, [], sval="1", sleep=2)
            self.exchange(FAP + 16, S0, [], sval="1", sleep=1)
        elif o["bstart"] in (1, 3):
            self.exchange(FAQ, S0, [], sval="1", sleep=2)
            if o["tb"]:
                self.lds_wait_ge("v13", TBL, "1", "v16", sleep=2)
                a.I("v_readfirstlane_b32 s58, v16")
                lt = a.newlabel("LTB")
                a.label(lt)
                a.I("s_memrealtime s[56:57]")
                a.I("s_waitcnt lgkmcnt(0)")
                a.I("s_sub_u32 s56, s56, s58")
                a.I("s_cmp_lt_i32 s56, %d" % o["tb"])
                a.I("s_cbranch_scc1 %s" % self.retry_stub(lt, 2))
        else:
            self.lds_wait_ge("v19", FISS, "1", "v16", sleep=2)
        self.ts(1)
        for k, ld in enumerate(lds_):
            d = o["db1"] if k < o["nb1"] else o["db"]
            if o["bstart"] == 3 and k == o["nb0"]:
                self.exchange(FAP, S0, [], sval="1", sleep=1)
                self.exchange(FAP + 16, S0, [], sval="1", sleep=1)
                if o["fapd"]:
                    a.I("s_sleep %d" % o["fapd"])
            if k > d:
                a.I("s_waitcnt vmcnt(%d)" % d)
            if o["cg"] and k == o["cgk"]:
                a.I("ds_write_b32 v19, v18 offset:%d" % FBI)
            a.I(ld)
        if o["cg"] and o["cgk"] == 16:
            a.I("ds_write_b32 v19, v18 offset:%d" % FBI)
        if o["bstart"] < 2:
            self.exchange(FAP, S0, [], sval="1", sleep=2)
            self.exchange(FAP + 16, S0, [], sval="1", sleep=1)
        a.label("L_att_se")
        self.ts(2)
        a.I("s_lshl_b32 s58, %s, 4" % sRole)
        a.I("v_add_u32 v0, s58, v14")
        a.I("s_mov_b32 %s, 0" % sSgn)
        self.sacc(sOP, [(sG, 15), (sRow, 8), (sW, 6)], OBUF)
        if o["m1"]:
            a.I("s_lshr_b32 s60, %s, 3" % sRow)
            a.I("s_and_b32 s61, %s, 3" % sRow)
            a.I("s_bfe_u32 s62, %s, 0x10002" % sRow)
            self.sacc(sMLP, [(sG, 15), ("s60", 8), (sW, 6), ("s61", 4), ("s62", 3)], MLBUF)
        else:
            self.sacc(sMLP, [(sG, 15), (sRow, 6)], MLBUF)
        a.I("v_lshlrev_b32 v16, 2, v2")
        a.I("v_lshl_add_u32 %s, v3, 13, v16" % vOP)
        a.I("v_and_b32 v16, 3, v1")
        a.I("v_cmp_eq_u32 vcc, 0, v16")
        a.I("v_cndmask_b32 v%d, 0, 1, vcc" % TM)
        a.I("v_lshrrev_b32 v18, 2, v2")
        a.I("v_lshlrev_b32 v19, 4, v3")
        a.I("v_lshl_add_u32 %s, v18, 8, v19" % vQLR)
        if o["pad"]:
            a.I("v_lshl_add_u32 %s, v18, 6, %s" % (vQLR, vQLR))
        a.I("s_lshl_b32 s56, %s, 7" % sRole)
        a.I("v_add_u32 %s, s56, v19" % vMLR)
        a.I("v_lshl_add_u32 %s, v18, 4, v14" % vMLW)
        a.I("v_add_u32 %s, s56, %s" % (vMLW, vMLW))
        a.I("s_lshl_b32 s56, %s, 12" % sQuad)
        a.I("v_add_u32 %s, s56, v4" % vPR)
        a.I("s_lshl_b32 s56, %s, 10" % sW)
        a.I("v_add_u32 %s, s56, %s" % (vPW, vPR))
        if o["m1"]:
            a.I("v_lshlrev_b32 v19, 10, v18")
            a.I("v_and_b32 v1, 0x33, v1")
            a.I("v_cmp_eq_u32 vcc, 0, v1")
        else:
            a.I("v_lshlrev_b32 v19, 3, v2")
            a.I("v_lshl_add_u32 v19, v3, 11, v19")
            a.I("s_cmp_eq_u32 %s, 0" % sW)
            a.I("s_cselect_b32 s56, 8, 0")
            a.I("v_cmp_gt_u32 vcc, s56, v2")
        a.I("v_mov_b32 v1, 0x%x" % OOB)
        a.I("v_cndmask_b32 %s, v1, v19, vcc" % vMLP)
        self.sacc("s60", [(sQuad, 15), (sW, 13)], VX)
        self.sacc("s61", [(sQuad, 15), (sW, 11)], VX)
        a.I("v_xor_b32 v19, v2, v3")
        a.I("v_lshlrev_b32 v19, 4, v19")
        a.I("v_add_u32 v19, s60, v19")
        if o["vf"]:
            a.I("v_add_u32 v19, 0x%x, v19" % (KX - VX))
        a.I("v_lshl_add_u32 %s, v3, 8, v19" % vKA)
        a.I("v_lshl_add_u32 %s, v2, 8, v19" % vKB)
        a.I("v_mov_b32 %s, s58" % vF)
        a.I("v_mov_b32 %s, v0" % vFW)

        def k_prep():
            if o["vf"] == 2:
                for hf in range(2):
                    a.I("s_waitcnt vmcnt(%d)" % (4 - 4 * hf))
                    if hf:
                        self.ts(3)
                    for q in range(4):
                        a.I("v_xor_b32 v1, %d, %s" % (64 * q, vKA))
                        a.I("ds_write_b128 v1, %s offset:%d" % (vr(K0 + 4 * (q + 4 * hf), 4), 1024 * (q + 4 * hf)))
                    for st in range(4):
                        a.I("v_xor_b32 v1, %d, %s" % (64 * st, vKB))
                        a.I("ds_read_b128 %s, v1 offset:%d" % (vr(K0 + 4 * (4 * hf + st), 4), 4096 * hf))
                return
            for q in range(4):
                a.I("v_xor_b32 v1, %d, %s" % (64 * q, vKA))
                a.I("ds_write_b128 v1, %s offset:%d" % (vr(K0 + 4 * q, 4), 1024 * q))
                a.I("ds_write_b128 v1, %s offset:%d" % (vr(K0 + 4 * (q + 4), 4), 1024 * (q + 4)))
            for st in range(4):
                a.I("v_xor_b32 v1, %d, %s" % (64 * st, vKB))
                a.I("ds_read_b128 %s, v1" % vr(K0 + 4 * st, 4))
                a.I("ds_read_b128 %s, v1 offset:4096" % vr(K0 + 4 * (4 + st), 4))

        def v_prep():
            self.transpose(V0, G0, 4)
            a.I("v_add_u32 v1, s60, v4")
            for j in range(8):
                a.I("ds_write_b128 v1, %s offset:%d" % (vr(G0 + 4 * j, 4), 1024 * j))
            a.I("v_mov_b32 v0, 1")
            self.flag_set(vFW, FVX, "v0")
            a.I("v_add_u32 v1, s61, v4")
            self.exchange(FVX, S0, ["ds_read_b128 %s, v1 offset:%d" % (vr(V0 + 4 * (2 * kb + jj), 4), 8192 * kb + 1024 * jj) for kb in range(4) for jj in range(2)],
                          sval="1", vbase=vF, optimistic=False)

        a.I("s_waitcnt vmcnt(8)")
        if o["vf"]:
            v_prep()
            if o["vf"] == 1:
                a.I("s_waitcnt vmcnt(0)")
                self.ts(3)
            k_prep()
        else:
            k_prep()
            a.I("s_waitcnt vmcnt(0) lgkmcnt(0)")
            self.ts(3)
            v_prep()
        self.wait_go("v1")

        a.label("L_att_loop")
        self.prio(0)
        a.I("v_mov_b32 v0, %s" % sL)
        if o["arm"]:
            self.lds_wait_ge("v13", ARM, sL, "v1", sleep=o["gsleep"] if o["arm"] == 1 else 0)
            self.prio(o["ap"])
        QO = G0 + 16
        self.exchange(FAQ, S0, ["ds_read_b128 %s, %s offset:%d" % (vr(QO + 4 * s, 4), vQLR, QL + 64 * s) for s in range(4)], optimistic=2 if o["fs"] & 8 else False, wait=False)
        if not o["arm"] or o["ap"] != 3:
            self.prio(3)
        self.ts_layer(8)
        for T, s in ([(T, s) for s in range(4) for T in range(2)] if o["qi"] else [(T, s) for T in range(2) for s in range(4)]):
            if True:
                if T == 0:
                    a.I("s_waitcnt lgkmcnt(%d)" % (0 if o["ts"] not in (0, 9) else 3 - s))
                a.I("v_mfma_f32_16x16x32_bf16 %s, %s, %s, %s" % (vr(S0 + 4 * T, 4), vr(K0 + (4 * T + s) * 4, 4), vr(QO + 4 * s, 4), "0" if s == 0 else vr(S0 + 4 * T, 4)))
        a.I("v_max3_f32 v%d, v%d, v%d, v%d" % (M_, S0, S0 + 1, S0 + 2))
        a.I("v_max_f32 v%d, v%d, v%d" % (M_, M_, S0 + 3))
        a.I("v_max3_f32 v%d, v%d, v%d, v%d" % (M_, M_, S0 + 4, S0 + 5))
        a.I("v_max3_f32 v%d, v%d, v%d, v%d" % (M_, M_, S0 + 6, S0 + 7))
        a.I("v_mov_b32 v1, v%d" % M_)
        a.I("v_permlane32_swap_b32 v%d, v1" % M_)
        a.I("v_max_f32 v%d, v%d, v1" % (M_, M_))
        a.I("v_mov_b32 v1, v%d" % M_)
        a.I("v_permlane16_swap_b32 v%d, v1" % M_)
        a.I("v_max_f32 v%d, v%d, v1" % (M_, M_))
        for k in range(4):
            a.I("v_pk_add_f32 %s, %s, %s op_sel_hi:[1,0] neg_lo:[0,1] neg_hi:[0,1]" % (vr(S0 + 2 * k, 2), vr(S0 + 2 * k, 2), vr(M_, 2)))
        a.I("ds_write_b32 %s, v%d offset:%d" % (vMLW, M_, MLL))
        for k in range(8):
            a.I("v_exp_f32 v%d, v%d" % (S0 + k, S0 + k))
        for k in range(4):
            a.I("v_cvt_pk_bf16_f32 v%d, v%d, v%d" % (P0 + k, S0 + 2 * k, S0 + 2 * k + 1))
        a.I("ds_write_b128 %s, %s offset:%d" % (vPW, vr(P0, 4), PL))
        self.flag_set(vFW, FAO, "v0")
        if o["m1"]:
            PR = [P0, G0 + 20, G0 + 24, G0 + 28]
            MF, MQ = S0, S0 + 4
            a.I("v_pk_add_f32 %s, %s, %s" % (vr(S0 + 4, 2), vr(S0 + 4, 2), vr(S0, 2)))
            a.I("v_pk_add_f32 %s, %s, %s" % (vr(S0 + 6, 2), vr(S0 + 6, 2), vr(S0 + 2, 2)))
            reads = ["ds_read_b128 %s, %s offset:%d" % (vr(MF, 4), vMLR, MLL)]
            reads += ["ds_read_b128 %s, %s offset:%d" % (vr(PR[kb], 4), vPR, PL + 1024 * kb) for kb in range(4)]

            def shadow():
                self.mode_test()
                a.I("v_pk_add_f32 %s, %s, %s" % (vr(S0 + 4, 2), vr(S0 + 4, 2), vr(S0 + 6, 2)))
                a.I("v_add_f32 v%d, v%d, v%d" % (L_, S0 + 4, S0 + 5))
                a.I("v_add_f32 v1, v%d, v%d" % (S0 + 4, S0 + 5))
                a.I("v_permlane32_swap_b32 v%d, v1" % L_)
                a.I("v_add_f32 v%d, v%d, v1" % (S0 + 4, L_))
                a.I("v_add_f32 v%d, v%d, v1" % (L_, L_))
                a.I("v_permlane16_swap_b32 v%d, v%d" % (L_, S0 + 4))
                a.I("v_add_f32 v%d, v%d, v%d" % (L_, L_, S0 + 4))
                a.I("v_bfi_b32 v%d, 1, %s, v%d" % (L_, sPar, L_))
                self.moded_stores(["buffer_store_dwordx2 %s, %s, %s, %s offen" % (vr(M_, 2), vMLP, SRD_WS, sMLP)], tested=True)

            self.exchange(FAO, G0, reads, shadow=shadow, vbase=vF, lowspin=o["sp"], fullstub=bool(o["fs"] & 4))
            DD = [G0 + 2 * x for x in range(8)]
            fops = [
                "v_max3_f32 v%d, v%d, v%d, v%d" % (MQ, MF, MF + 1, MF + 2),
                "v_max_f32 v%d, v%d, v%d" % (MQ, MQ, MF + 3),
                "v_pk_add_f32 %s, %s, %s op_sel_hi:[1,0] neg_lo:[0,1] neg_hi:[0,1]" % (vr(MF, 2), vr(MF, 2), vr(MQ, 2)),
                "v_pk_add_f32 %s, %s, %s op_sel_hi:[1,0] neg_lo:[0,1] neg_hi:[0,1]" % (vr(MF + 2, 2), vr(MF + 2, 2), vr(MQ, 2)),
                "v_exp_f32 v%d, v%d" % (MF, MF),
                "v_exp_f32 v%d, v%d" % (MF + 1, MF + 1),
                "v_exp_f32 v%d, v%d" % (MF + 2, MF + 2),
                "v_exp_f32 v%d, v%d" % (MF + 3, MF + 3),
            ]
            OA, OB = S0 + 6, S0 + 7
            a.allow_mfma_waw = True
            for x in range(8):
                kb = x >> 1
                a.I("v_mfma_f32_16x16x32_bf16 %s, %s, %s, 0" % (vr(DD[x], 4), vr(PR[kb], 4), vr(V0 + 4 * x, 4)))
                for _ in range(2):
                    if fops:
                        a.I(fops.pop(0))
            a.allow_mfma_waw = False
            self.mode_test()
            a.I("v_mul_f32 v%d, v%d, v%d" % (OA, MF, DD[0]))
            a.I("v_mul_f32 v%d, v%d, v%d" % (OB, MF, DD[1]))
            for kb in range(1, 4):
                a.I("v_fmac_f32 v%d, v%d, v%d" % (OA, MF + kb, DD[2 * kb]))
                a.I("v_fmac_f32 v%d, v%d, v%d" % (OB, MF + kb, DD[2 * kb + 1]))
            a.I("v_cvt_pk_bf16_f32 v%d, v%d, v%d" % (OA, OA, OB))
            a.I("v_bfi_b32 v%d, v%d, %s, v%d" % (OA, TM, sPar, OA))
            self.moded_stores(["buffer_store_dword v%d, %s, %s, %s offen" % (OA, vOP, SRD_WS, sOP)], tested=True)
        else:
            a.I("v_pk_add_f32 %s, %s, %s" % (vr(S0, 2), vr(S0, 2), vr(S0 + 2, 2)))
            a.I("v_pk_add_f32 %s, %s, %s" % (vr(S0 + 4, 2), vr(S0 + 4, 2), vr(S0 + 6, 2)))
            a.I("v_pk_add_f32 %s, %s, %s" % (vr(S0, 2), vr(S0, 2), vr(S0 + 4, 2)))
            a.I("v_add_f32 v%d, v%d, v%d" % (L_, S0, S0 + 1))
            PR = [P0, G0 + 20, G0 + 24, G0 + 28]
            MF, LLr = S0, S0 + 4
            reads = ["ds_read_b128 %s, %s offset:%d" % (vr(MF, 4), vMLR, MLL)]
            reads += ["ds_read_b128 %s, %s offset:%d" % (vr(PR[kb], 4), vPR, PL + 1024 * kb) for kb in range(4)]
            shadow = [
                "v_mov_b32 v1, v%d" % L_,
                "v_permlane32_swap_b32 v%d, v1" % L_,
                "v_add_f32 v%d, v%d, v1" % (L_, L_),
                "v_mov_b32 v1, v%d" % L_,
                "v_permlane16_swap_b32 v%d, v1" % L_,
                "v_add_f32 v%d, v%d, v1" % (L_, L_),
                "v_and_b32 v%d, 0x7fffffff, v%d" % (L_, L_),
                "v_or_b32 v%d, %s, v%d" % (L_, sSgn, L_),
                "ds_write_b32 %s, v%d offset:%d" % (vMLW, L_, LLL),
            ]
            self.exchange(FAO, LLr, reads, shadow=shadow, nshadow_ds=1, vbase=vF, fullstub=bool(o["fs"] & 4))
            a.I("ds_read_b128 %s, %s offset:%d" % (vr(LLr, 4), vMLR, LLL))
            DD = [G0 + 2 * x for x in range(8)]
            fops = [
                "v_max3_f32 v%d, v%d, v%d, v%d" % (M_, MF, MF + 1, MF + 2),
                "v_max_f32 v%d, v%d, v%d" % (M_, M_, MF + 3),
                "v_pk_add_f32 %s, %s, %s op_sel_hi:[1,0] neg_lo:[0,1] neg_hi:[0,1]" % (vr(MF, 2), vr(MF, 2), vr(M_, 2)),
                "v_pk_add_f32 %s, %s, %s op_sel_hi:[1,0] neg_lo:[0,1] neg_hi:[0,1]" % (vr(MF + 2, 2), vr(MF + 2, 2), vr(M_, 2)),
                "v_exp_f32 v%d, v%d" % (MF, MF),
                "v_exp_f32 v%d, v%d" % (MF + 1, MF + 1),
                "v_exp_f32 v%d, v%d" % (MF + 2, MF + 2),
                "v_exp_f32 v%d, v%d" % (MF + 3, MF + 3),
            ]
            a.allow_mfma_waw = True
            for x in range(8):
                kb = x >> 1
                a.I("v_mfma_f32_16x16x32_bf16 %s, %s, %s, 0" % (vr(DD[x], 4), vr(PR[kb], 4), vr(V0 + 4 * x, 4)))
                for _ in range(2):
                    if fops:
                        a.I(fops.pop(0))
            a.allow_mfma_waw = False
            ll = a.newlabel("LL")
            a.label(ll)
            a.I("s_waitcnt lgkmcnt(0)")
            a.I("v_bitop3_b32 v1, v%d, v%d, %s bitop3:0x7e" % (LLr, LLr + 1, sSgn))
            a.I("v_bitop3_b32 v1, v1, v%d, %s bitop3:0xf6" % (LLr + 2, sSgn))
            a.I("v_bitop3_b32 v1, v1, v%d, %s bitop3:0xf6" % (LLr + 3, sSgn))
            a.I("v_cmp_gt_i32 vcc, 0, v1")
            a.I("s_cbranch_vccnz %s" % self.retry_stub(ll, pre=["ds_read_b128 %s, %s offset:%d" % (vr(LLr, 4), vMLR, LLL)]))
            self.mode_test()
            a.I("v_mul_f32 v%d, v%d, v%d" % (L_, MF, LLr))
            OA, OB = P0, P0 + 1
            a.I("v_mul_f32 v%d, v%d, v%d" % (OA, MF, DD[0]))
            a.I("v_mul_f32 v%d, v%d, v%d" % (OB, MF, DD[1]))
            for kb in range(1, 4):
                a.I("v_fmac_f32 v%d, v%d, v%d" % (L_, MF + kb, LLr + kb))
                a.I("v_fmac_f32 v%d, v%d, v%d" % (OA, MF + kb, DD[2 * kb]))
                a.I("v_fmac_f32 v%d, v%d, v%d" % (OB, MF + kb, DD[2 * kb + 1]))
            a.I("v_and_b32 v%d, 0x7ffffffe, v%d" % (L_, L_))
            a.I("v_cvt_pk_bf16_f32 v%d, v%d, v%d" % (OA, OA, OB))
            a.I("v_or_b32 v%d, %s, v%d" % (L_, sPar, L_))
            a.I("v_bfi_b32 v%d, v%d, %s, v%d" % (OA, TM, sPar, OA))
            self.moded_stores([
                "buffer_store_dword v%d, %s, %s, %s offen" % (OA, vOP, SRD_WS, sOP),
                "buffer_store_dwordx2 %s, %s, %s, %s offen" % (vr(M_, 2), vMLP, SRD_WS, sMLP),
            ], tested=True)
        a.I("v_and_b32 v1, 31, %s" % vFW)
        if o["fapw"]:
            a.I("s_waitcnt vmcnt(0)")
        self.flag_set("v1", FAP, "v0")
        self.ts_layer(9)
        a.I("s_brev_b32 %s, 1" % sSgn)
        a.I("s_cmp_eq_u32 %s, 4" % sL)
        a.I("s_cbranch_scc1 L_att_fin")
        a.I("s_add_u32 %s, %s, 1" % (sL, sL))
        a.I("s_cmp_lg_u32 %s, 0" % sQuad)
        a.I("s_cbranch_scc1 L_att_nc")
        self.collect(G0, S0, P0)
        a.label("L_att_nc")
        self.ts_save()
        a.I("s_add_u32 %s, %s, 1" % (sL, sL))
        a.I("s_cmp_le_u32 %s, 4" % sL)
        a.settle()
        a.I("s_cbranch_scc1 L_att_loop")
        a.I("s_branch L_end")
        a.label("L_att_fin")
        a.I("s_cmp_lg_u32 s2, 8")
        a.I("s_cbranch_scc1 L_end")
        a.I("s_or_b32 s56, %s, %s" % (sW, sQuad))
        a.I("s_cmp_lg_u32 s56, 0")
        a.I("s_cbranch_scc1 L_end")
        a.I("v_mov_b32 v18, s74")
        a.I("v_mov_b32 v19, s75")
        a.I("s_mov_b64 exec, 1")
        a.I("s_mov_b32 s58, 0x%x" % EPOCH)
        a.I("buffer_store_dwordx2 v[18:19], v13, %s, s58 offen sc1" % SRD_WS)
        a.I("s_branch L_end")

    QSC = f32bits(128 ** -0.5 * math.log2(math.e))

    def lane_ids(self, t):
        a = self.a
        a.I("v_lshrrev_b32 v%d, 4, v4" % t)
        a.I("v_and_b32 v%d, 15, v%d" % (t + 1, t))
        a.I("v_bfe_u32 v%d, v%d, 4, 1" % (t + 2, t))
        a.I("v_lshlrev_b32 v%d, 3, v%d" % (t + 2, t + 2))
        a.I("v_lshl_add_u32 v%d, v%d, 4, v%d" % (t + 2, t + 1, t + 2))
        a.I("s_mul_i32 s56, %s, %d" % (sW, 320 if self.o["pad"] else 256))
        a.I("v_add_u32 v%d, s56, v%d" % (t + 2, t + 2))

    def collect_first(self, G0, T8):
        a, o = self.a, self.o
        SE2, DQ, ID = G0 + 16, G0 + 24, G0 + 28
        self.lane_ids(ID)
        a.I("v_and_b32 v16, 7, v%d" % ID)
        a.I("v_mov_b32 v17, 1.0")
        for t in range(8):
            a.I("v_cmp_eq_u32 vcc, %d, v16" % t)
            a.I("v_cndmask_b32 v%d, v13, v17, vcc" % (SE2 + t))
        a.I("s_waitcnt lgkmcnt(0)")
        self.epoch_tags()
        a.I("s_lshr_b32 s58, %s, 2" % sU)
        self.sacc("s58", [(sG, 16), ("s58", 14), (sW, 12)], Q1BUF)
        a.I("v_mov_b32 v0, 1")
        a.I("ds_write_b32 v13, v0 offset:%d" % ARM)
        self.lds_wait_ge("v14", FISS, "1", "v16", sleep=2)
        self.prio(3)
        l0, l1 = a.newlabel("LQ"), a.newlabel("LQD")
        a.label(l0)
        for r in range(4):
            a.I("buffer_load_dwordx4 %s, v4, %s, s58 offen offset:%d sc1" % (vr(G0 + 4 * r, 4), SRD_WS, r * 1024))
        a.I("s_waitcnt vmcnt(0)")
        for k in range(4):
            a.I("v_bitop3_b32 v%d, v%d, v%d, s%d bitop3:0x7e" % (T8 + k, G0 + k, G0 + 4 + k, 60 + k))
            a.I("v_bitop3_b32 v%d, v%d, v%d, s%d bitop3:0x7e" % (T8 + 4 + k, G0 + 8 + k, G0 + 12 + k, 60 + k))
        a.I("v_or3_b32 v16, v%d, v%d, v%d" % (T8, T8 + 1, T8 + 2))
        a.I("v_or3_b32 v17, v%d, v%d, v%d" % (T8 + 3, T8 + 4, T8 + 5))
        a.I("v_or3_b32 v16, v16, v%d, v%d" % (T8 + 6, T8 + 7))
        a.I("v_or_b32 v16, v16, v17")
        a.I("v_and_b32 v16, 0xffff, v16")
        a.I("v_cmp_ne_u32 vcc, 0, v16")
        a.I("s_and_b64 exec, exec, vcc")
        a.I("s_cbranch_scc0 %s" % l1)
        a.I("s_sleep 1")
        self.bail(l0)
        a.label(l1)
        a.I("s_mov_b64 exec, -1")
        self.ts(11)
        for r in range(4):
            a.I("v_mfma_f32_16x16x32_bf16 %s, %s, %s, %s" % (vr(DQ, 4), vr(SE2 + 4 * (r >> 1), 4), vr(G0 + 4 * r, 4), "0" if r == 0 else vr(DQ, 4)))
        for k in range(4):
            a.I("v_mul_f32 v%d, 0x%x, v%d" % (DQ + k, self.QSC, DQ + k))
        a.I("v_cvt_pk_bf16_f32 v%d, v%d, v%d" % (DQ, DQ, DQ + 1))
        a.I("v_cvt_pk_bf16_f32 v%d, v%d, v%d" % (DQ + 1, DQ + 2, DQ + 3))
        a.I("ds_write_b64 v%d, %s offset:%d" % (ID + 2, vr(DQ, 2), QL))
        self.flag_set("v14", FAQ, "v0")
        self.prio(0)

    def collect(self, G0, S0, P0):
        a, o = self.a, self.o
        SEL, DQ, CS, ID, ST = G0 + 8, G0 + 12, G0 + 16, G0 + 20, G0 + 24
        vSTG = "v%d" % (G0 + 26)
        sParQ = "s59"
        self.prio(0)
        a.I("v_mov_b32 v0, %s" % sL)
        self.lane_ids(ID)
        a.I("v_mov_b32 v1, v%d" % ID)
        self.selector(SEL, 0x3f80, "v%d" % S0, "v%d" % (S0 + 1))
        a.I("v_and_b32 %s, 7, v1" % vSTG)
        a.I("v_lshlrev_b32 %s, 7, %s" % (vSTG, vSTG))
        a.I("s_xor_b32 s63, %s, 1" % sPar)
        a.I("s_lshr_b32 s58, %s, 2" % sU)
        self.sacc("s60", ([] if o["q1b"] else [("s63", 18)]) + [(sG, 15), ("s58", 13), (sW, 11)], QBUF)
        if o["m2"]:
            a.I("s_lshr_b32 s62, %s, 1" % sW)
            self.sacc("s61", [(sG, 15), ("s62", 12), ("s58", 10)], STBUF)
        else:
            self.sacc("s61", [(sG, 15), ("s63", 10), ("s58", 3)], STBUF)
        self.sacc("s58", [(sG, 15), ("s63", 13), (sW, 11)], CSBUF)
        a.I("s_mov_b32 s63, 0")
        if o["q1b"]:
            assert o["m2"]
            sParQ = sL
        else:
            a.I("s_lshr_b32 %s, %s, 2" % (sParQ, sL))

        def gather_loads(sb):
            return [("buffer_load_dwordx4 %s, v4, %s, %s offen offset:%d sc1" % (vr(G0 + 4 * r, 4), SRD_WS, sb, r * 1024), ["v%d" % (G0 + 4 * r)]) for r in range(2)]

        t1, t2 = "v1", "v%d" % S0
        if o["csl"]:
            lz = a.newlabel("LZ")
            a.I("s_cmp_gt_u32 %s, 2" % sL)
            a.I("s_cbranch_scc1 %s" % lz)
            a.I("s_sleep %d" % o["csl"])
            a.label(lz)
        if o["cg"] == 1:
            self.exchange(FBI, S0, [], sval="1", sleep=4)
            self.exchange(FBI + 16, S0, [], sval="1", sleep=2)
        self.poll(gather_loads("s58"), t1, t2, "0", sleep=4)
        if o["cg"] == 2:
            self.exchange(FBI, S0, [], sval="1", sleep=4)
            self.exchange(FBI + 16, S0, [], sval="1", sleep=2)
        a.I("v_mfma_f32_16x16x32_bf16 %s, %s, %s, 0" % (vr(CS, 4), vr(SEL, 4), vr(G0, 4)))
        a.I("v_mfma_f32_16x16x32_bf16 %s, %s, %s, %s" % (vr(CS, 4), vr(SEL, 4), vr(G0 + 4, 4), vr(CS, 4)))
        if o["m2"]:
            dpp = " row_mask:0xf bank_mask:0xf"
            T = G0 + 28
            qloads = [ld for ld, _ in gather_loads("s60")]
            self.poll2([("buffer_load_dwordx4 %s, v4, %s, s61 offen sc1" % (vr(ST, 4), SRD_WS), ["v%d" % (ST + 1), "v%d" % (ST + 3)])], t1, t2, sL,
                       on_first=[] if o["arml"] else ["ds_write_b32 v13, v0 offset:%d" % ARM], data=qloads, early=2 if o["cmb"] & 2 else 0, defer=o["qpos"], warm=2 if o["cmb"] & 16 else 0)
            if o["arml"] == 1:
                a.I("ds_write_b32 v13, v0 offset:%d" % ARM)
            a.I("v_pk_add_f32 %s, %s, %s" % (vr(ST, 2), vr(ST, 2), vr(ST + 2, 2)))
            for rot in (8, 4, 2, 1):
                a.I("v_add_f32_dpp v%d, v%d, v%d row_ror:%d%s" % (ST, ST, ST, rot, dpp))
                a.I("v_add_f32_dpp v%d, v%d, v%d row_ror:%d%s" % (ST + 1, ST + 1, ST + 1, rot, dpp))
            for sw in ("32", "16"):
                a.I("v_mov_b32 v%d, v%d" % (T, ST))
                a.I("v_mov_b32 v%d, v%d" % (T + 1, ST + 1))
                a.I("v_permlane%s_swap_b32 v%d, v%d" % (sw, ST, T))
                a.I("v_permlane%s_swap_b32 v%d, v%d" % (sw, ST + 1, T + 1))
                a.I("v_pk_add_f32 %s, %s, %s" % (vr(ST, 2), vr(ST, 2), vr(T, 2)))
            if o["arml"] == 2:
                a.I("ds_write_b32 v13, v0 offset:%d" % ARM)
            a.I("v_mul_f32 v%d, 0x%x, v%d" % (ST, f32bits(-1.0 / 512), ST))
            a.I("v_mul_f32 v%d, 0x%x, v%d" % (ST + 1, f32bits(1.0 / 512), ST + 1))
            a.I("v_pk_mul_f32 %s, %s, %s op_sel_hi:[1,0]" % (vr(CS, 2), vr(CS, 2), vr(ST, 2)))
            a.I("v_pk_mul_f32 %s, %s, %s op_sel_hi:[1,0]" % (vr(CS + 2, 2), vr(CS + 2, 2), vr(ST, 2)))
            a.I("v_fma_f32 v%d, -v%d, v%d, v%d" % (ST + 1, ST, ST, ST + 1))
            a.I("v_max_f32 v%d, 0, v%d" % (ST + 1, ST + 1))
            a.I("v_add_f32 v%d, 0x%x, v%d" % (ST + 1, f32bits(1e-5), ST + 1))
            a.I("v_rsq_f32 v%d, v%d" % (ST + 1, ST + 1))
            a.I("v_mul_f32 v%d, 0x%x, v%d" % (ST + 1, self.QSC, ST + 1))
            lo = a.newlabel("LO")
            a.label(lo)
            for r in range(2):
                a.I("s_waitcnt vmcnt(%d)" % (1 - r))
                a.I("v_mfma_f32_16x16x32_bf16 %s, %s, %s, %s" % (vr(DQ, 4), vr(SEL, 4), vr(G0 + 4 * r, 4), vr(CS, 4) if r == 0 else vr(DQ, 4)))
            self.tagtree(["v%d" % G0, "v%d" % (G0 + 4)], t1, t2, sParQ)
            a.I("v_cmp_ne_u32 vcc, 0, %s" % t1)
            a.I("s_cbranch_vccnz %s" % self.retry_stub(lo, 0, pre=["s_mov_b64 exec, vcc"] + qloads + ["s_mov_b64 exec, -1"]))
            self.ts_layer(10)
            a.I("v_pk_mul_f32 %s, %s, %s op_sel:[0,1] op_sel_hi:[1,1]" % (vr(DQ, 2), vr(DQ, 2), vr(ST, 2)))
            a.I("v_pk_mul_f32 %s, %s, %s op_sel:[0,1] op_sel_hi:[1,1]" % (vr(DQ + 2, 2), vr(DQ + 2, 2), vr(ST, 2)))
        else:
            st_load = "buffer_load_dwordx2 %s, %s, %s, s61 offen sc1" % (vr(ST, 2), vSTG, SRD_WS)
            loads = [(st_load, ["v%d" % ST, "v%d" % (ST + 1)])] + gather_loads("s60")
            self.poll2(loads, t1, t2, sParQ, on_first=["ds_write_b32 v13, v0 offset:%d" % ARM])
            self.ts_layer(10)
            a.I("v_mfma_f32_16x16x32_bf16 %s, %s, %s, 0" % (vr(DQ, 4), vr(SEL, 4), vr(G0, 4)))
            a.I("v_mfma_f32_16x16x32_bf16 %s, %s, %s, %s" % (vr(DQ, 4), vr(SEL, 4), vr(G0 + 4, 4), vr(DQ, 4)))
            if o["fake"] & 16:
                a.I("s_branch L_co_fk")
            for rot in (4, 2, 1):
                a.I("v_add_f32_dpp v%d, v%d, v%d row_ror:%d row_mask:0xf bank_mask:0xf" % (ST, ST, ST, rot))
                a.I("v_add_f32_dpp v%d, v%d, v%d row_ror:%d row_mask:0xf bank_mask:0xf" % (ST + 1, ST + 1, ST + 1, rot))
            a.I("v_mul_f32 v%d, 0x%x, v%d" % (ST, f32bits(1.0 / 512), ST))
            a.I("v_mul_f32 v%d, 0x%x, v%d" % (ST + 1, f32bits(1.0 / 512), ST + 1))
            a.I("v_fma_f32 v%d, -v%d, v%d, v%d" % (ST + 1, ST, ST, ST + 1))
            a.I("v_max_f32 v%d, 0, v%d" % (ST + 1, ST + 1))
            a.I("v_add_f32 v%d, 0x%x, v%d" % (ST + 1, f32bits(1e-5), ST + 1))
            a.I("v_rsq_f32 v%d, v%d" % (ST + 1, ST + 1))
            a.I("v_pk_fma_f32 %s, %s, %s, %s op_sel_hi:[1,0,1] neg_lo:[0,1,0] neg_hi:[0,1,0]" % (vr(DQ, 2), vr(CS, 2), vr(ST, 2), vr(DQ, 2)))
            a.I("v_pk_fma_f32 %s, %s, %s, %s op_sel_hi:[1,0,1] neg_lo:[0,1,0] neg_hi:[0,1,0]" % (vr(DQ + 2, 2), vr(CS + 2, 2), vr(ST, 2), vr(DQ + 2, 2)))
            a.I("v_mul_f32 v%d, 0x%x, v%d" % (ST + 1, self.QSC, ST + 1))
            a.I("v_pk_mul_f32 %s, %s, %s op_sel:[0,1] op_sel_hi:[1,1]" % (vr(DQ, 2), vr(DQ, 2), vr(ST, 2)))
            a.I("v_pk_mul_f32 %s, %s, %s op_sel:[0,1] op_sel_hi:[1,1]" % (vr(DQ + 2, 2), vr(DQ + 2, 2), vr(ST, 2)))
            if o["fake"] & 16:
                a.label("L_co_fk")
                a.I("s_nop 7")
        a.I("v_cvt_pk_bf16_f32 v%d, v%d, v%d" % (DQ, DQ, DQ + 1))
        a.I("v_cvt_pk_bf16_f32 v%d, v%d, v%d" % (DQ + 1, DQ + 2, DQ + 3))
        a.I("ds_write_b64 v%d, %s offset:%d" % (ID + 2, vr(DQ, 2), QL))
        self.flag_set("v14", FAQ, "v0")

    def hs_clears(self, wait=False):
        a, o = self.a, self.o
        for k in range(4):
            a.I("v_mov_b32 v%d, -1" % (16 + k))
        a.I("s_lshl_b32 s57, %s, 5" % sG)
        a.I("s_add_u32 s67, s57, %s" % sI)
        a.I("s_lshl_b32 s67, s67, 10")
        a.I("v_lshrrev_b32 v20, 3, v1")
        a.I("v_lshlrev_b32 v20, 12, v20")
        a.I("v_and_b32 v21, 7, v1")
        a.I("v_lshl_add_u32 v20, v21, 4, v20")
        a.I("s_and_b32 s59, %s, 3" % sU)
        a.I("s_lshr_b32 s60, %s, 2" % sU)
        self.sacc("s66", [("s59", 15), (sG, 9), ("s60", 7), (sCls, 18)], XBUF)
        if wait:
            a.I("s_waitcnt lgkmcnt(0)")
            self.srd(SRD_WS, "ws", WS_BYTES)
        for base in (OBUF, SBUF, QBUF, QBUF + 0x40000)[:3 if o["q1b"] else 4]:
            if base:
                a.I("s_add_u32 s59, s67, 0x%x" % base)
            a.I("buffer_store_dwordx4 v[16:19], v4, %s, %s offen%s" % (SRD_WS, "s59" if base else "s67", "" if o["fast"] else " sc1"))
        a.I("buffer_store_dwordx4 v[16:19], v20, %s, s66 offen sc1" % SRD_WS)
        a.I("s_add_u32 s66, s66, 0x20000")
        a.I("buffer_store_dwordx4 v[16:19], v20, %s, s66 offen sc1" % SRD_WS)

    def handshake(self):
        a, o = self.a, self.o
        EP = 68
        a.label("L_HS")
        self.load_epoch()
        if o["tb"] or o["tbw"]:
            a.I("s_memrealtime s[60:61]")
        def group_clears(fl):
            for base in (OBUF, SBUF, QBUF, QBUF + 0x40000)[:3 if o["q1b"] else 4]:
                a.I("s_add_u32 s58, s67, 0x%x" % base)
                a.I("buffer_store_dwordx4 v[16:19], v4, %s, s58 offen%s" % (SRD_WS, fl))

        if not o["ehs"]:
            self.hs_clears()
        a.I("s_getreg_b32 s72, hwreg(HW_REG_XCC_ID)")
        a.I("s_and_b32 s72, s72, 15")
        a.I("v_mov_b32 v%d, s72" % (EP + 2))
        a.I("v_mov_b32 v%d, 0" % (EP + 3))
        a.I("s_lshr_b32 s71, s67, 3")
        a.I("s_lshl_b32 s58, %s, 5" % sG)
        a.I("v_and_b32 v24, 31, v1")
        a.I("v_add_u32 v26, s58, v24")
        a.I("v_lshlrev_b32 v26, 7, v26")
        a.I("v_add_u32 v24, 0x%x, v26" % PFLAGS)
        a.I("v_add_u32 v27, 0x%x, v26" % FLAGS)
        a.I("v_cmp_gt_u32 vcc, 32, v1")
        a.I("v_cndmask_b32 v24, v27, v24, vcc")
        a.I("s_waitcnt lgkmcnt(0)")
        a.I("s_add_u32 s56, s74, 1")
        a.I("s_addc_u32 s57, s75, 0")
        a.I("v_mov_b32 v%d, s56" % EP)
        a.I("v_mov_b32 v%d, s57" % (EP + 1))
        if o["tb"] or o["tbw"]:
            a.I("v_mov_b32 v%d, s60" % (EP + 3))
        a.I("s_waitcnt vmcnt(2)")
        self.ts(10)
        a.I("s_mov_b64 exec, 1")
        a.I("s_add_u32 s58, s71, 0x%x" % PFLAGS)
        a.I("buffer_store_dwordx4 %s, v13, %s, s58 offen" % (vr(EP, 4), SRD_WS))
        a.I("s_waitcnt vmcnt(1)")
        a.I("s_add_u32 s58, s71, 0x%x" % FLAGS)
        a.I("buffer_store_dwordx4 %s, v13, %s, s58 offen sc1" % (vr(EP, 4), SRD_WS))
        a.I("s_mov_b64 exec, -1")
        if o["xw"]:
            fl = ["", " sc1", "", " sc0 sc1"][o["xw"]]
            a.I("buffer_load_dwordx4 v[32:35], v20, %s, s66 offen%s" % (SRD_WS, fl))
            a.I("s_sub_u32 s66, s66, 0x20000")
            a.I("buffer_load_dwordx4 v[32:35], v20, %s, s66 offen%s" % (SRD_WS, fl))
        a.I("v_mov_b32 v29, 0")
        a.I("v_xor_b32 v28, -1, v%d" % EP)
        if o["hsd"]:
            a.I("s_sleep %d" % o["hsd"])
        a.label("L_pc_fp")
        a.I("s_and_b32 s56, %s, 7" % sBud)
        a.I("s_cmp_eq_u32 s56, 1")
        a.I("s_cselect_b32 exec_hi, -1, 0")
        a.I("buffer_load_dwordx4 v[28:31], v24, %s, 0 offen sc1" % SRD_WS)
        a.I("s_mov_b64 exec, -1")
        a.I("s_waitcnt vmcnt(0)")
        a.I("v_xor_b32 v20, v28, v%d" % EP)
        a.I("v_bitop3_b32 v20, v20, v29, v%d bitop3:0xf6" % (EP + 1))
        a.I("v_cmp_eq_u32 vcc, 0, v20")
        a.I("v_cmp_eq_u32 s[56:57], s72, v30")
        a.I("s_and_b32 s58, vcc_lo, s56")
        a.I("s_cmp_eq_u32 s58, -1")
        a.I("s_cselect_b32 s58, %d, 0" % (3 if o["fast"] else 0))
        a.I("s_cmp_lg_u32 s58, 0")
        a.I("s_cbranch_scc1 L_pc_go")
        if o["fast"]:
            a.I("s_andn2_b32 s58, vcc_hi, s57")
            a.I("s_cbranch_scc1 L_pc_safe")
            a.I("s_sleep 1")
            self.bail("L_pc_fp")
        a.label("L_pc_safe")
        group_clears(" sc1")
        a.I("s_waitcnt vmcnt(0)")
        a.I("s_mov_b64 exec, 1")
        a.I("s_add_u32 s58, s71, 0x%x" % FLAGS2)
        a.I("buffer_store_dwordx4 %s, v13, %s, s58 offen sc1" % (vr(EP, 4), SRD_WS))
        a.I("s_mov_b64 exec, -1")
        a.I("v_add_u32 v24, 0x%x, v26" % FLAGS2)
        a.label("L_pc_fp2")
        a.I("buffer_load_dwordx4 v[28:31], v24, %s, 0 offen sc1" % SRD_WS)
        a.I("s_waitcnt vmcnt(0)")
        a.I("v_xor_b32 v20, v28, v%d" % EP)
        a.I("v_bitop3_b32 v20, v20, v29, v%d bitop3:0xf6" % (EP + 1))
        a.I("v_cmp_eq_u32 vcc, 0, v20")
        a.I("s_mov_b32 s58, 1")
        a.I("s_cmp_eq_u32 vcc_lo, -1")
        a.I("s_cbranch_scc1 L_pc_go")
        a.I("s_sleep 1")
        self.bail("L_pc_fp2")
        a.label("L_pc_go")
        a.I("v_mov_b32 v20, s58")
        a.I("ds_write_b32 v13, v20 offset:%d" % GO)
        self.ts(11)
        a.I("s_cmp_lg_u32 %s, 0" % sCls)
        a.I("s_cbranch_scc1 %s" % ("L_hs_k" if o["tb"] else "L_roles"))
        a.I("s_and_b32 s58, %s, 6" % sU)
        a.I("v_and_b32 v24, 31, v1")
        a.I("v_lshl_add_u32 v25, v24, 3, s58")
        a.I("v_lshrrev_b32 v27, 5, v1")
        a.I("v_add_u32 v25, v25, v27")
        a.I("v_lshlrev_b32 v25, 7, v25")
        a.I("v_add_u32 v25, 0x%x, v25" % FLAGS)
        a.I("s_add_u32 s58, s71, 0x%x" % (FLAGS + 128))
        if o["gg"]:
            self.exchange(FQP, 28, [], sval="1", sleep=4)
        a.label("L_hs_fp3")
        a.I("buffer_load_dwordx2 v[28:29], v25, %s, 0 offen sc1" % SRD_WS)
        a.I("buffer_load_dwordx2 v[30:31], v13, %s, s58 offen sc1" % SRD_WS)
        a.I("s_waitcnt vmcnt(0)")
        a.I("v_bitop3_b32 v20, v28, v30, v%d bitop3:0x7e" % EP)
        a.I("v_bitop3_b32 v21, v29, v31, v%d bitop3:0x7e" % (EP + 1))
        a.I("v_or_b32 v20, v20, v21")
        a.I("v_cmp_ne_u32 vcc, 0, v20")
        a.I("s_cbranch_vccz L_hs_fd")
        a.I("s_sleep 4")
        self.bail("L_hs_fp3")
        a.label("L_hs_fd")
        a.I("v_mov_b32 v20, 1")
        a.I("ds_write_b32 v13, v20 offset:%d" % GOX)
        a.I("s_branch L_roles")
        if o["tb"]:
            a.label("L_hs_k")
            self.lds_wait_ge("v13", FHINT, "1", "v20", sleep=4)
            a.I("v_and_b32 v24, 7, v1")
            a.I("v_lshlrev_b32 v24, 12, v24")
            self.sacc("s58", [(sI, 7)], FLAGS)
            a.I("buffer_load_dwordx4 v[28:31], v24, %s, s58 offen sc1" % SRD_WS)
            a.I("s_waitcnt vmcnt(0)")
            a.I("v_xor_b32 v20, v28, v%d" % EP)
            a.I("v_bitop3_b32 v20, v20, v29, v%d bitop3:0xf6" % (EP + 1))
            a.I("v_subrev_u32 v21, s60, v31")
            a.I("v_cmp_eq_u32 vcc, 0, v20")
            a.I("v_cndmask_b32 v21, 0, v21, vcc")
            a.I("v_max_i32 v21, 0, v21")
            a.I("v_min_i32 v21, 200, v21")
            for m in ("quad_perm:[1,0,3,2]", "quad_perm:[2,3,0,1]", "row_ror:4"):
                a.I("v_max_i32_dpp v21, v21, v21 %s row_mask:0xf bank_mask:0xf" % m)
            a.I("v_add_u32 v21, s60, v21")
            a.I("v_or_b32 v21, 1, v21")
            a.I("ds_write_b32 v13, v21 offset:%d" % TBL)
            a.I("s_branch L_roles")

    def pq(self):
        a, o = self.a, self.o
        vWQ, vQP, vST, vXW, vXR, vXI, vCSP, vTM, vS1, vQ1, vXS = (
            "v6", "v7", "v8", "v9", "v10", "v11", "v12", "v15", "v5", "v16", "v17")
        WC, G0, XO_, FL, D0, DS, X0, SEL, DX, TG = 20, 52, 84, 92, 96, 112, 116, 120, 84, 124
        XR, XU = D0, D0 + 4
        sRB, sHP, sWQ, sQP, sCS, sST, sXG, sXI = "s64", "s65", "s66", "s67", "s68", "s69", "s70", "s72"
        a.label("L_PQ")

        def srds():
            a.I("s_cmp_lg_u32 %s, 0" % sRole)
            self.srd_sel(SRD_M0, "A_wq", "B_wq", 4 << 20)
            if o["fake"] & 1:
                a.I("s_cselect_b32 s10, 0, s10")
            self.srd(SRD_X, "A_x", 4096)
            if o["fh"]:
                return
            a.I("s_cbranch_scc0 L_pq_n0")
            a.I("s_setprio 3")
            a.I("s_lshl_b32 s58, %s, 10" % sW)
            a.I("buffer_load_dwordx4 %s, v4, %s, s58 offen" % (vr(XR, 4), SRD_X))
            a.label("L_pq_n0")

        if not o["epq"]:
            srds()
        a.I("s_and_b32 %s, %s, 7" % (sRB, sU))
        a.I("s_lshr_b32 %s, %s, 3" % (sHP, sU))
        a.I("s_lshr_b32 s58, %s, 1" % sRB)
        a.I("s_and_b32 s59, %s, 1" % sRB)
        self.sacc(sWQ, [("s58", 20), ("s59", 15), (sG, 10), (sHP, 9), (sW, 7)], 0)
        self.sacc(sXI, [("s58", 8), ("s59", 3), (sW, 1)], 0)
        a.I("v_lshlrev_b32 v20, 3, v2")
        a.I("v_and_b32 v22, 1, v3")
        a.I("v_lshl_add_u32 v21, v22, 19, v20")
        a.I("v_lshrrev_b32 v23, 1, v3")
        a.I("v_lshl_add_u32 %s, v23, 13, v21" % vWQ)
        if o["epq"]:
            a.I("s_waitcnt lgkmcnt(0)")
            if not o["epb"] and not o["fh"]:
                a.I("s_barrier")
            srds()
            self.srd(SRD_WS, "ws", WS_BYTES)

        def load_wq(bar=-1):
            a.I("s_mov_b32 s59, %s" % sWQ)
            for e in range(8):
                if e == bar:
                    a.I("s_barrier")
                for ks in range(2):
                    a.I("buffer_load_dwordx2 %s, %s, %s, s59 offen nt" % (vr(G0 + 16 * ks + 2 * e, 2), vWQ, SRD_M0))
                    if (e, ks) != (7, 1):
                        a.I("s_add_u32 s59, s59, %d" % (16384 if ks == 0 else 65536 - 16384))

        def transpose_wq():
            for ks in range(2):
                self.transpose(G0 + 16 * ks, WC + 16 * ks, 2)

        if not o["fh"]:
            a.I("s_cmp_lg_u32 %s, 0" % sRole)
        if o["fh"]:
            pass
        elif o["epb"]:
            a.I("s_cbranch_scc1 %s" % self.stub(["s_barrier", "s_branch L_pq_nw"]))
            self.ts(11)
            load_wq(o["epb"])
        else:
            a.I("s_cbranch_scc1 L_pq_nw")
            self.ts(11)
            load_wq()
        a.label("L_pq_nw")
        self.load_epoch()
        a.I("v_bfe_u32 v21, v2, 1, 2")
        a.I("v_and_b32 v23, 1, v2")
        a.I("v_lshlrev_b32 v23, 1, v23")
        a.I("v_add_u32 v23, v23, v22")
        a.I("v_lshlrev_b32 v24, 10, v21")
        a.I("v_lshl_add_u32 %s, v23, 6, v24" % vXI)
        if not o["fh"]:
            a.I("s_cmp_eq_u32 %s, 0" % sRole)
            a.I("s_cbranch_scc1 L_pq_nx")
            for rr in range(4):
                a.I("buffer_load_ushort v%d, %s, %s, %s offen offset:%d" % (X0 + rr, vXI, SRD_X, sXI, 16 * rr))
            a.label("L_pq_nx")
        elif o["fh"] == 1:
            a.I("s_cmp_lg_u32 %s, 0" % sRole)
            a.I("s_cbranch_scc1 L_pq_nx")
            a.I("s_barrier")
            a.label("L_pq_nx")
        self.ts(1)
        a.I("v_lshlrev_b32 %s, 3, v21" % vS1)
        a.I("v_lshlrev_b32 v24, 7, v21")
        a.I("v_lshl_add_u32 v24, v23, 3, v24")
        a.I("s_lshl_b32 s58, %s, 5" % sW)
        a.I("v_add_u32 %s, s58, v24" % vXW)
        a.I("s_lshl_b32 s58, %s, 10" % sW)
        a.I("v_add_u32 %s, s58, v4" % vXS)
        a.I("v_mov_b32 v25, 0x%x" % OOB)
        a.I("v_lshl_add_u32 %s, v3, 13, v20" % vQP)
        a.I("v_cmp_gt_u32 vcc, 16, v1")
        a.I("v_cndmask_b32 %s, v25, v20, vcc" % vCSP)
        a.I("v_and_b32 v24, 1, v2")
        a.I("v_xor_b32 %s, 1, v24" % vTM)
        a.I("v_lshlrev_b32 v24, 11, v24")
        a.I("v_lshl_add_u32 v24, v3, 14, v24")
        a.I("v_lshrrev_b32 v26, 1, v2")
        a.I("v_lshl_add_u32 %s, v26, 4, v24" % vQ1)
        a.I("v_lshlrev_b32 v24, 3, v3")
        a.I("v_lshlrev_b32 v26, 2, v3")
        a.I("v_add_u32 v27, 4, v24")
        a.I("v_cmp_eq_u32 vcc, v26, v2")
        a.I("v_cndmask_b32 %s, v25, v27, vcc" % vST)
        a.I("v_cmp_eq_u32 vcc, 1, v2")
        a.I("v_cndmask_b32 %s, %s, v24, vcc" % (vST, vST))
        a.I("s_or_b32 s63, %s, %s" % (sW, sHP))
        a.I("s_cmp_eq_u32 s63, 0")
        a.I("s_cselect_b32 s63, 0, 0x%x" % OOB)
        a.I("v_or_b32 %s, s63, %s" % (vST, vST))
        if o["m2"]:
            a.I("v_lshlrev_b32 v24, 10, v21")
            a.I("v_lshl_add_u32 v24, v23, 3, v24")
            a.I("v_and_b32 v26, 0x28, v1")
            a.I("v_cmp_eq_u32 s[56:57], 0, v26")
            a.I("v_cndmask_b32 %s, v25, v24, s[56:57]" % vST)
        a.I("v_lshrrev_b32 v24, 2, v2")
        if not (o["pad"] and o["m2"]):
            a.I("v_mov_b32 v26, 4")
            a.I("v_cndmask_b32 v24, v24, v26, vcc")
        a.I("v_lshlrev_b32 v24, 7, v24")
        a.I("v_lshl_add_u32 %s, v3, 4, v24" % vXR)
        self.selector(SEL, 0x3f80, "v24", "v26")
        a.I("v_mov_b32 v0, 1")
        a.I("s_lshr_b32 s58, %s, 1" % sW)
        a.I("s_and_b32 s59, %s, 1" % sW)
        self.sacc("s71", [(sG, 15), (sHP, 12), ("s58", 11), (sRB, 8), ("s59", 7)], 0)
        self.sacc(sQP, [("s71", 0)] + ([] if o["q1b"] else [(sRole, 18)]), QBUF)
        self.sacc(sCS, [("s71", 0), (sRole, 13)], CSBUF)
        if o["m2"]:
            self.sacc(sST, [(sG, 15), (sHP, 12), (sRB, 7), (sW, 5)], STBUF)
        else:
            self.sacc(sST, [(sG, 15), (sRole, 10), (sRB, 7)], STBUF)
        self.sacc("s71", [(sG, 16), (sHP, 13), ("s58", 12), (sRB, 8), ("s59", 7)], Q1BUF)
        a.I("s_xor_b32 s58, %s, 1" % sRole)
        self.sacc(sXG, [("s58", 17), (sRB, 14), (sW, 12)], XBUF)
        if o["fake"] & 4:
            a.I("s_lshl_b32 s58, %s, 30" % sHP)
            a.I("s_add_u32 %s, %s, s58" % (sXG, sXG))
        a.I("s_mov_b32 %s, 0" % sPar)
        a.I("s_waitcnt lgkmcnt(0)")
        self.epoch_tags()
        a.I("s_cmp_lg_u32 %s, 0" % sRole)
        a.I("s_cbranch_scc1 L_pq_b0")
        self.srd(SRD_X, "out", 4096)
        if o["fh"] == 2:
            a.I("s_barrier")
        a.I("s_waitcnt vmcnt(0)")
        self.ts(2)
        if o["diag"] == 2:
            a.I("s_memrealtime s[78:79]")
        transpose_wq()
        a.I("s_branch L_pq_mm")

        def cs_compute():
            for k in range(4):
                a.I("v_mov_b32 v%d, 0x3f803f80" % (DS + k))
            for ks in range(2):
                for j in range(4):
                    a.I("v_mfma_f32_16x16x32_bf16 %s, %s, %s, %s" % (vr(D0 + 4 * j, 4), vr(DS, 4), vr(WC + 16 * ks + 4 * j, 4), "0" if ks == 0 else vr(D0 + 4 * j, 4)))
            a.I("v_cvt_pk_bf16_f32 v2, v%d, v%d" % (D0, D0 + 4))
            a.I("v_cvt_pk_bf16_f32 v3, v%d, v%d" % (D0 + 8, D0 + 12))
            a.I("v_bfi_b32 v2, %s, 0, v2" % vTM)

        a.label("L_pq_b0")
        a.I("s_waitcnt vmcnt(0)")
        for k in range(4):
            a.I("v_lshlrev_b32 v%d, 16, v%d" % (XU + 2 * k, XR + k))
            a.I("v_and_b32 v%d, 0xffff0000, v%d" % (XU + 2 * k + 1, XR + k))
        a.I("v_pk_add_f32 %s, %s, %s" % (vr(XR, 2), vr(XU, 2), vr(XU + 2, 2)))
        a.I("v_pk_add_f32 %s, %s, %s" % (vr(XR + 2, 2), vr(XU + 4, 2), vr(XU + 6, 2)))
        a.I("v_pk_add_f32 %s, %s, %s" % (vr(XR, 2), vr(XR, 2), vr(XR + 2, 2)))
        a.I("v_add_f32 v%d, v%d, v%d" % (XR, XR, XR + 1))

        def wave_sum(r):
            for rot in (8, 4, 2, 1):
                a.I("v_add_f32_dpp v%d, v%d, v%d row_ror:%d row_mask:0xf bank_mask:0xf" % (r, r, r, rot))
            a.I("v_mov_b32 v1, v%d" % r)
            a.I("v_permlane32_swap_b32 v%d, v1" % r)
            a.I("v_add_f32 v%d, v%d, v1" % (r, r))
            a.I("v_mov_b32 v1, v%d" % r)
            a.I("v_permlane16_swap_b32 v%d, v1" % r)
            a.I("v_add_f32 v%d, v%d, v1" % (r, r))

        wave_sum(XR)
        a.I("v_mul_f32 v%d, 0x%x, v%d" % (XR, f32bits(1.0 / 512), XR))
        for k in range(4):
            a.I("v_pk_add_f32 %s, %s, %s op_sel_hi:[1,0] neg_lo:[0,1] neg_hi:[0,1]" % (vr(XU + 2 * k, 2), vr(XU + 2 * k, 2), vr(XR, 2)))
        a.I("v_pk_mul_f32 %s, %s, %s" % (vr(XR + 2, 2), vr(XU, 2), vr(XU, 2)))
        for k in range(1, 4):
            a.I("v_pk_fma_f32 %s, %s, %s, %s" % (vr(XR + 2, 2), vr(XU + 2 * k, 2), vr(XU + 2 * k, 2), vr(XR + 2, 2)))
        a.I("v_add_f32 v%d, v%d, v%d" % (XR + 1, XR + 2, XR + 3))
        wave_sum(XR + 1)
        a.I("v_mul_f32 v%d, 0x%x, v%d" % (XR + 1, f32bits(1.0 / 512), XR + 1))
        a.I("v_add_f32 v%d, 0x%x, v%d" % (XR + 1, f32bits(1e-5), XR + 1))
        a.I("v_rsq_f32 v%d, v%d" % (XR + 1, XR + 1))
        a.I("v_lshlrev_b32 v1, 1, v14")
        if o["fh"] and o["fhb"]:
            a.I("s_barrier")
        a.I("ds_write_b64 v1, %s offset:%d" % (vr(XR, 2), ST1))
        self.flag_set("v14", FST, "v0")
        for rr in range(4):
            a.I("v_lshlrev_b32 v%d, 16, v%d" % (X0 + rr, X0 + rr))
        self.exchange(FST, FL, ["ds_read_b64 %s, %s offset:%d" % (vr(XR, 2), vS1, ST1)])
        for k in range(2):
            a.I("v_pk_add_f32 %s, %s, %s op_sel_hi:[1,0] neg_lo:[0,1] neg_hi:[0,1]" % (vr(XU + 2 * k, 2), vr(X0 + 2 * k, 2), vr(XR, 2)))
            a.I("v_pk_mul_f32 %s, %s, %s op_sel:[0,1] op_sel_hi:[1,1]" % (vr(XU + 2 * k, 2), vr(XU + 2 * k, 2), vr(XR, 2)))
        a.I("v_cvt_pk_bf16_f32 v%d, v%d, v%d" % (DS, XU, XU + 1))
        a.I("v_cvt_pk_bf16_f32 v%d, v%d, v%d" % (DS + 1, XU + 2, XU + 3))
        a.I("ds_write_b64 %s, %s offset:%d" % (vXW, vr(DS, 2), XL))
        a.I("ds_write_b128 %s, %s offset:%d" % (vXS, vr(X0, 4), XS))
        self.flag_set("v14", FQX, "v0")
        a.I("s_setprio 0")
        self.lds_wait_ge("v13", WGO, "1", "v1", sleep=2)
        a.I("s_sleep %d" % o["dwq"])
        load_wq()
        a.I("s_waitcnt vmcnt(0)")
        self.ts(2)
        transpose_wq()
        a.I("s_mov_b32 %s, 0" % sL)
        a.I("s_branch L_pq_cs")

        a.label("L_pq_loop")
        self.prio(0)
        a.I("v_mov_b32 v0, %s" % sL)
        a.I("s_sub_u32 s58, %s, 1" % sL)
        a.I("s_lshr_b32 %s, %s, 2" % (sPar, sL))
        self.lds_wait_ge("v14", FOP, "s58", "v1", sleep=o["gsleep"])
        self.prio(3)
        a.I("ds_read_b128 %s, %s offset:%d" % (vr(X0, 4), vXS, XS))
        dxs = [o["dx2"], o["dx3"], o["dx4"], o["dx5"]]
        if len(set(dxs)) == 1:
            a.I("s_sleep %d" % dxs[0])
        else:
            m = min(dxs)
            for L, d in zip((2, 3, 4, 5), dxs):
                if d > m:
                    ld2 = a.newlabel("LD")
                    a.I("s_cmp_lg_u32 %s, %d" % (sL, L))
                    a.I("s_cbranch_scc1 %s" % ld2)
                    a.I("s_sleep %d" % (d - m))
                    a.label(ld2)
            a.I("s_sleep %d" % m)
        loads = [("buffer_load_dwordx4 %s, v4, %s, %s offen offset:%d %s" % (vr(G0 + 4 * r, 4), SRD_WS, sXG, r * 1024, ["sc1", "sc0 sc1", "sc1 nt", "sc0 sc1 nt"][o["xl"]]), ["v%d" % (G0 + 4 * r)]) for r in range(4)]
        if o["spq"]:
            HX = DS
            a.I("s_waitcnt lgkmcnt(0)")
            a.I("v_pk_mul_f32 %s, %s, 0.5 op_sel_hi:[1,0]" % (vr(HX, 2), vr(X0, 2)))
            a.I("v_pk_mul_f32 %s, %s, 0.5 op_sel_hi:[1,0]" % (vr(HX + 2, 2), vr(X0 + 2, 2)))
            l0 = a.newlabel("LP")
            a.label(l0)
            for ld, _ in loads:
                a.I(ld)
            a.I("s_mov_b64 exec, -1")
            for r in range(4):
                a.I("s_waitcnt vmcnt(%d)" % (3 - r))
                a.I("v_mfma_f32_16x16x32_bf16 %s, %s, %s, %s" % (vr(DX, 4), vr(SEL, 4), vr(G0 + 4 * r, 4), vr(HX, 4) if r == 0 else vr(DX, 4)))
            self.tagtree([t for _, tg in loads for t in tg], "v1", "v2", "0")
            a.I("v_cmp_ne_u32 vcc, 0, v1")
            a.I("s_cbranch_vccnz %s" % self.retry_stub(l0, o["xrs"], pre=["s_mov_b64 exec, vcc", "s_nop 4"]))
            self.ts_layer(8)
            if o["diag"] == 3:
                a.I("s_cmp_lg_u32 %s, 3" % sL)
                a.I("s_cbranch_scc1 L_dg3")
                a.I("s_memrealtime s[78:79]")
                a.label("L_dg3")
            a.I("s_add_u32 %s, %s, 0x40000" % (sXG, sXG))
            for k in range(4):
                a.I("v_add_f32_dpp v%d, v%d, v%d row_ror:8 row_mask:0xf bank_mask:0xf" % (X0 + k, DX + k, DX + k))
        else:
            self.poll(loads, "v1", "v2", "0")
            self.ts_layer(8)
            if o["diag"] == 3:
                a.I("s_cmp_lg_u32 %s, 3" % sL)
                a.I("s_cbranch_scc1 L_dg3")
                a.I("s_memrealtime s[78:79]")
                a.label("L_dg3")
            for r in range(4):
                a.I("v_mfma_f32_16x16x32_bf16 %s, %s, %s, %s" % (vr(DX, 4), vr(SEL, 4), vr(G0 + 4 * r, 4), "0" if r == 0 else vr(DX, 4)))
            a.I("s_add_u32 %s, %s, 0x40000" % (sXG, sXG))
            a.I("s_waitcnt lgkmcnt(0)")
            for k in range(4):
                a.I("v_add_f32_dpp v%d, v%d, v%d row_ror:8 row_mask:0xf bank_mask:0xf" % (DX + 4 + k, DX + k, DX + k))
            a.I("v_pk_add_f32 %s, %s, %s" % (vr(X0, 2), vr(X0, 2), vr(DX + 4, 2)))
            a.I("v_pk_add_f32 %s, %s, %s" % (vr(X0 + 2, 2), vr(X0 + 2, 2), vr(DX + 6, 2)))
        a.I("v_cvt_pk_bf16_f32 v%d, v%d, v%d" % (DS, X0, X0 + 1))
        a.I("v_cvt_pk_bf16_f32 v%d, v%d, v%d" % (DS + 1, X0 + 2, X0 + 3))
        a.I("s_cmp_eq_u32 %s, 5" % sL)
        a.I("s_cbranch_scc1 L_pq_final")
        a.I("ds_write_b64 %s, %s offset:%d" % (vXW, vr(DS, 2), XL))
        self.flag_set("v14", FQX, "v0")
        a.label("L_pq_mm")
        def st_shadow():
            ls = a.newlabel("LNS")
            a.I("s_cmp_eq_u32 %s, 1" % sL)
            a.I("s_cbranch_scc1 %s" % ls)
            self.mode_test()
            a.I("v_pk_add_f32 %s, %s, %s" % (vr(TG, 2), vr(X0, 2), vr(X0 + 2, 2)))
            a.I("v_pk_mul_f32 %s, %s, %s" % (vr(TG + 2, 2), vr(X0, 2), vr(X0, 2)))
            a.I("v_pk_fma_f32 %s, %s, %s, %s" % (vr(TG + 2, 2), vr(X0 + 2, 2), vr(X0 + 2, 2), vr(TG + 2, 2)))
            a.I("v_add_f32 v%d, v%d, v%d" % (DS + 2, TG, TG + 1))
            a.I("v_add_f32 v%d, v%d, v%d" % (DS + 3, TG + 2, TG + 3))
            a.I("v_bfi_b32 v%d, 1, %s, v%d" % (DS + 3, sL, DS + 3))
            self.moded_stores(["buffer_store_dwordx2 %s, %s, %s, %s offen" % (vr(DS + 2, 2), vST, SRD_WS, sST)], tested=True)
            a.label(ls)

        self.exchange(FQX, FL, ["ds_read_b128 %s, %s offset:%d" % (vr(XO_ + 4 * ks, 4), vXR, XL + 64 * ks) for ks in range(2)],
                      optimistic=2 if o["fs"] & 1 else True, shadow=st_shadow if o["m2"] else None)
        for ks in range(0 if (o["fake"] & 32 or o["m2"]) else 2):
            a.I("v_mfma_f32_16x16x32_bf16 %s, %s, %s, %s" % (vr(DS, 4), vr(XO_ + 4 * ks, 4), vr(XO_ + 4 * ks, 4), "0" if ks == 0 else vr(DS, 4)))
        for jp in range(2):
            for ks in range(2):
                for j in (2 * jp, 2 * jp + 1):
                    a.I("v_mfma_f32_16x16x32_bf16 %s, %s, %s, %s" % (vr(D0 + 4 * j, 4), vr(XO_ + 4 * ks, 4), vr(WC + 16 * ks + 4 * j, 4), "0" if ks == 0 else vr(D0 + 4 * j, 4)))
        a.I("s_cmp_eq_u32 %s, 1" % sL)
        a.I("s_cbranch_scc1 L_pq_pub1")
        hsave = [dict(x) for x in a.hist]
        self.mode_test()
        if not o["m2"]:
            a.I("v_bfi_b32 v%d, 1, %s, v%d" % (DS, sPar, DS))
        a.I("v_cvt_pk_bf16_f32 v2, v%d, v%d" % (D0, D0 + 4))
        a.I("v_bfi_b32 v2, %s, %s, v2" % (vTM, sL if o["q1b"] else sPar))
        a.I("v_cvt_pk_bf16_f32 v3, v%d, v%d" % (D0 + 8, D0 + 12))
        self.moded_stores([
            "buffer_store_dwordx2 v[2:3], %s, %s, %s offen" % (vQP, SRD_WS, sQP),
            "buffer_store_dword v%d, %s, %s, %s offen" % (DS, vST, SRD_WS, sST),
        ][:1 if o["m2"] else 2], tested=True)
        if o["wob"] == 4:
            if o["fapw"] & 2:
                a.I("s_waitcnt vmcnt(0)")
            self.flag_set("v14", FQP, "v0")
        a.I("ds_write_b128 %s, %s offset:%d" % (vXS, vr(X0, 4), XS))
        self.ts_layer(9)
        self.ts_save()
        a.I("s_branch L_pq_next")
        a.label("L_pq_pub1")
        a.hist = hsave
        a.I("v_cvt_pk_bf16_f32 v2, v%d, v%d" % (D0, D0 + 4))
        a.I("v_cvt_pk_bf16_f32 v3, v%d, v%d" % (D0 + 8, D0 + 12))
        a.I("s_mov_b32 s56, 0xffff0000")
        for k in range(4):
            a.I("v_mov_b32 v%d, s%d" % (TG + k, 60 + k))
        a.I("v_lshl_or_b32 v%d, v2, 16, v%d" % (TG, TG))
        a.I("v_and_or_b32 v%d, v2, s56, v%d" % (TG + 1, TG + 1))
        a.I("v_lshl_or_b32 v%d, v3, 16, v%d" % (TG + 2, TG + 2))
        a.I("v_and_or_b32 v%d, v3, s56, v%d" % (TG + 3, TG + 3))
        a.I("buffer_store_dwordx4 %s, %s, %s, s71 offen%s" % (vr(TG, 4), vQ1, SRD_WS, "" if o["fast"] else " sc1"))
        self.ts(3)
        if o["qgate"]:
            self.flag_set("v14", FQP, "v0")
        self.wait_go("v1")
        a.I("s_cmp_lg_u32 %s, 0" % sMode)
        a.I("s_cbranch_scc1 L_pq_cs")
        a.I("buffer_store_dwordx4 %s, %s, %s, s71 offen sc1" % (vr(TG, 4), vQ1, SRD_WS))
        a.label("L_pq_cs")
        cs_compute()
        self.wait_go("v1")
        self.moded_stores(["buffer_store_dwordx2 v[2:3], %s, %s, %s offen" % (vCSP, SRD_WS, sCS)])
        self.lds_wait_ge("v13", GOX, "1", "v1", sleep=1)
        a.label("L_pq_next")
        a.I("s_add_u32 %s, %s, 2" % (sL, sL))
        a.I("s_cmp_le_u32 %s, 4" % sL)
        a.settle()
        a.I("s_cbranch_scc1 L_pq_loop")
        a.I("s_or_b32 s56, %s, %s" % (sG, sHP))
        a.I("s_or_b32 s56, s56, %s" % sRole)
        a.I("s_cmp_eq_u32 s56, 0")
        a.I("s_cbranch_scc1 L_pq_loop")
        a.I("s_branch L_end")
        a.label("L_pq_final")
        a.I("buffer_store_short v%d, %s, %s, %s offen" % (DS, vXI, SRD_X, sXI))
        a.I("buffer_store_short_d16_hi v%d, %s, %s, %s offen offset:16" % (DS, vXI, SRD_X, sXI))
        a.I("buffer_store_short v%d, %s, %s, %s offen offset:32" % (DS + 1, vXI, SRD_X, sXI))
        a.I("buffer_store_short_d16_hi v%d, %s, %s, %s offen offset:48" % (DS + 1, vXI, SRD_X, sXI))
        if o["diag"]:
            a.I("s_memrealtime s[80:81]")
            a.I("s_waitcnt lgkmcnt(0)")
            if o["diag"] == 1:
                a.I("s_mov_b32 s78, s80")
            a.I("s_sub_u32 s78, s78, s76")
            a.I("s_min_u32 s78, s78, 10000")
            a.I("s_mul_i32 s78, s78, %d" % o["dmul"])
            if o["diag"] == 4:
                a.I("s_mov_b32 s78, %d" % o["dmul"])
            if o["diag"] == 5:
                a.I("s_memtime s[88:89]")
                a.I("s_waitcnt lgkmcnt(0)")
                a.I("s_sub_u32 s78, s88, s86")
                a.I("s_lshr_b32 s78, s78, 3")
                a.I("s_min_u32 s78, s78, 20000")
            a.label("L_dgs")
            a.I("s_sleep 2")
            a.I("s_memrealtime s[82:83]")
            a.I("s_waitcnt lgkmcnt(0)")
            a.I("s_sub_u32 s84, s82, s80")
            a.I("s_cmp_lt_u32 s84, s78")
            a.I("s_cbranch_scc1 L_dgs")
        a.I("s_branch L_end")

    def po(self):
        a, o = self.a, self.o
        vWO, vMLG, vXP, vO2W, vO2R, vTM, vWXW, vWXR, vFW, vF = "v6", "v7", "v8", "v9", "v10", "v11", "v12", "v15", "v5", "v126"
        WC, G0, ML, SM, A0, DO, D0, F = 16, 48, 80, 84, 88, 96, 100, 108
        AO, FL, GG = G0, G0 + 16, G0 + 20
        sHH, sCB, sWO, sOG, sMLG, sXP, sDupLo, sDupHi = "s64", "s65", "s66", "s68", "s69", "s70", "s71", "s72"
        a.label("L_PO")
        a.I("s_and_b32 %s, %s, 1" % (sPar, sRole))
        if o["pf"]:
            self.srd(SRD_M1, "A_v", 32 << 20)
            a.I("s_lshl_b32 s60, %s, 1" % sU)
            a.I("s_add_u32 s60, s60, %s" % sPar)
            a.I("s_lshr_b32 s58, s60, 3")
            a.I("s_and_b32 s59, s60, 7")
            self.sacc("s58", [("s58", 23), (sG, 20), ("s59", 15), (sW, 13)], 3072 * 256)
            a.I("s_add_u32 s59, s58, 4096")
            if o["pfdelay"]:
                a.I("s_sleep %d" % o["pfdelay"])
            for q in range(8):
                if q > o["pfd"]:
                    a.I("s_waitcnt vmcnt(%d)" % o["pfd"])
                a.I("buffer_load_dwordx4 %s, v4, %s, %s offen offset:%d%s" % (vr(G0 + 4 * q, 4), SRD_M1, "s59" if q >= 4 else "s58", (q & 3) * 1024, ["", " nt", "", " sc1"][o["pf"]]))
        self.load_epoch()
        a.I("s_add_u32 %s, %s, 1" % (sL, sPar))
        a.I("s_lshr_b32 %s, %s, 2" % (sHH, sU))
        a.I("s_and_b32 %s, %s, 3" % (sCB, sU))
        a.I("s_lshl_b32 s60, %s, 2" % sG)
        a.I("s_add_u32 s60, s60, %s" % sHH)
        a.I("s_cmp_lg_u32 %s, 0" % sPar)
        self.srd_sel(SRD_M0, "A_wo", "B_wo", 4 << 20)
        if o["fake"] & 2:
            a.I("s_cselect_b32 s10, 0, s10")
        self.sacc(sWO, [("s60", 17), (sW, 11), (sCB, 8)], 0)
        a.I("v_lshlrev_b32 v16, 4, v2")
        a.I("v_lshl_add_u32 %s, v3, 15, v16" % vWO)
        self.sacc(sOG, [("s60", 13), (sW, 11)], OBUF)
        a.I("v_and_b32 v17, 3, v2")
        if o["m1"]:
            self.sacc(sMLG, [(sG, 15), (sHH, 10), (sW, 8)], MLBUF)
            a.I("v_lshlrev_b32 %s, 4, v2" % vMLG)
        else:
            self.sacc(sMLG, [(sG, 15), (sHH, 11), (sW, 9)], MLBUF)
            a.I("v_lshlrev_b32 %s, 6, v17" % vMLG)
        self.sacc(sXP, [(sPar, 17), (sCB, 15), (sW, 13), ("s60", 7)], XBUF)
        a.I("v_lshlrev_b32 v16, 3, v3")
        a.I("v_lshl_add_u32 v16, v2, 3, v16")
        a.I("v_mov_b32 v18, 0x%x" % OOB)
        a.I("v_cmp_eq_u32 vcc, 0, v17")
        a.I("v_cndmask_b32 %s, v18, v16, vcc" % vXP)
        a.I("v_and_b32 v17, 1, v3")
        a.I("v_or_b32 %s, -2, v17" % vTM)
        a.I("v_lshlrev_b32 v17, 3, v17")
        a.I("v_lshl_add_u32 v17, v2, 4, v17")
        a.I("s_mul_i32 s56, %s, %d" % (sW, 320 if o["pad"] else 256))
        a.I("v_add_u32 %s, s56, v17" % vO2W)
        a.I("v_lshrrev_b32 v16, 2, v2")
        a.I("v_lshlrev_b32 v17, 4, v3")
        a.I("v_lshl_add_u32 %s, v16, 8, v17" % vO2R)
        if o["pad"]:
            a.I("v_lshl_add_u32 %s, v16, 6, %s" % (vO2R, vO2R))
        self.sacc("s58", [(sPar, 15), (sW, 13)], WX)
        a.I("v_add_u32 %s, s58, v4" % vWXW)
        self.sacc("s58", [(sPar, 15), (sW, 11)], WX)
        a.I("v_add_u32 %s, s58, v4" % vWXR)
        a.I("s_lshl_b32 s56, %s, 4" % sPar)
        a.I("v_mov_b32 %s, s56" % vF)
        a.I("v_add_u32 %s, s56, v14" % vFW)
        self.selector(SM, 0xffff, "v16", "v17")
        a.I("s_mov_b32 %s, 0x01000100" % sDupLo)
        a.I("s_mov_b32 %s, 0x03020302" % sDupHi)
        a.I("v_mov_b32 v0, 1")
        a.I("s_cmp_lg_u32 %s, 0" % sPar)
        a.I("s_cbranch_scc1 L_po_gb")
        a.I("s_cmp_lg_u32 %s, 0" % sW)
        a.I("s_cbranch_scc1 L_po_ga")
        a.I("s_waitcnt lgkmcnt(0)")
        a.I("s_add_u32 s74, s74, 1")
        a.I("s_addc_u32 s75, s75, 0")
        self.sacc("s58", [(sG, 12), (sI, 7)], GFLAGS + 128)
        a.I("s_mov_b32 s59, %d" % o["hintmax"])
        a.label("L_po_bg")
        a.I("buffer_load_dwordx2 v[16:17], v13, %s, s58 offen sc1" % SRD_WS)
        a.I("s_waitcnt vmcnt(0)")
        a.I("v_xor_b32 v16, s74, v16")
        a.I("v_bitop3_b32 v16, v16, v17, s75 bitop3:0xf6")
        a.I("v_cmp_ne_u32 vcc, 0, v16")
        a.I("s_cbranch_vccz L_po_bgd")
        a.I("s_sleep 2")
        a.I("s_sub_u32 s59, s59, 1")
        a.I("s_cbranch_scc0 L_po_bg")
        a.label("L_po_bgd")
        if o["qgate"]:
            self.exchange(FQP, 16, [], sval="1", sleep=1)
        a.I("ds_write_b32 v13, v0 offset:%d" % WGO)
        a.label("L_po_ga")
        self.lds_wait_ge("v13", WGO, "1", "v16", sleep=1)
        self.prio(2)
        a.I("s_branch L_po_ld")
        a.label("L_po_gb")
        if o["pfb"]:
            self.srd(SRD_M1, "B_k", 32 << 20)
            a.I("s_lshr_b32 s58, %s, 2" % sU)
            a.I("s_and_b32 s59, %s, 3" % sU)
            self.sacc("s58", [("s58", 23), (sG, 20), ("s59", 16), (sW, 13)], 3072 * 256)
            if o["pfgate"] == 0:
                self.lds_wait_ge("v13", WGO, "1", "v16", sleep=2)
            else:
                self.lds_wait_ge("v14", FWX, "1", "v16", sleep=2)
            if o["pfbdelay"]:
                a.I("s_sleep %d" % o["pfbdelay"])
            n = 0
            for q in range(8 - o["pfb"], 8):
                for qd in range(2):
                    a.I("s_add_u32 s59, s58, %d" % (qd * 32768 + (q >> 2) * 4096))
                    if n > o["pfbd"]:
                        a.I("s_waitcnt vmcnt(%d)" % o["pfbd"])
                    a.I("buffer_load_dwordx4 %s, v4, %s, s59 offen offset:%d%s" % (vr(G0 + 4 * (n & 7), 4), SRD_M1, (q & 3) * 1024, " nt" if o["pfnt"] else ""))
                    n += 1
        if o["nwe"]:
            if o["weg"] == 2:
                self.lds_wait_ge("v14", FWX, "1", "v16", sleep=2)
            elif o["weg"] == 3:
                self.lds_wait_ge("v14", FOP, "1", "v16", sleep=1)
            elif o["weg"] == 0:
                self.exchange(FQP, 16, [], sval="1", sleep=2)
            else:
                self.lds_wait_ge("v13", WGO, "1", "v16", sleep=2)
            if o["wed"]:
                a.I("s_sleep %d" % o["wed"])
            a.I("s_mov_b32 s59, %s" % sWO)
            for e in range(o["nwe"]):
                a.I("buffer_load_dwordx4 %s, %s, %s, s59 offen offset:%d nt" % (vr(G0 + 4 * e, 4), vWO, SRD_M0, (e & 1) * 1024))
                if e & 1 and e < 7:
                    a.I("s_add_u32 s59, s59, 8192")
            self.lds_wait_ge("v14", FQX, "2", "v16", sleep=2)
            a.I("s_sleep %d" % o["wobd"])
            a.I("s_branch L_po_ld2")
        if o["wob"] == 0:
            self.lds_wait_ge("v14", FQX, "2", "v16", sleep=2)
        elif o["wob"] == 1:
            self.lds_wait_ge("v13", WGO, "1", "v16", sleep=2)
        elif o["wob"] == 2:
            self.lds_wait_ge("v14", FWX, "1", "v16", sleep=2)
        elif o["wob"] == 4:
            self.lds_wait_ge("v14", FQX, "2", "v16", sleep=2)
            self.exchange(FQP, 16, [], sval="2", sleep=1)
        elif o["wob"] == 3:
            self.lds_wait_ge("v14", FOP, "1", "v16", sleep=2)
        if o["wobd"]:
            a.I("s_sleep %d" % o["wobd"])
        a.label("L_po_ld")
        a.I("s_mov_b32 s59, %s" % sWO)
        for e in range(8):
            if o["nwe"] and e == o["nwe"]:
                a.label("L_po_ld2")
            a.I("buffer_load_dwordx4 %s, %s, %s, s59 offen offset:%d nt" % (vr(G0 + 4 * e, 4), vWO, SRD_M0, (e & 1) * 1024))
            if e & 1 and e < 7:
                a.I("s_add_u32 s59, s59, 8192")
        if o["pe"]:
            assert o["cmb"] & 5 == 5
            self.lds_wait_ge("v13", GO, "1", "v1", sleep=1)
            self.lds_wait_ge("v14", FQX, sL, "v1", sleep=1)
            a.I("s_add_u32 s59, %s, 4096" % sXP)
        a.I("s_waitcnt vmcnt(0)")
        self.transpose(G0, WC, 4)
        if o["pe"]:
            a.I("buffer_load_dwordx4 %s, %s, %s, %s offen sc1" % (vr(ML, 4), vMLG, SRD_WS, sMLG))
            for r in range(2):
                a.I("buffer_load_dwordx4 %s, v4, %s, %s offen offset:%d sc1" % (vr(GG + 4 * r, 4), SRD_WS, sOG, r * 1024))
        for j in range(8):
            a.I("ds_write_b128 %s, %s offset:%d" % (vWXW, vr(WC + 4 * j, 4), 1024 * j))
        self.flag_set(vFW, FWX, "v0")
        self.exchange(FWX, FL, [], sval="1", sleep=1, vbase=vF)
        for ks in range(4):
            for jj in range(2):
                a.I("ds_read_b128 %s, %s offset:%d" % (vr(WC + 4 * (2 * ks + jj), 4), vWXR, 8192 * ks + 1024 * jj))
        self.ts(2)
        if o["pe"]:
            a.I("v_mov_b32 v0, %s" % sL)
            self.prio(0)
            a.I("s_waitcnt lgkmcnt(0)")
            a.I("s_cmp_gt_u32 %s, 2" % sL)
            a.I("s_branch L_po_chk")
        else:
            self.lds_wait_ge("v13", GO, "1", "v1", sleep=1)

        if o["fake"] & 8:
            for t in range(8):
                a.I("v_and_b32 v%d, 0x3c003c00, v%d" % (A0 + t, SM + (t & 3)))
        a.label("L_po_loop")
        self.prio(0)
        a.I("v_mov_b32 v0, %s" % sL)
        a.I("s_add_u32 s59, %s, 4096" % sXP)
        self.lds_wait_ge("v14", FQX, sL, "v1", sleep=2)
        if o["osl"]:
            lz = a.newlabel("LZ")
            a.I("s_cmp_lt_u32 %s, 3" % sL)
            a.I("s_cbranch_scc1 %s" % lz)
            a.I("s_sleep %d" % o["osl"])
            a.label(lz)
        if o["m1"]:
            dpp = " row_mask:0xf bank_mask:0xf"
            oloads = ["buffer_load_dwordx4 %s, v4, %s, %s offen offset:%d sc1" % (vr(GG + 4 * r, 4), SRD_WS, sOG, r * 1024) for r in range(2)]
            self.poll2([("buffer_load_dwordx4 %s, %s, %s, %s offen sc1" % (vr(ML, 4), vMLG, SRD_WS, sMLG), ["v%d" % (ML + 1), "v%d" % (ML + 3)])], "v1", "v2", sPar,
                       data=oloads, early=(2 if o["cmb"] & 4 else 1) if o["cmb"] & 1 else 0, defer=o["opos"], entry="L_po_chk" if o["pe"] else None, warm=1 if o["cmb"] & 8 else 0)
            E = F + 2
            a.I("v_max_f32_dpp v%d, v%d, v%d row_ror:4%s" % (F, ML, ML, dpp))
            a.I("v_max_f32_dpp v%d, v%d, v%d row_ror:4%s" % (F + 1, ML + 2, ML + 2, dpp))
            a.I("v_max_f32_dpp v%d, v%d, v%d row_ror:8%s" % (F, F, F, dpp))
            a.I("v_max_f32_dpp v%d, v%d, v%d row_ror:8%s" % (F + 1, F + 1, F + 1, dpp))
            a.I("v_max_f32 v2, v%d, v%d" % (F, F + 1))
            a.I("v_max_f32_dpp v2, v2, v2 quad_perm:[1,0,3,2]%s" % dpp)
            a.I("v_max_f32_dpp v2, v2, v2 quad_perm:[2,3,0,1]%s" % dpp)
            a.I("v_sub_f32 v%d, v%d, v2" % (E, ML))
            a.I("v_sub_f32 v%d, v%d, v2" % (E + 1, ML + 2))
            a.I("v_exp_f32 v%d, v%d" % (E, E))
            a.I("v_exp_f32 v%d, v%d" % (E + 1, E + 1))
            a.I("v_pk_add_f32 %s, %s, v[2:3] op_sel_hi:[1,0] neg_lo:[0,1] neg_hi:[0,1]" % (vr(F, 2), vr(F, 2)))
            a.I("v_mul_f32 v1, v%d, v%d" % (E, ML + 1))
            a.I("v_fmac_f32 v1, v%d, v%d" % (E + 1, ML + 3))
            a.I("v_exp_f32 v%d, v%d" % (F, F))
            a.I("v_exp_f32 v%d, v%d" % (F + 1, F + 1))
            for m in ("quad_perm:[1,0,3,2]", "quad_perm:[2,3,0,1]", "row_ror:4", "row_ror:8"):
                a.I("v_add_f32_dpp v1, v1, v1 %s%s" % (m, dpp))
            a.I("v_rcp_f32 v2, v1")
            a.I("v_pk_mul_f32 %s, %s, v[2:3] op_sel_hi:[1,0]" % (vr(F, 2), vr(F, 2)))
            a.I("v_cvt_pk_bf16_f32 v1, v%d, v%d" % (F, F + 1))
            for q in range(4):
                a.I("v_mov_b32_dpp v2, v1 quad_perm:[%d,%d,%d,%d] row_mask:0x%x bank_mask:0xf" % (q, q, q, q, 1 << q))
            a.I("v_perm_b32 v%d, v2, v2, %s" % (F, sDupLo))
            a.I("v_perm_b32 v%d, v2, v2, %s" % (F + 1, sDupHi))
            for r in range(2):
                for t in range(4):
                    a.I("v_and_b32 v%d, v%d, v%d" % (A0 + 4 * r + t, F + r, SM + t))
            lo = a.newlabel("LO")
            a.label(lo)
            for r in range(2):
                a.I("s_waitcnt vmcnt(%d)" % (1 - r))
                a.I("v_mfma_f32_16x16x32_bf16 %s, %s, %s, %s" % (vr(DO, 4), vr(A0 + 4 * r, 4), vr(GG + 4 * r, 4), "0" if r == 0 else vr(DO, 4)))
            self.tagtree(["v%d" % GG, "v%d" % (GG + 4)], "v1", "v2", sPar)
            a.I("v_cmp_ne_u32 vcc, 0, v1")
            a.I("s_cbranch_vccnz %s" % self.retry_stub(lo, 0, pre=["s_mov_b64 exec, vcc"] + oloads + ["s_mov_b64 exec, -1"]))
            self.ts_layer(8)
        else:
            loads = [("buffer_load_dwordx2 %s, %s, %s, %s offen offset:%d sc1" % (vr(ML + 2 * k, 2), vMLG, SRD_WS, sMLG, 256 * k), ["v%d" % (ML + 2 * k + 1)]) for k in range(2)]
            for r in range(2):
                loads.append(("buffer_load_dwordx4 %s, v4, %s, %s offen offset:%d sc1" % (vr(GG + 4 * r, 4), SRD_WS, sOG, r * 1024), ["v%d" % (GG + 4 * r)]))
            self.poll2(loads, "v1", "v2", sPar)
            self.ts_layer(8)
            if o["fake"] & 8:
                a.I("s_branch L_po_fk")
            a.I("v_max_f32 v1, v%d, v%d" % (ML, ML + 2))
            a.I("v_max_f32_dpp v1, v1, v1 quad_perm:[1,0,3,2] row_mask:0xf bank_mask:0xf")
            a.I("v_max_f32_dpp v1, v1, v1 quad_perm:[2,3,0,1] row_mask:0xf bank_mask:0xf")
            a.I("v_sub_f32 v%d, v%d, v1" % (F, ML))
            a.I("v_sub_f32 v%d, v%d, v1" % (F + 1, ML + 2))
            a.I("v_exp_f32 v%d, v%d" % (F, F))
            a.I("v_exp_f32 v%d, v%d" % (F + 1, F + 1))
            a.I("v_mul_f32 v1, v%d, v%d" % (F, ML + 1))
            a.I("v_fmac_f32 v1, v%d, v%d" % (F + 1, ML + 3))
            a.I("v_add_f32_dpp v1, v1, v1 quad_perm:[1,0,3,2] row_mask:0xf bank_mask:0xf")
            a.I("v_add_f32_dpp v1, v1, v1 quad_perm:[2,3,0,1] row_mask:0xf bank_mask:0xf")
            a.I("v_rcp_f32 v2, v1")
            a.I("v_pk_mul_f32 %s, %s, v[2:3] op_sel_hi:[1,0]" % (vr(F, 2), vr(F, 2)))
            a.I("v_cvt_pk_bf16_f32 v1, v%d, v%d" % (F, F + 1))
            for q in range(4):
                a.I("v_mov_b32_dpp v2, v1 quad_perm:[%d,%d,%d,%d] row_mask:0x%x bank_mask:0xf" % (q, q, q, q, 1 << q))
            a.I("v_perm_b32 v%d, v2, v2, %s" % (F, sDupLo))
            a.I("v_perm_b32 v%d, v2, v2, %s" % (F + 1, sDupHi))
            for r in range(2):
                for t in range(4):
                    a.I("v_and_b32 v%d, v%d, v%d" % (A0 + 4 * r + t, F + r, SM + t))
            if o["fake"] & 8:
                a.label("L_po_fk")
            for r in range(2):
                a.I("v_mfma_f32_16x16x32_bf16 %s, %s, %s, %s" % (vr(DO, 4), vr(A0 + 4 * r, 4), vr(GG + 4 * r, 4), "0" if r == 0 else vr(DO, 4)))
        a.I("v_cvt_pk_bf16_f32 v%d, v%d, v%d" % (DO, DO, DO + 1))
        a.I("v_cvt_pk_bf16_f32 v%d, v%d, v%d" % (DO + 1, DO + 2, DO + 3))
        a.I("ds_write_b64 %s, %s offset:%d" % (vO2W, vr(DO, 2), OL2))
        self.flag_set("v14", FOX, "v0")
        self.exchange(FOX, FL, ["ds_read_b128 %s, %s offset:%d" % (vr(AO + 4 * ks, 4), vO2R, OL2 + 64 * ks) for ks in range(4)],
                      optimistic=2 if o["fs"] & 2 else True)
        for jj in range(2):
            for ks in range(4):
                a.I("v_mfma_f32_16x16x32_bf16 %s, %s, %s, %s" % (vr(D0 + 4 * jj, 4), vr(WC + 4 * (2 * ks + jj), 4), vr(AO + 4 * ks, 4), "0" if ks == 0 else vr(D0 + 4 * jj, 4)))
        for jj in range(2):
            d = D0 + 4 * jj
            a.I("v_cvt_pk_bf16_f32 v%d, v%d, v%d" % (d, d, d + 1))
            a.I("v_cvt_pk_bf16_f32 v%d, v%d, v%d" % (d + 1, d + 2, d + 3))
            a.I("v_and_b32 v%d, %s, v%d" % (d, vTM, d))
            a.I("buffer_store_dwordx2 %s, %s, %s, %s offen %s" % (vr(d, 2), vXP, SRD_WS, "s59" if jj else sXP, ["sc1", "sc0 sc1", "sc1 nt", "sc0 sc1 nt"][o["xs"]]))
        self.flag_set("v14", FOP, "v0")
        if o["ts"] == 9:
            a.I("s_mov_b64 s[%d:%d], s[%d:%d]" % (TS0 + 2, TS0 + 3, TS0 + 4, TS0 + 5))
            a.I("s_memrealtime s[%d:%d]" % (TS0 + 4, TS0 + 5))
            a.I("s_waitcnt lgkmcnt(0)")
        self.ts_layer(9)
        self.ts_save()
        a.I("s_add_u32 %s, %s, 0x40000" % (sXP, sXP))
        a.I("s_add_u32 %s, %s, 2" % (sL, sL))
        a.I("s_cmp_le_u32 %s, 4" % sL)
        a.settle()
        a.I("s_cbranch_scc1 L_po_loop")
        a.I("s_branch L_end")

    def epilogue(self):
        a = self.a
        for l, lines in self.stubs:
            a.label(l)
            a.hist = []
            for x in lines:
                if x.endswith(":"):
                    a.label(x[:-1])
                else:
                    a.I(x)
        a.label("L_end")
        if self.o["ts"]:
            a.I("s_memtime s[16:17]")
            a.I("s_memrealtime s[18:19]")
            for _ in range(4):
                a.I("s_sleep 127")
            a.I("s_mov_b64 exec, 1")
            a.I("s_lshl_b32 s56, s2, 4")
            a.I("s_lshl_b32 s57, %s, 2" % sRole)
            a.I("s_add_u32 s56, s56, s57")
            a.I("s_add_u32 s56, s56, %s" % sW)
            a.I("s_lshl_b32 s56, s56, 7")
            a.I("s_add_u32 s56, s56, 0x%x" % TSBUF)
            a.I("s_waitcnt lgkmcnt(0) vmcnt(0)")
            for k in range(NTS + 2):
                sr = TS0 + 2 * k if k < NTS else 16 + 2 * (k - NTS)
                a.I("v_mov_b32 v16, s%d" % sr)
                a.I("v_mov_b32 v17, s%d" % (sr + 1))
                a.I("buffer_store_dwordx2 v[16:17], v13, %s, s56 offen offset:%d" % (SRD_WS, 8 * k))
                a.I("s_nop 1")
            a.I("s_getpc_b64 s[16:17]")
            a.I("v_mov_b32 v16, s16")
            a.I("v_mov_b32 v17, s17")
            a.I("buffer_store_dwordx2 v[16:17], v13, %s, s56 offen offset:120" % SRD_WS)
        a.label("L_exit")
        a.I("s_endpgm")
        a.label("L_codeend")

    def build(self):
        a = self.a
        if self.o["ts"]:
            for k in range(NTS):
                a.I("s_mov_b64 s[%d:%d], 0" % (TS0 + 2 * k, TS0 + 2 * k + 1))
        self.prologue()
        self.att()
        self.handshake()
        self.pq()
        self.po()
        self.epilogue()
        if self.o["mv"]:
            L = a.lines
            i, j = L.index("L_PQ:"), L.index("L_pq_nw:")
            head = L[i:j] + ["    s_branch L_pq_nw"]
            del L[i:j]
            k = L.index("L_att_sb:" if self.o["mv"] == 1 else "L_ATT:")
            if self.o["mv"] == 2:
                head = ["    s_branch L_ATT"] + head
            L[k:k] = head
        ref = open("cdna_kernels/%s.s.ref" % NAME).read().splitlines()
        head = [l for l in ref if l.startswith(";") and "@launch" not in l]
        assert a.maxv <= 128, a.maxv
        out = "\n".join(head) + "\n"
        out += "; @launch grid=(256,1,1) block=(1024,1,1) lds=%d\n" % LDS_BYTES
        out += '.amdgcn_target "amdgcn-amd-amdhsa--gfx950"\n.text\n.globl %s_kernel\n.p2align 8\n.type %s_kernel,@function\n%s_kernel:\n' % (NAME, NAME, NAME)
        out += NOTES
        out += a.text()
        out += '.section .rodata,"a"\n.p2align 6\n.amdhsa_kernel %s_kernel\n' % NAME
        out += "  .amdhsa_next_free_vgpr 128\n  .amdhsa_next_free_sgpr 102\n  .amdhsa_accum_offset 128\n"
        out += "  .amdhsa_group_segment_fixed_size 0\n  .amdhsa_kernarg_size 104\n  .amdhsa_user_sgpr_count 2\n"
        out += "  .amdhsa_user_sgpr_kernarg_segment_ptr 1\n  .amdhsa_system_sgpr_workgroup_id_x 1\n.end_amdhsa_kernel\n"
        return out


if __name__ == "__main__":
    opts = {}
    outp = "cdna_kernels/%s.s" % NAME
    for arg in sys.argv[1:]:
        if arg.startswith("-o"):
            outp = arg[2:]
        else:
            k, v = arg.split("=")
            opts[k] = int(v, 0)
    open(outp, "w").write(Gen(**opts).build())
    print("wrote", outp)
```
